```python
import torch

def _softmax(x, axis=-1):
    return torch.softmax(x, dim=axis)
def _gelu(x):
    return torch.nn.functional.gelu(x, approximate="tanh")
def _silu(x):
    return torch.nn.functional.silu(x)
def _sigmoid(x):
    return torch.sigmoid(x)
def _layernorm(x, axis=-1, eps=1e-5):
    m = x.mean(dim=axis, keepdim=True)
    v = x.var(dim=axis, keepdim=True, unbiased=False)
    return (x - m) / torch.sqrt(v + eps)
def _scatter_add(tgt, idx, src, axis=0):
    return tgt.clone().index_add_(axis, idx, src)
def _segment_sum(src, seg, n):
    out = torch.zeros((n,) + src.shape[1:], dtype=src.dtype)
    return out.index_add_(0, seg, src)
def _pad(x, pw):
    flat = tuple(v for pair in reversed(pw) for v in pair)
    return torch.nn.functional.pad(x, flat)

kernel_name = 'gather_scatter__edge_featured_mpnn_mpnn__graph'

def setup_inputs():

    _w = (lambda a: (lambda t: t.to(torch.bfloat16) if t.is_floating_point() else t)(torch.as_tensor(a)))
    N, deg, D, De = 10000, 64, 64, max(16, 1)
    E = N * deg
    H = 2 * D
    return {
        "x": _w((lambda *s: torch.randn(*s, dtype=torch.bfloat16) * 0.05)(N, D)),
        "e_attr": _w((lambda *s: torch.randn(*s, dtype=torch.bfloat16) * 0.8)(E, De)),
        "src": _w((lambda lo, hi, *s: torch.randint(lo, hi, s))(0, N, E).to(torch.int64)),
        "dst": _w((lambda lo, hi, *s: torch.randint(lo, hi, s))(0, N, E).to(torch.int64)),
        "w1": _w((lambda *s: torch.randn(*s, dtype=torch.bfloat16) * 0.8)(2 * D + De, H) * (1.0 / (2 * D + De) ** 0.5)),
        "b1": _w((lambda *s: torch.randn(*s, dtype=torch.bfloat16) * 0.4)(H) * 0.01),
        "w2": _w((lambda *s: torch.randn(*s, dtype=torch.bfloat16) * 0.05)(H, D) * (1.0 / H ** 0.5)),
        "b2": _w((lambda *s: torch.randn(*s, dtype=torch.bfloat16) * 0.05)(D) * 0.01),
    }

def reference(x, e_attr, src, dst, w1, b1, w2, b2):
    N, D = x.shape
    h_src = x[src]
    h_dst = x[dst]
    m_in = torch.concatenate([h_src, h_dst, e_attr], axis=-1)
    h = _silu(m_in @ w1 + b1)
    msg = h @ w2 + b2
    return _segment_sum(msg, dst, N)
```

```python
import re
class Asm:
    def __init__(self):
        self.lines=[]
    def __call__(self, s=""):
        for l in s.split("\n"):
            l=l.strip()
            if l: self.lines.append(l)
    def extend(self, other):
        self.lines += other.lines if isinstance(other, Asm) else list(other)
    def text(self):
        out=[]
        for l in self.lines:
            if l.endswith(":") or l.startswith("."): out.append(l)
            else: out.append("    "+l)
        return "\n".join(out)+"\n"

TRANS=("v_exp_","v_log_","v_rcp_","v_rsq_","v_sqrt_","v_sin_","v_cos_")
def regs(op):
    op=op.strip()
    m=re.fullmatch(r"-?(?:abs\()?([vsa])(\d+)\)?",op)
    if m: return [m.group(1)+m.group(2)]
    m=re.fullmatch(r"-?([vsa])\[(\d+):(\d+)\]",op)
    if m: return [m.group(1)+str(i) for i in range(int(m.group(2)),int(m.group(3))+1)]
    if op in("vcc","exec"): return [op]
    if op in("vcc_lo","vcc_hi"): return ["vcc"]
    if op in("exec_lo","exec_hi"): return ["exec"]
    if op=="m0": return ["m0"]
    return []
def parse(line):
    l=line.split(";")[0].strip()
    if not l or l.endswith(":") or l.startswith("."): return None
    parts=l.split(None,1)
    mn=parts[0]
    rest=parts[1] if len(parts)>1 else ""
    ops=[]; depth=0; cur=""
    for ch in rest:
        if ch=="[": depth+=1
        if ch=="]": depth-=1
        if ch=="," and depth==0: ops.append(cur.strip()); cur=""
        else: cur+=ch
    if cur.strip(): ops.append(cur.strip())
    mods=""
    if ops:
        last=ops[-1].split()
        ops[-1]=last[0]; mods=" ".join(last[1:])
    d=dict(mn=mn,ops=ops,mods=mods,w=[],r=[],kind="other",line=line)
    R=lambda idx:[x for i in idx if i<len(ops) for x in regs(ops[i])]
    n=len(ops)
    if mn.startswith("v_mfma"):
        d["kind"]="mfma"; d["w"]=R([0]); d["ra"]=R([1]); d["rb"]=R([2]); d["rc"]=R([3]); d["r"]=d["ra"]+d["rb"]+d["rc"]
    elif mn.startswith("v_"):
        d["kind"]="valu"; d["trans"]=mn.startswith(TRANS)
        d["w"]=R([0]); d["r"]=R(range(1,n))
        if mn.startswith(("v_fmac","v_dot2c","v_pk_fmac","v_writelane")) or "dpp" in mn: d["r"]+=d["w"]
        if mn.startswith("v_cndmask") and n==4: pass
        if mn.startswith("v_cndmask") and n==3: d["r"]+=["vcc"]
        if mn.startswith("v_permlane"): d["w"]=R([0,1]); d["r"]=R([0,1])
        d["dpp"]=("dpp" in mn) or ("row_" in mods) or ("quad_perm" in mods)
    elif mn.startswith("ds_"):
        d["kind"]="ds"
        if mn.startswith(("ds_read","ds_bpermute","ds_permute")) or "_rtn" in mn:
            d["w"]=R([0]); d["r"]=R(range(1,n))
        else: d["r"]=R(range(n))
    elif mn.startswith(("buffer_","global_")):
        d["kind"]="vmem"
        islds=" lds" in (" "+mods) or "lds" in mods.split()
        d["lds"]=islds
        if mn.startswith("buffer_load"):
            if islds: d["r"]=R(range(n))+["m0"]
            else: d["w"]=R([0]); d["r"]=R(range(1,n))
        elif mn.startswith("buffer_store"):
            d["r"]=R(range(n)); d["data"]=R([0])
        elif mn.startswith("global_load"):
            d["w"]=R([0]); d["r"]=R(range(1,n))
        elif mn.startswith("global_store"):
            d["r"]=R(range(n)); d["data"]=R([1])
        else: d["r"]=R(range(n))
    elif mn.startswith("s_"):
        d["kind"]="salu"
        if mn=="s_nop": d["nop"]=int(ops[0],0)+1
        elif mn.startswith(("s_cmp","s_bitcmp","s_waitcnt","s_barrier","s_cbranch","s_branch","s_endpgm","s_setprio","s_sleep")): d["r"]=R(range(n))
        else:
            d["w"]=R([0]); d["r"]=R(range(1,n))
            if "saveexec" in mn: d["w"]+=["exec"]; d["r"]+=["exec"]
    return d
def check(lines, name=""):
    ins=[parse(l) for l in lines]; ins=[i for i in ins if i]
    errs=[]
    def dist(i,j):
        s=0
        for k in range(i+1,j): s+=ins[k].get("nop",1)
        return s
    W=24
    for j,c in enumerate(ins):
        for i in range(max(0,j-W),j):
            p=ins[i]; dd=None; need=0; why=""
            pw=set(p["w"]); cr=set(c["r"]); cw=set(c["w"])
            vw={x for x in pw if x[0]=="v" and x!="vcc"}
            sw={x for x in pw if x[0]=="s" or x in("vcc","exec")}
            if p["kind"]=="valu":
                if c["kind"]=="mfma" and vw&cr: need,why=2,"valu->mfma"
                if p.get("trans") and c["kind"]=="valu" and not c.get("trans") and vw&cr and need<1: need,why=1,"trans->valu"
                if p.get("trans") and c["kind"] in("ds","vmem") and vw&cr and need<1: need,why=1,"trans->mem(conservative)"
                if c["kind"]=="valu" and (sw-{"exec"})&cr: need,why=max(need,2),"valu sgpr->valu"
                if c["kind"]=="vmem" and sw&cr: need,why=max(need,5),"valu sgpr->vmem"
                if c["kind"]=="valu" and c["mn"].startswith(("v_readlane","v_readfirstlane")) and vw&cr: need,why=max(need,1),"valu->readlane"
                if c["kind"]=="valu" and c.get("dpp") and vw&cr: need,why=max(need,2),"valu->dpp"
                if c["kind"]=="valu" and c["mn"].startswith("v_permlane") and vw&cr: need,why=max(need,2),"valu->permlane"
            if p["kind"]=="mfma":
                D=set(p["w"])
                if c["kind"]=="valu" and D&(cr|cw): need,why=12,"mfma->valu"
                if c["kind"] in("ds","vmem") and D&(cr|cw): need,why=12,"mfma->mem"
                if c["kind"]=="mfma":
                    if D&(set(c["ra"])|set(c["rb"])): need,why=12,"mfma->mfma AB"
                    elif D&set(c["rc"]) and set(c["rc"])!=D: need,why=10,"mfma->mfma C partial"
                    elif D&cw and set(c["w"])!=D: need,why=10,"mfma WAW partial"
                C=set(p["rc"])
                if c["kind"]=="valu" and C&cw and not (D&cw): need,why=max(need,7),"mfma C WAR"
            if p["kind"]=="salu" and "m0" in pw and c["kind"]=="vmem" and c.get("lds"): need,why=1,"m0->ldsdma"
            if p["kind"]=="vmem" and p.get("data") and len(p["data"])>=3 and c["kind"]=="valu" and set(p["data"])&cw: need,why=2,"store data WAR"
            if need and dist(i,j)<need:
                errs.append(f"{name}: {why} needs {need} has {dist(i,j)}:\n   {p['line']}\n   {c['line']}")
    return errs
```

```python
import sys, os
from asmlib import Asm, check
NAME="gather_scatter__edge_featured_mpnn_mpnn__graph"
N=10000; E=640000; NB=256; CH=2500
MAGIC=109951163
TABLE_BYTES=NB*NB*128
WF_OFF=TABLE_BYTES
WF_BYTES=52*1024
NEG_LOG2E=-1.4426950408889634
import struct
def f2u(x): return struct.unpack("<I",struct.pack("<f",x))[0]

def srd(a, base, ptr, nbytes, add=0):
    if add:
        a(f"s_add_u32 s{base}, s{ptr}, {add}")
        a(f"s_addc_u32 s{base+1}, s{ptr+1}, 0")
        a(f"s_and_b32 s{base+1}, s{base+1}, 0xffff")
    else:
        a(f"s_mov_b32 s{base}, s{ptr}")
        a(f"s_and_b32 s{base+1}, s{ptr+1}, 0xffff")
    a(f"s_mov_b32 s{base+2}, {nbytes}")
    a(f"s_mov_b32 s{base+3}, 0x20000")

K1_IMG=1024; K1_STRIDE=144; K1_LDS=K1_IMG+256*K1_STRIDE
def gen_k1():
    a=Asm()
    a("s_cmp_ge_u32 s2, 256")
    a("s_cbranch_scc1 k1_end")
    a("s_load_dwordx4 s[4:7], s[0:1], 16")
    a("s_load_dwordx2 s[8:9], s[0:1], 32")
    a("s_load_dwordx2 s[10:11], s[0:1], 48")
    a("s_load_dwordx2 s[12:13], s[0:1], 80")
    a("v_lshrrev_b32 v1, 6, v0")
    a("v_lshlrev_b32 v2, 2, v0")
    a("v_readfirstlane_b32 s14, v1")
    a("v_mov_b32 v3, 0")
    a("s_cmp_eq_u32 s14, 10")
    a("s_cbranch_scc1 k1_w")
    a("s_cmp_lt_u32 s14, 4")
    a("s_cbranch_scc0 k1_nz")
    a("ds_write_b32 v2, v3")
    a("k1_nz:")
    a("s_waitcnt lgkmcnt(0)")
    srd(a,16,4,E*4); srd(a,20,6,E*4); srd(a,24,12,TABLE_BYTES)
    a("s_mul_i32 s15, s2, 10000")
    a("v_lshlrev_b32 v4, 4, v0")
    a("v_add_u32 v4, s15, v4")
    a("v_cmp_gt_u32 vcc, 625, v0")
    a("s_and_saveexec_b64 s[36:37], vcc")
    a("buffer_load_dwordx4 v[8:11], v4, s[20:23], 0 offen")
    a("buffer_load_dwordx4 v[12:15], v4, s[16:19], 0 offen")
    a("s_barrier")
    a(f"s_mov_b32 s28, {MAGIC}")
    a("s_movk_i32 s29, 625")
    a("s_movk_i32 s30, 144")
    a("v_mov_b32 v5, 1")
    a("v_lshlrev_b32 v6, 16, v0")
    a("s_waitcnt vmcnt(1)")
    for i in range(4):
        a(f"v_mul_hi_u32 v{16+i}, v{8+i}, s28")
    for i in range(4):
        a(f"v_lshlrev_b32 v{20+i}, 2, v{16+i}")
        a(f"ds_add_rtn_u32 v{24+i}, v{20+i}, v5")
    for i in range(4):
        a(f"v_mad_u32_u24 v{28+i}, v{16+i}, s29, 15")
        a(f"v_lshrrev_b32 v{28+i}, 4, v{28+i}")
        a(f"v_sub_u32 v{28+i}, v{8+i}, v{28+i}")
        a(f"v_lshlrev_b32 v{28+i}, 26, v{28+i}")
        a(f"v_mad_u32_u24 v{32+i}, v{16+i}, s30, 4")
    a("s_waitcnt vmcnt(0)")
    for i in range(4):
        a(f"v_or3_b32 v{28+i}, v{28+i}, v6, v{12+i}")
        if i: a(f"v_or_b32 v{28+i}, {i<<14}, v{28+i}")
    a("s_waitcnt lgkmcnt(0)")
    for i in range(4):
        a(f"v_min_u32 v{24+i}, 31, v{24+i}")
        a(f"v_lshl_add_u32 v{24+i}, v{24+i}, 2, v{32+i}")
        a(f"ds_write_b32 v{24+i}, v{28+i} offset:{K1_IMG}")
    a("s_mov_b64 exec, s[36:37]")
    a("s_waitcnt lgkmcnt(0)")
    a("s_barrier")
    a("s_cmp_ge_u32 s14, 8")
    a("s_cbranch_scc1 k1_end")
    a("v_lshrrev_b32 v4, 3, v0")
    a("v_and_b32 v5, 7, v0")
    a("v_mul_u32_u24 v6, 144, v4")
    a("v_lshl_add_u32 v6, v5, 4, v6")
    a("v_lshlrev_b32 v7, 2, v4")
    for r in range(4):
        a(f"ds_read_b128 v[{12+4*r}:{15+4*r}], v6 offset:{K1_IMG+r*64*144}")
        a(f"ds_read_b32 v{28+r}, v7 offset:{r*256}")
    a("v_lshlrev_b32 v8, 15, v4")
    a("v_lshl_add_u32 v8, v5, 4, v8")
    a("v_cmp_eq_u32 vcc, 0, v5")
    a("s_lshl_b32 s31, s2, 7")
    for r in range(4):
        a(f"s_add_u32 s{32+r}, s31, {r<<21}")
    a("s_waitcnt lgkmcnt(0)")
    for r in range(4):
        a(f"v_cndmask_b32 v{12+4*r}, v{12+4*r}, v{28+r}, vcc")
    for r in range(4):
        a(f"buffer_store_dwordx4 v[{12+4*r}:{15+4*r}], v8, s[24:27], s{32+r} offen")
    a("s_endpgm")
    a("k1_w:")
    a("s_cmp_ge_u32 s2, 208")
    a("s_cbranch_scc1 k1_end")
    a("v_and_b32 v1, 63, v0")
    a("s_waitcnt lgkmcnt(0)")
    srd(a,24,12,WF_BYTES,WF_OFF)
    a("s_and_b32 s15, s2, 3")
    a("s_lshl_b32 s15, s15, 6")
    a("v_add_u32 v2, s15, v1")
    a("v_lshrrev_b32 v3, 2, v2")
    a("v_and_b32 v4, 3, v2")
    a("v_and_b32 v5, 31, v3")
    a("v_lshrrev_b32 v6, 5, v3")
    a("v_lshlrev_b32 v7, 3, v6")
    a("v_lshl_add_u32 v7, v4, 1, v7")
    a("s_cmp_lt_u32 s2, 80")
    a("s_cbranch_scc1 k1_w_main")
    a("s_cmp_lt_u32 s2, 144")
    a("s_cbranch_scc1 k1_w_b")
    a("s_sub_u32 s16, s2, 144")
    a("s_lshr_b32 s16, s16, 2")
    a("s_add_u32 s17, s16, 36")
    a("s_lshr_b32 s18, s16, 3")
    a("s_and_b32 s19, s16, 7")
    a("s_lshl_b32 s19, s19, 4")
    a("s_lshl_b32 s18, s18, 5")
    srd(a,28,10,128*64*2)
    a("s_movk_i32 s20, 128")
    a("s_mov_b32 s21, 0")
    a("s_branch k1_w_go")
    a("k1_w_b:")
    a("s_sub_u32 s16, s2, 80")
    a("s_lshr_b32 s16, s16, 2")
    a("s_add_u32 s17, s16, 20")
    a("s_lshr_b32 s18, s16, 2")
    a("s_and_b32 s19, s16, 3")
    a("s_lshl_b32 s19, s19, 4")
    a("s_add_u32 s19, s19, 64")
    a("s_lshl_b32 s18, s18, 5")
    srd(a,28,8,144*128*2)
    a("s_movk_i32 s20, 256")
    a("s_mov_b32 s21, 0")
    a("s_branch k1_w_go")
    a("k1_w_main:")
    a("s_lshr_b32 s17, s2, 2")
    a("s_mul_i32 s18, s17, 13")
    a("s_lshr_b32 s18, s18, 6")
    a("s_mul_i32 s19, s18, 5")
    a("s_sub_u32 s19, s17, s19")
    a("s_cmp_eq_u32 s19, 4")
    a("s_cselect_b32 s19, 8, s19")
    a("s_lshl_b32 s19, s19, 4")
    a("s_lshl_b32 s18, s18, 5")
    srd(a,28,8,144*128*2)
    a("s_movk_i32 s20, 256")
    a("s_mov_b32 s21, 1")
    a("k1_w_go:")
    a("v_add_u32 v7, s19, v7")
    a("v_add_u32 v5, s18, v5")
    a("v_mul_lo_u32 v7, v7, s20")
    a("v_lshl_add_u32 v7, v5, 1, v7")
    a("v_add_u32 v8, s20, v7")
    a("buffer_load_ushort v9, v7, s[28:31], 0 offen")
    a("buffer_load_ushort v10, v8, s[28:31], 0 offen")
    a("s_lshl_b32 s17, s17, 10")
    a("v_lshl_add_u32 v11, v2, 2, s17")
    a("s_waitcnt vmcnt(0)")
    a("v_lshl_or_b32 v12, v10, 16, v9")
    a("s_cmp_eq_u32 s21, 0")
    a("s_cbranch_scc1 k1_w_st")
    a("v_lshlrev_b32 v9, 16, v9")
    a("v_lshlrev_b32 v10, 16, v10")
    a(f"s_mov_b32 s22, {f2u(NEG_LOG2E):#x}")
    a("v_mul_f32 v9, s22, v9")
    a("v_mul_f32 v10, s22, v10")
    a("v_cvt_pk_bf16_f32 v12, v9, v10")
    a("k1_w_st:")
    a("buffer_store_dword v12, v11, s[24:27], 0 offen")
    a("k1_end:")
    a("s_endpgm")
    return a
assert all((f*13)>>6==f//5 for f in range(20))

LCAP=3328; NT_SENT=103
HIST=0; DEG=256; PADC=512; FLAG=768
XL=832; EL=XL+LCAP*4; QT=EL+LCAP*4; QP=QT+LCAP; HS=QP+41*512; XS=HS+41*512; XS_W=4160; ES=XS+8*XS_W; HH=ES+8*2048; HL=HH+64*272; K2_LDS=HL+64*272
HSOFF=HS-QP
SENT=0x7FFFFF00
W=16; A=[96,116]; D=[136,152]; EE=168; PD=184; PN=192; QB=200; AC=204; QA=[208,212]; XO=216; EO=220
vXLc=221; ACC=222; vELc=224; vQTc=225; vXc=226; vEc=227; vAx01=228; vAx23=229; vAe=230; vQc=231
vT0=232; vT1=233; vT2=234; QTV=236
K2_VGPR=240
S_X=4; S_E=8; S_T=12; S_W=16; S_O=20; S_B1=24; S_B2=28; S_SRC=32; S_DST=36
sSC=40; sWV=42; sNB=43; sNN=44; sNT=45; sTOT=46; sSLOW=47; sMK=48
sSAFE=80; sB0=81; sCNT=82; sC1=83; sC2=84; sC3=85; sNX=86; sF=[87,88]; sXS=89; sES=90; st=[91,92,93,94,95,96,97,98,99]
def Wf(j,k): return W+(j*5+k)*4
def vr(b,n=4): return f"v[{b}:{b+n-1}]"
def mfma(d,a_,b_,c=None):
    cs = "0" if c is None else vr(c,16)
    return f"v_mfma_f32_32x32x16_bf16 {vr(d,16)}, {vr(a_)}, {vr(b_)}, {cs}"
def chain(Dn,Ab,j):
    L=[mfma(Dn,Ab+0,Wf(j,0),None)]
    for k in range(1,4): L.append(mfma(Dn,Ab+4*k,Wf(j,k),Dn))
    L.append(mfma(Dn,Ab+16,Wf(j,4),Dn))
    return L
def qmfma(Dn): return mfma(Dn,AC,QB,Dn)
def interleave(base, ins, every, start=0):
    out=[];k=0
    for i,x in enumerate(base):
        if i>=start and (i-start)%every==0 and k<len(ins): out.append(ins[k]);k+=1
        out.append(x)
    out+=ins[k:]
    return out
uid=[0]
def stage(a, j, p, Dc, Dn, An, jn, QAn, variant, pre=[], mid=[], post=[]):
    for i in range(4): a(f"ds_read_b32 v{QB+i}, v{QAn+i} offset:{jn*128}")
    for x in pre: a(x)
    ex=[f"v_exp_f32 v{EE+i}, v{Dc+i}" for i in range(16)]
    for x in interleave(ex,chain(Dn,An,jn),3): a(x)
    for i in range(8): a(f"v_pk_fma_f32 {vr(EE+2*i,2)}, {vr(EE+2*i,2)}, s[{sSC}:{sSC+1}], s[{sSC}:{sSC+1}]")
    off=HSOFF+j*128
    uid[0]+=1; u=uid[0]
    if variant=="pair":
        for q in range(4): a(f"v_pk_mul_f32 {vr(PD+2*q,2)}, {vr(EE+4*q,2)}, {vr(EE+4*q+2,2)}")
        for q in range(4): a(f"v_pk_mul_f32 {vr(PN+2*q,2)}, {vr(Dc+4*q,2)}, {vr(EE+4*q+2,2)}")
        a(f"v_rcp_f32 v{PD}, v{PD}")
        a("s_waitcnt lgkmcnt(0)")
        a(qmfma(Dn))
        for x in mid: a(x)
        for i in range(1,8): a(f"v_rcp_f32 v{PD+i}, v{PD+i}")
        for q in range(4): a(f"v_pk_fma_f32 {vr(PN+2*q,2)}, {vr(Dc+4*q+2,2)}, {vr(EE+4*q,2)}, {vr(PN+2*q,2)}")
        a(f"s_cmp_eq_u32 s{sF[p]}, 0")
        a(f"s_cbranch_scc1 L_slowac_{u}")
        a(f"v_pk_mul_f32 {vr(ACC,2)}, {vr(PN,2)}, {vr(PD,2)}")
        for q in range(1,4): a(f"v_pk_fma_f32 {vr(ACC,2)}, {vr(PN+2*q,2)}, {vr(PD+2*q,2)}, {vr(ACC,2)}")
        a(f"ds_add_f32 v{QA[p]}, v{ACC} offset:{off}")
        a(f"ds_add_f32 v{QA[p]}, v{ACC+1} offset:{off}")
        a(f"s_branch L_acdone_{u}")
        a(f"L_slowac_{u}:")
        for q in range(4): a(f"v_pk_mul_f32 {vr(PN+2*q,2)}, {vr(PN+2*q,2)}, {vr(PD+2*q,2)}")
        for q in range(4):
            a(f"ds_add_f32 v{QA[p]+q}, v{PN+2*q} offset:{off}")
            a(f"ds_add_f32 v{QA[p]+q}, v{PN+2*q+1} offset:{off}")
        a(f"L_acdone_{u}:")
    else:
        a(f"v_rcp_f32 v{EE}, v{EE}")
        a("s_waitcnt lgkmcnt(0)")
        a(qmfma(Dn))
        for x in mid: a(x)
        for i in range(1,16): a(f"v_rcp_f32 v{EE+i}, v{EE+i}")
        for q in range(4): a(f"v_pk_mul_f32 {vr(PN+2*q,2)}, {vr(Dc+4*q,2)}, {vr(EE+4*q,2)}")
        for q in range(4): a(f"v_pk_fma_f32 {vr(PN+2*q,2)}, {vr(Dc+4*q+2,2)}, {vr(EE+4*q+2,2)}, {vr(PN+2*q,2)}")
        for q in range(4):
            a(f"ds_add_f32 v{QA[p]+q}, v{PN+2*q} offset:{off}")
            a(f"ds_add_f32 v{QA[p]+q}, v{PN+2*q+1} offset:{off}")
    for x in post: a(x)
def dma_x():
    L=[]
    for i in range(4):
        L.append(f"s_add_u32 m0, s{sXS}, {i*1040}")
        L.append("s_nop 0")
        L.append(f"buffer_load_dwordx4 v{XO+i}, s[{S_X}:{S_X+3}], 0 offen lds")
    return L
def dma_e(slot):
    return [f"s_add_u32 m0, s{sES}, {slot*1024}","s_nop 0",f"buffer_load_dwordx4 v{EO}, s[{S_E}:{S_E+3}], 0 offen nt lds"]
def read_A(p,slot):
    L=[f"ds_read_b128 {vr(A[p]+0)}, v{vAx01}", f"ds_read_b128 {vr(A[p]+4)}, v{vAx01} offset:32",
       f"ds_read_b128 {vr(A[p]+8)}, v{vAx23} offset:64", f"ds_read_b128 {vr(A[p]+12)}, v{vAx23} offset:96",
       f"ds_read_b128 {vr(A[p]+16)}, v{vAe} offset:{slot*1024}"]
    return L
def qa_calc(p):
    L=[f"v_add_u32 v{QA[p]+i}, v{QTV+i}, v{vQc}" for i in range(4)]
    L+=[f"v_cmp_eq_u32 vcc, v{QTV}, v{QTV+3}", "s_cmp_eq_u64 vcc, -1", f"s_cselect_b32 s{sF[p]}, 1, 0"]
    return L
def off_calc():
    return [f"v_add_u32 v{XO+i}, v{XO+i}, v{vXc}" for i in range(4)]+[f"v_add_u32 v{EO}, v{EO}, v{vEc}"]
def tile_body(a,p,variant):
    q=1-p
    pre0=[f"s_lshl_b32 s{st[0]}, s{sC2}, 7", f"s_lshl_b32 s{st[1]}, s{sC3}, 7", f"s_lshl_b32 s{st[2]}, s{sC1}, 5",
          f"v_add_u32 v{vT0}, s{st[0]}, v{vXLc}", f"v_add_u32 v{vT1}, s{st[1]}, v{vELc}", f"v_add_u32 v{vT2}, s{st[2]}, v{vQTc}",
          f"ds_read_b128 {vr(XO)}, v{vT0}", f"ds_read_b32 v{EO}, v{vT1}", f"ds_read_b128 {vr(QTV)}, v{vT2}",
          f"s_mov_b32 s{sC1}, s{sC2}", f"s_mov_b32 s{sC2}, s{sC3}", f"s_add_u32 s{sNX}, s{sNX}, 8",
          f"s_cmp_lt_u32 s{sNX}, s{sNT}", f"s_cselect_b32 s{sC3}, s{sNX}, {NT_SENT}"]
    stage(a,0,p,D[0],D[1],A[p],1,QA[p],variant,pre=pre0)
    pre1=["s_waitcnt vmcnt(1)"]+read_A(q,q)
    mid1=qa_calc(q)+off_calc()+dma_x()+dma_e(q)
    stage(a,1,p,D[1],D[0],A[p],2,QA[p],variant,pre=pre1,mid=mid1)
    stage(a,2,p,D[0],D[1],A[p],3,QA[p],variant)
    stage(a,3,p,D[1],D[0],A[q],0,QA[q],variant)
def main_loop(a,variant):
    tag=variant
    a(f"s_sub_u32 s{sCNT}, s{sNT}, s{sWV}")
    a(f"s_add_u32 s{sCNT}, s{sCNT}, 7")
    a(f"s_ashr_i32 s{sCNT}, s{sCNT}, 3")
    a(f"s_cmp_lt_i32 s{sCNT}, 1")
    a(f"s_cbranch_scc1 L_mdone_{tag}")
    def clampT(dst,add):
        a(f"s_add_u32 s{sNX}, s{sWV}, {add}")
        a(f"s_cmp_lt_u32 s{sNX}, s{sNT}")
        a(f"s_cselect_b32 s{dst}, s{sNX}, {NT_SENT}")
    t0=st[3]
    clampT(t0,0); clampT(sC1,8); clampT(sC2,16); clampT(sC3,24)
    a(f"s_lshl_b32 s{st[0]}, s{t0}, 7")
    a(f"v_add_u32 v{vT0}, s{st[0]}, v{vXLc}")
    a(f"v_add_u32 v{vT1}, s{st[0]}, v{vELc}")
    a(f"s_lshl_b32 s{st[2]}, s{t0}, 5")
    a(f"v_add_u32 v{vT2}, s{st[2]}, v{vQTc}")
    a(f"ds_read_b128 {vr(XO)}, v{vT0}")
    a(f"ds_read_b32 v{EO}, v{vT1}")
    a(f"ds_read_b128 {vr(QTV)}, v{vT2}")
    a(f"s_lshl_b32 s{st[0]}, s{sC1}, 7")
    a(f"v_add_u32 v{vT0}, s{st[0]}, v{vXLc}")
    a(f"v_add_u32 v{vT1}, s{st[0]}, v{vELc}")
    a("s_waitcnt lgkmcnt(0)")
    for x in off_calc(): a(x)
    for x in dma_e(0)+dma_x(): a(x)
    a(f"ds_read_b32 v{EO}, v{vT1}")
    a(f"ds_read_b128 {vr(XO)}, v{vT0}")
    for x in qa_calc(0): a(x)
    for i in range(4): a(f"ds_read_b32 v{QB+i}, v{QA[0]+i}")
    a("s_waitcnt lgkmcnt(0)")
    for x in off_calc(): a(x)
    for x in dma_e(1): a(x)
    a("s_waitcnt vmcnt(1)")
    for x in read_A(0,0): a(x)
    a(f"s_lshl_b32 s{st[1]}, s{sC2}, 7")
    a(f"v_add_u32 v{vT1}, s{st[1]}, v{vELc}")
    a(f"ds_read_b32 v{EO}, v{vT1}")
    a("s_waitcnt lgkmcnt(0)")
    a(f"v_add_u32 v{EO}, v{EO}, v{vEc}")
    for x in dma_x()+dma_e(0): a(x)
    for x in chain(D[0],A[0],0): a(x)
    a(qmfma(D[0]))
    a("s_nop 7"); a("s_nop 3")
    a(f"L_top_{tag}:")
    tile_body(a,0,variant)
    a(f"s_sub_u32 s{sCNT}, s{sCNT}, 1")
    a(f"s_cmp_eq_u32 s{sCNT}, 0")
    a(f"s_cbranch_scc1 L_mdone_{tag}")
    tile_body(a,1,variant)
    a(f"s_sub_u32 s{sCNT}, s{sCNT}, 1")
    a(f"s_cmp_lg_u32 s{sCNT}, 0")
    a(f"s_cbranch_scc1 L_top_{tag}")
    a(f"L_mdone_{tag}:")
def masked_fill(a, count, addr_v, data, offset, b128=True):
    if count>=512:
        a(f"ds_write_b128 v{addr_v}, {vr(data)} offset:{offset}"); return
    a(f"v_cmp_gt_u32 vcc, {count}, v0")
    a(f"s_and_saveexec_b64 s[{st[7]}:{st[8]}], vcc")
    a(f"ds_write_b128 v{addr_v}, {vr(data)} offset:{offset}")
    a(f"s_mov_b64 exec, s[{st[7]}:{st[8]}]")
def fill_region(a, start, nbytes, data):
    n=nbytes//16; assert nbytes%16==0
    o=start
    big = start+nbytes>65535
    if big:
        a(f"v_lshlrev_b32 v{vT2}, 4, v0")
        a(f"v_add_u32 v{vT2}, {start}, v{vT2}")
        o=0
    while n>0:
        masked_fill(a,min(n,512),vT2 if big else vT0,data,o); o+=512*16; n-=512
def init_batch(a):
    a(f"v_lshlrev_b32 v{vT0}, 4, v0")
    for i in range(4): a(f"v_mov_b32 v{PN+i}, {SENT:#x}")
    fill_region(a,XL,2*LCAP*4,PN)
    for i in range(4): a(f"v_mov_b32 v{PN+4+i}, {40*512}")
    fill_region(a,QT,LCAP,PN+4)
    for i in range(4): a(f"v_mov_b32 v{PD+4+i}, 0")
    fill_region(a,HIST,256,PD+4)
def gen_k2(dbg=None):
    a=Asm()
    R=D[0]; HD=PD; RANK=EE; EB=QA[0]
    a("s_cmp_ge_u32 s2, 256")
    a("s_cbranch_scc1 k2_end")
    a("s_load_dwordx16 s[48:63], s[0:1], 0")
    a("s_load_dwordx2 s[64:65], s[0:1], 64")
    a("s_load_dwordx2 s[66:67], s[0:1], 80")
    a("v_and_b32 v1, 63, v0")
    a("v_lshrrev_b32 v2, 6, v0")
    a("s_mul_i32 s43, s2, 625")
    a(f"v_readfirstlane_b32 s{sWV}, v2")
    a("s_add_u32 s44, s43, 640")
    a("s_add_u32 s43, s43, 15")
    a("s_lshr_b32 s43, s43, 4")
    a("s_lshr_b32 s44, s44, 4")
    a("s_sub_u32 s44, s44, s43")
    a(f"s_mov_b32 s{sSC}, 0x33800000")
    a(f"s_mov_b32 s{sSC+1}, 0x33800000")
    a(f"s_mov_b32 s{sSLOW}, 0")
    a(f"s_mov_b32 s{sSAFE}, 0")
    a(f"s_mul_i32 s{sXS}, s{sWV}, {XS_W}")
    a(f"s_add_u32 s{sXS}, s{sXS}, {XS}")
    a(f"s_lshl_b32 s{sES}, s{sWV}, 11")
    a(f"s_add_u32 s{sES}, s{sES}, {ES}")
    a("v_lshrrev_b32 v2, 3, v1")
    a("v_and_b32 v3, 7, v1")
    a("v_and_b32 v4, 31, v1")
    a("v_lshrrev_b32 v5, 5, v1")
    a(f"v_lshlrev_b32 v{vXLc}, 4, v2")
    a(f"v_add_u32 v{vXLc}, {XL}, v{vXLc}")
    a("v_lshrrev_b32 v6, 1, v1")
    a(f"v_lshlrev_b32 v{vELc}, 2, v6")
    a(f"v_add_u32 v{vELc}, {EL}, v{vELc}")
    a(f"v_lshlrev_b32 v{vQTc}, 4, v5")
    a(f"v_add_u32 v{vQTc}, {QT}, v{vQTc}")
    a("v_lshlrev_b32 v7, 1, v2")
    a("v_and_b32 v7, 4, v7")
    a("v_xor_b32 v7, v3, v7")
    a(f"v_lshlrev_b32 v{vXc}, 4, v7")
    a("v_lshrrev_b32 v7, 4, v1")
    a("v_xor_b32 v7, v1, v7")
    a("v_and_b32 v7, 1, v7")
    a(f"v_lshlrev_b32 v{vEc}, 4, v7")
    a("v_and_b32 v7, 3, v4")
    a("v_bfe_u32 v8, v4, 2, 1")
    a("v_lshrrev_b32 v9, 3, v4")
    a("v_lshl_add_u32 v10, v8, 2, v9")
    a("v_mul_u32_u24 v11, 1040, v7")
    a("v_lshl_add_u32 v11, v10, 7, v11")
    a("v_lshl_add_u32 v11, v5, 4, v11")
    a(f"v_add_u32 v11, s{sXS}, v11")
    a("v_bfe_u32 v12, v10, 1, 1")
    a("v_lshlrev_b32 v12, 6, v12")
    a(f"v_add_u32 v{vAx01}, v11, v12")
    a(f"v_sub_u32 v{vAx23}, v11, v12")
    a("v_lshl_add_u32 v11, v10, 2, v7")
    a("v_bfe_u32 v12, v11, 3, 1")
    a("v_xor_b32 v12, v5, v12")
    a("v_lshlrev_b32 v12, 4, v12")
    a("v_lshl_add_u32 v12, v11, 5, v12")
    a(f"v_add_u32 v{vAe}, s{sES}, v12")
    a(f"v_lshlrev_b32 v{vQc}, 2, v4")
    a(f"v_add_u32 v{vQc}, {QP}, v{vQc}")
    a("v_lshlrev_b32 v12, 2, v5")
    a("v_sub_u32 v12, v10, v12")
    a("v_mov_b32 v13, 0x3f803f80")
    for r in range(4):
        a(f"v_cmp_eq_u32 vcc, {r}, v12")
        a("s_nop 1")
        a(f"v_cndmask_b32 v{AC+r}, 0, v13, vcc")
    a("s_waitcnt lgkmcnt(0)")
    srd(a,S_X,48,N*128); srd(a,S_E,50,E*32); srd(a,S_SRC,52,E*4); srd(a,S_DST,54,E*4)
    srd(a,S_B1,58,256); srd(a,S_B2,62,128); srd(a,S_O,64,N*128); srd(a,S_T,66,TABLE_BYTES); srd(a,S_W,66,WF_BYTES,WF_OFF)
    a(f"s_lshl_b32 s{st[0]}, s2, 15")
    a(f"s_lshl_b32 s{st[1]}, s{sWV}, 12")
    a(f"s_add_u32 s{st[0]}, s{st[0]}, s{st[1]}")
    a("v_lshlrev_b32 v14, 4, v1")
    a("v_lshlrev_b32 v15, 7, v2")
    for k in range(4): a(f"buffer_load_dwordx4 {vr(R+4*k)}, v14, s[{S_T}:{S_T+3}], s{st[0]} offen offset:{k*1024}")
    for k in range(4): a(f"buffer_load_dword v{HD+k}, v15, s[{S_T}:{S_T+3}], s{st[0]} offen offset:{k*1024}")
    a(f"s_lshr_b32 s{st[1]}, s{sWV}, 2")
    a(f"s_and_b32 s{st[2]}, s{sWV}, 3")
    a(f"s_lshl_b32 s{st[3]}, s{st[1]}, 5")
    a(f"s_add_u32 s{st[3]}, s{st[3]}, s{sNB}")
    a(f"v_add_u32 v12, s{st[3]}, v4")
    a("v_lshlrev_b32 v12, 7, v12")
    a("v_lshl_add_u32 v12, v5, 4, v12")
    for ks in range(4): a(f"buffer_load_dwordx4 {vr(A[0]+4*ks)}, v12, s[{S_X}:{S_X+3}], 0 offen offset:{ks*32}")
    a(f"s_lshl_b32 s{st[4]}, s{st[2]}, 12")
    a(f"s_add_u32 s{st[4]}, s{st[4]}, {20*1024}")
    for ks in range(4): a(f"buffer_load_dwordx4 {vr(A[1]+4*ks)}, v14, s[{S_W}:{S_W+3}], s{st[4]} offen offset:{ks*1024}")
    a(f"s_lshl_b32 s{st[5]}, s{st[2]}, 6")
    a(f"v_lshl_add_u32 v13, v4, 1, s{st[5]}")
    a(f"buffer_load_ushort v{PD+4}, v13, s[{S_B1}:{S_B1+3}], 0 offen")
    for g in range(5):
        a(f"s_mov_b32 s{st[6]}, {g*4096}")
        for k in range(4): a(f"buffer_load_dwordx4 {vr(W+(g*4+k)*4)}, v14, s[{S_W}:{S_W+3}], s{st[6]} offen offset:{k*1024}")
    init_batch_regs_note=None
    a(f"v_lshlrev_b32 v{vT0}, 4, v0")
    for i in range(4): a(f"v_mov_b32 v{PN+i}, 0")
    fill_region(a,HS,41*512,PN)
    fill_region(a,QP+40*512,512,PN)
    fill_region(a,DEG,256+256+64,PN)
    for i in range(4): a(f"v_mov_b32 v{PN+i}, {SENT:#x}")
    fill_region(a,XL,2*LCAP*4,PN)
    for i in range(4): a(f"v_mov_b32 v{PN+4+i}, {40*512}")
    fill_region(a,QT,LCAP,PN+4)
    for i in range(4): a(f"v_mov_b32 v{XO+i}, 0")
    fill_region(a,HIST,256,XO)
    a(f"s_lshl_b32 s{st[0]}, s{sWV}, 5")
    a(f"v_add_u32 v2, s{st[0]}, v2")
    a("v_mul_u32_u24 v2, 2500, v2")
    for k in range(4): a(f"v_add_u32 v{EB+k}, {k*8*2500}, v2")
    for i in range(4):
        a(f"v_lshlrev_b32 v{XO+i}, 2, v3")
        a(f"v_add_u32 v{XO+i}, {i-1}, v{XO+i}")
    a("s_waitcnt lgkmcnt(0)")
    a("s_barrier")
    a("s_waitcnt vmcnt(20)")
    QD=D[1]
    a(mfma(QD,A[0],A[1],None))
    for ks in range(1,4): a(mfma(QD,A[0]+4*ks,A[1]+4*ks,QD))
    for k in range(4):
        for i in range(4):
            e=4*k+i
            a(f"v_cmp_lt_u32 s[{sMK+2*e}:{sMK+2*e+1}], v{XO+i}, v{HD+k}")
    a(f"v_max_u32 v{vT0}, v{HD}, v{HD+1}")
    a(f"v_max3_u32 v{vT0}, v{HD+2}, v{HD+3}, v{vT0}")
    a(f"v_cmp_lt_u32 vcc, 31, v{vT0}")
    a("s_cbranch_vccz k2_noovf")
    a(f"v_mov_b32 v{vT0}, {FLAG}")
    a(f"v_mov_b32 v{vT1}, 1")
    a(f"ds_write_b32 v{vT0}, v{vT1}")
    a("k2_noovf:")
    a(f"v_lshlrev_b32 v{PD+4}, 16, v{PD+4}")
    a(f"s_mov_b32 s{st[5]}, {f2u(NEG_LOG2E):#x}")
    a(f"s_lshr_b32 s{st[1]}, s{sWV}, 2")
    a(f"s_and_b32 s{st[2]}, s{sWV}, 3")
    a("v_lshrrev_b32 v5, 5, v1")
    a("v_and_b32 v4, 31, v1")
    a(f"s_lshl_b32 s{st[3]}, s{st[1]}, 14")
    a(f"s_lshl_b32 s{st[4]}, s{st[2]}, 7")
    a(f"s_add_u32 s{st[3]}, s{st[3]}, s{st[4]}")
    a(f"s_add_u32 s{st[3]}, s{st[3]}, {QP}")
    a("v_lshlrev_b32 v12, 11, v5")
    a("v_lshl_add_u32 v12, v4, 2, v12")
    a(f"v_add_u32 v12, s{st[3]}, v12")
    nrows=16
    for r in range(16):
        a(f"v_add_f32 v{QD+r}, v{QD+r}, v{PD+4}")
        a(f"v_mul_f32 v{QD+r}, s{st[5]}, v{QD+r}")
    for r in range(16):
        t=PN+(r&3)
        a(f"v_cvt_pk_bf16_f32 v{t}, v{QD+r}, v{QD+r}")
        a(f"v_lshlrev_b32 v{vT1}, 16, v{t}")
        a(f"v_sub_f32 v{vT1}, v{QD+r}, v{vT1}")
        a(f"v_cvt_pk_bf16_f32 v{t}, v{QD+r}, v{vT1}")
        if r==4:
            a(f"s_cmp_eq_u32 s{st[1]}, 0")
            a("s_cbranch_scc0 k2_qdone")
        a(f"ds_write_b32 v12, v{t} offset:{((r>>2)*8+(r&3))*512}")
    a("k2_qdone:")
    a("k2_batch:")
    a(f"s_mov_b32 s{st[0]}, {HIST}")
    for e in range(16):
        a(f"v_lshrrev_b32 v{vT1}, 26, v{R+e}")
        a(f"v_lshl_add_u32 v{RANK+e}, v{vT1}, 2, s{st[0]}")
    a(f"v_mov_b32 v{vT1}, 1")
    for e in range(16):
        a(f"s_mov_b64 exec, s[{sMK+2*e}:{sMK+2*e+1}]")
        a(f"ds_add_rtn_u32 v{RANK+e}, v{RANK+e}, v{vT1}")
    a("s_mov_b64 exec, -1")
    a("s_waitcnt lgkmcnt(0)")
    a("s_barrier")
    a(f"v_lshlrev_b32 v{vT0}, 2, v1")
    a(f"ds_read_b32 v{PN}, v{vT0} offset:{HIST}")
    a(f"v_mov_b32 v{vT1}, {FLAG}")
    a(f"ds_read_b32 v{PN+1}, v{vT1}")
    a("s_waitcnt lgkmcnt(0)")
    a(f"v_add_u32 v{PN+2}, 3, v{PN}")
    a(f"v_and_b32 v{PN+2}, -4, v{PN+2}")
    a(f"v_mov_b32 v{PN+3}, v{PN+2}")
    for sh in ("row_shr:1 row_mask:0xf","row_shr:2 row_mask:0xf","row_shr:4 row_mask:0xf","row_shr:8 row_mask:0xf","row_bcast:15 row_mask:0xa","row_bcast:31 row_mask:0xc"):
        a("s_nop 1")
        a(f"v_add_u32_dpp v{PN+3}, v{PN+3}, v{PN+3} {sh} bank_mask:0xf")
    a("s_nop 0")
    a(f"v_readlane_b32 s{sTOT}, v{PN+3}, 63")
    a(f"v_readfirstlane_b32 s{st[0]}, v{PN+1}")
    a(f"v_sub_u32 v{PN+3}, v{PN+3}, v{PN+2}")
    a(f"s_cmp_lg_u32 s{sSLOW}, 0")
    a("s_cbranch_scc1 k2_okcap")
    a(f"s_cmp_gt_u32 s{sTOT}, {NT_SENT*32}")
    a(f"s_cselect_b32 s{st[1]}, 1, 0")
    a(f"s_or_b32 s{st[0]}, s{st[0]}, s{st[1]}")
    a(f"s_cmp_lg_u32 s{st[0]}, 0")
    a("s_cbranch_scc1 k2_goslow")
    a("k2_okcap:")
    a(f"s_add_u32 s{sNT}, s{sTOT}, 31")
    a(f"s_lshr_b32 s{sNT}, s{sNT}, 5")
    a(f"s_cmp_eq_u32 s{sWV}, 0")
    a("s_cbranch_scc0 k2_nodeg")
    a(f"v_sub_u32 v{PN+2}, v{PN+2}, v{PN}")
    a(f"ds_add_u32 v{vT0}, v{PN} offset:{DEG}")
    a(f"ds_add_u32 v{vT0}, v{PN+2} offset:{PADC}")
    a("k2_nodeg:")
    BS=A[0]
    for e in range(16):
        a(f"v_lshrrev_b32 v{A[1]+e}, 26, v{R+e}")
        a(f"v_lshlrev_b32 v{vT1}, 2, v{A[1]+e}")
        a(f"ds_bpermute_b32 v{BS+e}, v{vT1}, v{PN+3}")
    a(f"s_movk_i32 s{st[0]}, 0x3fff")
    a("s_waitcnt lgkmcnt(0)")
    for e in range(16):
        k=e>>2
        a(f"v_add_u32 v{BS+e}, v{BS+e}, v{RANK+e}")
        a(f"v_lshlrev_b32 v{A[1]+e}, 9, v{A[1]+e}")
        a(f"v_bfe_u32 v{RANK+e}, v{R+e}, 14, 12")
        a(f"v_add_u32 v{RANK+e}, v{RANK+e}, v{EB+k}")
        a(f"v_lshlrev_b32 v{RANK+e}, 5, v{RANK+e}")
        a(f"v_and_b32 v{R+e}, s{st[0]}, v{R+e}")
        a(f"v_lshlrev_b32 v{R+e}, 7, v{R+e}")
    for e in range(16):
        a(f"v_and_b32 v{vT1}, -4, v{BS+e}")
        a(f"v_lshlrev_b32 v{BS+e}, 2, v{BS+e}")
        a(f"s_mov_b64 exec, s[{sMK+2*e}:{sMK+2*e+1}]")
        a(f"ds_write_b32 v{BS+e}, v{R+e} offset:{XL}")
        a(f"ds_write_b32 v{BS+e}, v{RANK+e} offset:{EL}")
        a(f"ds_write_b32 v{vT1}, v{A[1]+e} offset:{QT}")
        a("s_mov_b64 exec, -1")
    a("s_waitcnt vmcnt(0) lgkmcnt(0)")
    a("s_barrier")
    if dbg=="lists":
        dbg_dump_lds(a)
    a("k2_main:")
    a(f"s_cmp_lg_u32 s{sSAFE}, 0")
    a("s_cbranch_scc1 k2_main_safe")
    main_loop(a,"pair")
    a("s_branch k2_mjoin")
    a("k2_main_safe:")
    main_loop(a,"safe")
    a("k2_mjoin:")
    a("s_waitcnt vmcnt(0) lgkmcnt(0)")
    a(f"s_cmp_eq_u32 s{sSLOW}, 0")
    a("s_cbranch_scc1 k2_epi")
    a("s_barrier")
    a(f"s_add_u32 s{sB0}, s{sB0}, 2048")
    a(f"s_cmp_lt_u32 s{sB0}, {E}")
    a("s_cbranch_scc1 k2_slowfetch")
    a("s_branch k2_epi2")
    a("k2_goslow:")
    a(f"s_mov_b32 s{sSLOW}, 1")
    a(f"s_mov_b32 s{sSAFE}, 1")
    a(f"s_mov_b32 s{sB0}, 0")
    a("s_barrier")
    a("k2_slowfetch:")
    a(f"s_lshl_b32 s{st[0]}, s{sB0}, 2")
    a(f"v_lshlrev_b32 v{vT1}, 4, v0")
    a(f"v_add_u32 v{vT1}, s{st[0]}, v{vT1}")
    a(f"buffer_load_dwordx4 {vr(A[0])}, v{vT1}, s[{S_DST}:{S_DST+3}], 0 offen")
    a(f"buffer_load_dwordx4 {vr(A[0]+4)}, v{vT1}, s[{S_SRC}:{S_SRC+3}], 0 offen")
    init_batch(a)
    a(f"v_lshlrev_b32 v{EB}, 2, v0")
    a(f"v_add_u32 v{EB}, s{sB0}, v{EB}")
    a(f"s_mov_b32 s{st[0]}, {MAGIC}")
    a(f"s_mov_b32 s{st[1]}, {E}")
    a("s_waitcnt vmcnt(0)")
    for i in range(4):
        a(f"v_mul_hi_u32 v{A[0]+8+i}, v{A[0]+i}, s{st[0]}")
        a(f"v_subrev_u32 v{A[0]+i}, s{sNB}, v{A[0]+i}")
        a(f"v_lshlrev_b32 v{A[0]+i}, 26, v{A[0]+i}")
        a(f"v_or_b32 v{R+i}, v{A[0]+i}, v{A[0]+4+i}")
        if i: a(f"v_or_b32 v{R+i}, {i<<14}, v{R+i}")
    a(f"v_cmp_gt_u32 vcc, s{st[1]}, v{EB}")
    for i in range(4):
        a(f"v_cmp_eq_u32 s[{sMK+2*i}:{sMK+2*i+1}], s2, v{A[0]+8+i}")
        a(f"s_and_b64 s[{sMK+2*i}:{sMK+2*i+1}], s[{sMK+2*i}:{sMK+2*i+1}], vcc")
    for e in range(4,16): a(f"s_mov_b64 s[{sMK+2*e}:{sMK+2*e+1}], 0")
    a("s_waitcnt lgkmcnt(0)")
    a("s_barrier")
    a("s_branch k2_batch")
    a("k2_epi:")
    a("s_barrier")
    a("k2_epi2:")
    a(f"s_and_b32 s{st[0]}, s{sWV}, 1")
    a(f"s_lshl_b32 s{st[1]}, s{st[0]}, 13")
    a(f"s_add_u32 s{st[1]}, s{st[1]}, {36*1024}")
    a(f"s_add_u32 s{st[2]}, s{st[1]}, 4096")
    a("v_lshlrev_b32 v14, 4, v1")
    for ks in range(8):
        a(f"buffer_load_dwordx4 {vr(A[0]+4*ks)}, v14, s[{S_W}:{S_W+3}], s{st[1+(ks>>2)]} offen offset:{(ks&3)*1024}")
    a("v_lshrrev_b32 v5, 5, v1")
    a(f"s_lshl_b32 s{st[3]}, s{st[0]}, 6")
    a(f"v_lshl_add_u32 v13, v5, 3, s{st[3]}")
    for q in range(4): a(f"buffer_load_dwordx2 {vr(QA[0]+2*q,2)}, v13, s[{S_B2}:{S_B2+3}], 0 offen offset:{q*16}")
    a(f"v_lshlrev_b32 v2, 3, v1")
    a(f"s_lshl_b32 s{st[3]}, s{sWV}, 9")
    a(f"s_add_u32 s{st[3]}, s{st[3]}, {QP}")
    a(f"v_add_u32 v2, s{st[3]}, v2")
    a(f"s_lshl_b32 s{st[3]}, s{sWV}, 2")
    a(f"v_mov_b32 v3, s{st[3]}")
    a(f"s_mul_i32 s{st[3]}, s{sWV}, 272")
    a(f"v_lshl_add_u32 v4, v1, 2, s{st[3]}")
    for r in range(5):
        a(f"ds_read_b64 {vr(D[0]+2*r,2)}, v2 offset:{HSOFF+r*8*512}")
        a(f"ds_read_b64 {vr(D[1]+2*r,2)}, v2 offset:{r*8*512}")
        a(f"ds_read_b32 v{EE+r}, v3 offset:{PADC+r*32}")
    a(f"s_mov_b32 s{st[4]}, {f2u(-0.6931471805599453*2.0**-24):#x}")
    a(f"s_mov_b32 s{st[5]}, 0xffff0000")
    a(f"s_movk_i32 s{st[6]}, 0x207")
    a(f"s_mov_b64 s[{st[7]}:{st[8]}], 0")
    a("s_waitcnt lgkmcnt(0)")
    for r in range(5):
        a(f"v_cvt_f32_u32 v{EE+r}, v{EE+r}")
        for c in range(2):
            hv=D[0]+2*r+c; qv=D[1]+2*r+c
            a(f"v_cmp_class_f32 vcc, v{hv}, s{st[6]}") if False else None
            a(f"v_lshlrev_b32 v{PN}, 16, v{qv}")
            a(f"v_and_b32 v{PN+1}, s{st[5]}, v{qv}")
            a(f"v_add_f32 v{PN}, v{PN}, v{PN+1}")
            a(f"v_exp_f32 v{PN+1}, v{PN}")
            a("s_nop 0")
            a(f"v_fma_f32 v{PN+1}, v{PN+1}, s{sSC}, s{sSC}")
            a(f"v_rcp_f32 v{PN+1}, v{PN+1}")
            a("s_nop 0")
            a(f"v_mul_f32 v{PN+1}, v{PN}, v{PN+1}")
            a(f"v_fma_f32 v{hv}, -v{PN+1}, v{EE+r}, v{hv}")
            a(f"v_mov_b32 v{PN+2}, s{st[6]}")
            a(f"v_cmp_class_f32 vcc, v{hv}, v{PN+2}")
            a(f"s_or_b64 s[{st[7]}:{st[8]}], s[{st[7]}:{st[8]}], vcc")
            a(f"v_mul_f32 v{hv}, s{st[4]}, v{hv}")
        h0=D[0]+2*r
        a(f"v_cvt_pk_bf16_f32 v{PN+4}, v{h0}, v{h0+1}")
        a(f"v_lshlrev_b32 v{PN+5}, 16, v{PN+4}")
        a(f"v_and_b32 v{PN+6}, s{st[5]}, v{PN+4}")
        a(f"v_sub_f32 v{PN+5}, v{h0}, v{PN+5}")
        a(f"v_sub_f32 v{PN+6}, v{h0+1}, v{PN+6}")
        a(f"v_cvt_pk_bf16_f32 v{PN+5}, v{PN+5}, v{PN+6}")
        a(f"v_add_u32 v{PN+7}, {HH+r*8*272}, v4")
        a(f"ds_write_b32 v{PN+7}, v{PN+4}")
        a(f"ds_write_b32 v{PN+7}, v{PN+5} offset:{HL-HH}")
    a(f"s_cmp_eq_u64 s[{st[7]}:{st[8]}], 0")
    a("s_cbranch_scc1 k2_fin")
    a(f"v_mov_b32 v{vT0}, {FLAG+4}")
    a(f"v_mov_b32 v{vT1}, 1")
    a(f"ds_write_b32 v{vT0}, v{vT1}")
    a("k2_fin:")
    a("s_waitcnt lgkmcnt(0)")
    a("s_barrier")
    a(f"v_mov_b32 v{vT0}, {FLAG+4}")
    a(f"ds_read_b32 v{vT1}, v{vT0}")
    a("s_waitcnt lgkmcnt(0)")
    a(f"v_readfirstlane_b32 s{st[0]}, v{vT1}")
    a(f"s_andn2_b32 s{st[0]}, s{st[0]}, s{sSAFE}")
    a(f"s_cmp_lg_u32 s{st[0]}, 0")
    a("s_cbranch_scc0 k2_final")
    a(f"s_mov_b32 s{sSAFE}, 1")
    a("s_waitcnt vmcnt(0)")
    a(f"v_lshlrev_b32 v{vT0}, 4, v0")
    for i in range(4): a(f"v_mov_b32 v{PN+i}, 0")
    fill_region(a,HS,41*512,PN)
    a("s_waitcnt lgkmcnt(0)")
    a("s_barrier")
    a("s_branch k2_main")
    a("k2_final:")
    a(f"s_cmp_ge_u32 s{sWV}, 4")
    a("s_cbranch_scc1 k2_end")
    a(f"s_lshr_b32 s{st[1]}, s{sWV}, 1")
    a("v_and_b32 v4, 31, v1")
    a("v_lshrrev_b32 v5, 5, v1")
    a(f"s_lshl_b32 s{st[2]}, s{st[1]}, 5")
    a(f"v_add_u32 v6, s{st[2]}, v4")
    a("v_mul_u32_u24 v7, 272, v6")
    a("v_lshl_add_u32 v7, v5, 4, v7")
    a(f"v_add_u32 v7, {HH}, v7")
    for ks in range(8):
        a(f"ds_read_b128 {vr(W+8*ks)}, v7 offset:{ks*32}")
        a(f"ds_read_b128 {vr(W+8*ks+4)}, v7 offset:{ks*32+HL-HH}")
    a("v_lshlrev_b32 v8, 2, v6")
    a(f"ds_read_b32 v9, v8 offset:{DEG}")
    a("s_waitcnt vmcnt(0) lgkmcnt(0)")
    OD=D[0]
    for ks in range(8):
        a(mfma(OD,A[0]+4*ks,W+8*ks,None if ks==0 else OD))
        a(mfma(OD,A[0]+4*ks,W+8*ks+4,OD))
    a("v_cvt_f32_u32 v9, v9")
    a(f"s_mov_b32 s{st[5]}, 0xffff0000")
    for q in range(4):
        for c in range(2):
            a(f"v_lshlrev_b32 v{EE+4*q+2*c}, 16, v{QA[0]+2*q+c}")
            a(f"v_and_b32 v{EE+4*q+2*c+1}, s{st[5]}, v{QA[0]+2*q+c}")
    a(f"s_and_b32 s{st[0]}, s{sWV}, 1")
    a(f"s_lshl_b32 s{st[0]}, s{st[0]}, 6")
    a(f"v_add_u32 v10, s{sNB}, v6")
    a("v_lshlrev_b32 v10, 7, v10")
    a("v_lshl_add_u32 v10, v5, 3, v10")
    a(f"v_add_u32 v10, s{st[0]}, v10")
    a(f"v_cmp_gt_u32 vcc, s{sNN}, v6")
    a("s_nop 3")
    for r in range(16): a(f"v_fma_f32 v{OD+r}, v9, v{EE+r}, v{OD+r}")
    for q in range(4):
        a(f"v_cvt_pk_bf16_f32 v{PN+2*q}, v{OD+4*q}, v{OD+4*q+1}")
        a(f"v_cvt_pk_bf16_f32 v{PN+2*q+1}, v{OD+4*q+2}, v{OD+4*q+3}")
    a(f"s_and_saveexec_b64 s[{st[7]}:{st[8]}], vcc")
    a("s_cbranch_execz k2_end")
    for q in range(4): a(f"buffer_store_dwordx2 {vr(PN+2*q,2)}, v10, s[{S_O}:{S_O+3}], 0 offen offset:{q*16}")
    a("k2_end:")
    a("s_endpgm")
    return a

def kernel_text(name, body, vgpr, sgpr):
    return f""".globl {name}
.p2align 8
.type {name},@function
{name}:
{body.text()}"""
def desc(name,vgpr,sgpr):
    acc=(vgpr+3)//4*4
    return f""".p2align 6
.amdhsa_kernel {name}
  .amdhsa_next_free_vgpr {vgpr}
  .amdhsa_next_free_sgpr {sgpr}
  .amdhsa_accum_offset {acc}
  .amdhsa_group_segment_fixed_size 0
  .amdhsa_kernarg_size 88
  .amdhsa_user_sgpr_count 2
  .amdhsa_user_sgpr_kernarg_segment_ptr 1
  .amdhsa_system_sgpr_workgroup_id_x 1
  .amdhsa_float_denorm_mode_32 3
.end_amdhsa_kernel
"""
HEADER=open(os.path.join(os.path.dirname(os.path.abspath(__file__)),"header.txt")).read()
def build(path, dbg=None):
    k1=gen_k1(); k2=gen_k2(dbg)
    errs=check(k1.lines,"k1")+check(k2.lines,"k2")
    for e in errs: print("HAZARD",e)
    s=HEADER
    s+=f"; @launch kernel=mpnn_bin_kernel grid=(256,1,1) block=(704,1,1) lds={K1_LDS}\n"
    s+=f"; @launch kernel=gather_scatter__edge_featured_mpnn_mpnn__graph_kernel grid=(256,1,1) block=(512,1,1) lds={K2_LDS}\n"
    s+='.amdgcn_target "amdgcn-amd-amdhsa--gfx950"\n.text\n'
    s+=kernel_text("mpnn_bin_kernel",k1,40,48)
    s+=kernel_text("gather_scatter__edge_featured_mpnn_mpnn__graph_kernel",k2,K2_VGPR,100)
    s+='.section .rodata,"a"\n'
    s+=desc("mpnn_bin_kernel",40,48)+desc("gather_scatter__edge_featured_mpnn_mpnn__graph_kernel",K2_VGPR,100)
    open(path,"w").write(s)
    print("wrote",path,len(s),"bytes; K2 LDS",K2_LDS, "hazards",len(errs))
if __name__=="__main__":
    out=sys.argv[1] if len(sys.argv)>1 else f"cdna_kernels/{NAME}.s"
    build(out)
```

```python
import sys
sys.path.insert(0,"gen")
from genlib import *
import k2
from k2 import *
ks=[]; args=[]
def timed(body_init, loop_body, iters):
    return f"""
s_load_dwordx4 s[60:63], s[0:1], 0
s_waitcnt lgkmcnt(0)
v_and_b32 v1, 63, v0
v_lshrrev_b32 v2, 6, v0
s_nop 0
v_readfirstlane_b32 s20, v2
{body_init}
s_barrier
s_memtime s[64:65]
s_waitcnt lgkmcnt(0)
s_mov_b32 s68, {iters}
1:
{loop_body}
s_sub_u32 s68, s68, 1
s_cmp_lg_u32 s68, 0
s_cbranch_scc1 1b
s_waitcnt vmcnt(0) lgkmcnt(0)
s_memtime s[66:67]
s_waitcnt lgkmcnt(0)
s_sub_u32 s66, s66, s64
s_subb_u32 s67, s67, s65
s_lshl_b32 s69, s2, 4
s_add_u32 s69, s69, s20
s_lshl_b32 s69, s69, 3
v_mov_b32 v2, s66
v_mov_b32 v3, s67
v_mov_b32 v4, s69
v_cmp_eq_u32 vcc, 0, v1
s_and_saveexec_b64 s[70:71], vcc
global_store_dwordx2 v4, v[2:3], s[60:61]
s_waitcnt vmcnt(0)
"""
def init():
    s=""
    for i in range(8,254): s+=f"v_mov_b32 v{i}, 0.5\n"
    s+=f"""
s_mov_b32 s{S_X}, s62
s_and_b32 s{S_X+1}, s63, 0xffff
s_mov_b32 s{S_X+2}, 0x4000000
s_mov_b32 s{S_X+3}, 0x20000
s_mov_b32 s{S_E}, s62
s_and_b32 s{S_E+1}, s63, 0xffff
s_mov_b32 s{S_E+2}, 0x4000000
s_mov_b32 s{S_E+3}, 0x20000
s_mov_b32 s{sSC}, 0x33800000
s_mov_b32 s{sSC+1}, 0x33800000
s_mul_i32 s{sXS}, s20, {XS_W}
s_add_u32 s{sXS}, s{sXS}, {XS}
s_lshl_b32 s{sES}, s20, 11
s_add_u32 s{sES}, s{sES}, {ES}
s_mov_b32 s{sME}, s{sES}
s_mov_b32 s{sCNT}, 1000000
v_lshlrev_b32 v{vXLa}, 4, v1
v_lshlrev_b32 v{vELa}, 2, v1
v_lshlrev_b32 v{vQTa}, 4, v1
v_mov_b32 v{vXc}, 0
v_mov_b32 v{vEc}, 0
v_lshlrev_b32 v{vAx01}, 4, v1
v_add_u32 v{vAx01}, s{sXS}, v{vAx01}
v_mov_b32 v{vAx23}, v{vAx01}
v_lshlrev_b32 v{vAe}, 4, v1
v_add_u32 v{vAe}, s{sES}, v{vAe}
v_lshlrev_b32 v{vQc}, 2, v1
v_lshlrev_b32 v{vSegB}, 3, v1
v_add_u32 v{vSegB}, {SEG}, v{vSegB}
v_mov_b32 v{vPN}, 0
v_mov_b32 v{vPA}, v{vSegB}
v_mov_b32 v2, 0
v_mov_b32 v3, 0
v_mov_b32 v4, 0
v_mov_b32 v5, 0
v_lshlrev_b32 v6, 4, v0
ds_write_b128 v6, v[2:5]
ds_write_b128 v6, v[2:5] offset:8192
ds_write_b128 v6, v[2:5] offset:16384
ds_write_b128 v6, v[2:5] offset:24576
s_waitcnt lgkmcnt(0)
"""
    return s
def fix(L):
    return L
def variant(name, L, iters=60, blks=(256,512)):
    body="\n".join(L)+"\n"
    ks.append(kernel(name, timed(init(), body, iters), vgpr=256, sgpr=102))
    for b in blks: args.append(f"{name}:256:{b}:{K2_LDS}")
F=tile("F","pair"); S=tile("S","pair")
def rm(L,pred): return [l for l in L if not pred(l)]
isds=lambda l:l.startswith("ds_"); isdma=lambda l:l.endswith(" lds"); ism0=lambda l:("m0" in l) or l=="s_nop 0"
issalu=lambda l:l.startswith("s_") and not l.startswith("s_waitcnt") and not l.startswith("s_nop")
iswait=lambda l:l.startswith("s_waitcnt")
if __name__=="__main__":
    variant("F_all",F)
    variant("F_nodma",rm(F,isdma))
    variant("F_nodma_nom0",rm(F,lambda l:isdma(l) or ism0(l)))
    variant("F_nomem",rm(F,lambda l:isdma(l) or ism0(l) or isds(l)))
    variant("F_nomem_nosalu",rm(F,lambda l:isdma(l) or ism0(l) or isds(l) or issalu(l)))
    variant("F_valuonly",rm(F,lambda l:isdma(l) or ism0(l) or isds(l) or issalu(l) or iswait(l) or l.startswith("v_add_u32") or l.startswith("v_xor") or l.startswith("v_cmp")))
    variant("S_all",S)
    variant("S_nodma",rm(S,lambda l:isdma(l) or ism0(l)))
    build("tile.s", ks)
    open("tile.args","w").write(" ".join(args))
```

```python
import sys, os
OPT=set(os.environ.get('OPT','').split(','))
from asmlib import Asm, check
NAME="gather_scatter__edge_featured_mpnn_mpnn__graph"
N=10000; E=640000; NB=256; CH=2500
MAGIC=109951163
TABLE_BYTES=NB*NB*128
WF_OFF=TABLE_BYTES
WF_BYTES=52*1024
NEG_LOG2E=-1.4426950408889634
import struct
def f2u(x): return struct.unpack("<I",struct.pack("<f",x))[0]

def srd(a, base, ptr, nbytes, add=0):
    if add:
        a(f"s_add_u32 s{base}, s{ptr}, {add}")
        a(f"s_addc_u32 s{base+1}, s{ptr+1}, 0")
        a(f"s_and_b32 s{base+1}, s{base+1}, 0xffff")
    else:
        a(f"s_mov_b32 s{base}, s{ptr}")
        a(f"s_and_b32 s{base+1}, s{ptr+1}, 0xffff")
    a(f"s_mov_b32 s{base+2}, {nbytes}")
    a(f"s_mov_b32 s{base+3}, 0x20000")

def kernel_text(name, body):
    return f""".globl {name}
.p2align 8
.type {name},@function
{name}:
{body.text()}"""
def desc(name,vgpr,sgpr):
    acc=(vgpr+3)//4*4
    return f""".p2align 6
.amdhsa_kernel {name}
  .amdhsa_next_free_vgpr {vgpr}
  .amdhsa_next_free_sgpr {sgpr}
  .amdhsa_accum_offset {acc}
  .amdhsa_group_segment_fixed_size 0
  .amdhsa_kernarg_size 88
  .amdhsa_user_sgpr_count 2
  .amdhsa_user_sgpr_kernarg_segment_ptr 1
  .amdhsa_system_sgpr_workgroup_id_x 1
  .amdhsa_float_denorm_mode_32 3
.end_amdhsa_kernel
"""
def vr(b,n=4): return f"v[{b}:{b+n-1}]"
def interleave(base, ins, every, start=0):
    out=[];k=0
    for i,x in enumerate(base):
        if i>=start and (i-start)%every==0 and k<len(ins): out.append(ins[k]);k+=1
        out.append(x)
    out+=ins[k:]
    return out
def weave(main, side, first=0, last=None):
    if not side: return list(main)
    last=len(main) if last is None else last
    n=len(side); span=last-first
    pos=[first+(k*span)//n for k in range(n)]
    out=[];k=0
    for i,x in enumerate(main):
        while k<n and pos[k]==i:
            it=side[k]; out+= it if isinstance(it,list) else [it]; k+=1
        out.append(x)
    while k<n:
        it=side[k]; out+= it if isinstance(it,list) else [it]; k+=1
    return out
```

```python
from common import *
KNAME="gather_scatter__edge_featured_mpnn_mpnn__graph_kernel"
LCAP=3328; NT_MAX=104
HIST=0; DEG=256; PADC=512; FLAG=768; BASE=832
XL=1088; EL=XL+LCAP*4; QT=EL+LCAP*4; QP=QT+LCAP; XS=QP+41*512; XS_W=4160
ES=86016; assert XS+8*XS_W<=ES
SEG=ES+8*2048; ZROW=57; K2_LDS=SEG+58*1024
HH=XS; HL=HH+40*272; assert HL+64*272<=SEG
WST=XS
SENT=0x7FFFFF00
W=16; A=96; D=[116,132]; EE=148; PD=164; PN=172; ACC=180; FQ=188; ACF=196; ACS=200; QB=204; QA=208; KT=212
XO=220; EO=224; vXLa=225; vELa=226; vQTa=227; QTV=228
vXc=232; vEc=233; vAx01=234; vAx23=235; vAe=236; vQc=237; vSegB=238; vPN=239; vPA=240; vT0=241; vT1=242; vT2=243
HR=244
K2_VGPR=254
vS=254
S_X=4; S_E=8; S_T=12; S_W=16; S_O=20; S_B1=24; S_B2=28; S_SRC=32; S_DST=36
sSC=40; sWV=42; sNB=43; sNN=44; sNT=45; sTOT=46; sSLOW=47; sMK=48
sSAFE=80; sB0=81; sCNT=82; sFN=83; sXS=84; sES=85; sME=86; sNW=87; sPW=88
st=[90,91,92,93,94,95,96,97,98,99]
XBYTES=N*128; EBYTES=E*32
DBG=[None]
def Wf(j,k): return W+(j*5+k)*4
def mfma(d,a_,b_,c=None):
    cs = "0" if c is None else vr(c,16)
    return f"v_mfma_f32_32x32x16_bf16 {vr(d,16)}, {vr(a_)}, {vr(b_)}, {cs}"
def chain(Dn,j):
    L=[mfma(Dn,A+0,Wf(j,0),None)]
    for k in range(1,4): L.append(mfma(Dn,A+4*k,Wf(j,k),Dn))
    L.append(mfma(Dn,A+16,Wf(j,4),Dn))
    return L
def qmf(Dn,j,typ):
    return mfma(Dn,ACF,FQ+2*j,Dn) if typ=="F" else mfma(Dn,ACS,QB,Dn)
def stamp(a,idx,extra=None):
    if DBG[0]!="stamp": return
    a("s_memrealtime s[100:101]")
    a("s_waitcnt lgkmcnt(0)")
    a(f"v_writelane_b32 v{vS}, s100, {idx}")
    if extra is not None:
        a("s_memtime s[100:101]")
        a("s_waitcnt lgkmcnt(0)")
        a(f"v_writelane_b32 v{vS}, s100, {extra}")
def stamp_out(a,kid=1):
    if DBG[0]!="stamp": return
    a(f"v_writelane_b32 v{vS}, s{sNT}, 14")
    a("s_load_dwordx2 s[92:93], s[0:1], 80")
    a("s_waitcnt lgkmcnt(0)")
    a(f"s_add_u32 s92, s92, {(16<<20)+kid*(1<<20)}")
    a("s_addc_u32 s93, s93, 0")
    a("s_and_b32 s93, s93, 0xffff")
    a("s_mov_b32 s94, 0x100000")
    a("s_mov_b32 s95, 0x20000")
    a("v_lshrrev_b32 v2, 6, v0")
    a("s_lshl_b32 s96, s2, 4")
    a("v_add_u32 v2, s96, v2")
    a("v_lshlrev_b32 v2, 6, v2")
    a("v_and_b32 v3, 63, v0")
    a("v_lshl_add_u32 v2, v3, 2, v2")
    a("v_cmp_gt_u32 vcc, 16, v3")
    a("s_and_saveexec_b64 s[96:97], vcc")
    a(f"buffer_store_dword v{vS}, v2, s[92:95], 0 offen")
    a("s_mov_b64 exec, s[96:97]")

def dma_x():
    L=[]
    for i in range(4):
        L.append([f"s_add_u32 m0, s{sXS}, {i*1040}", "s_nop 0", f"buffer_load_dwordx4 v{XO+i}, s[{S_X}:{S_X+3}], 0 offen lds"])
    return L
def dma_e(slot=None):
    m = f"s_mov_b32 m0, s{sME}" if slot is None else f"s_add_u32 m0, s{sES}, {slot*1024}"
    return [[m,"s_nop 0",f"buffer_load_dwordx4 v{EO}, s[{S_E}:{S_E+3}], 0 offen nt lds"]]
def read_A():
    return [f"ds_read_b128 {vr(A+0)}, v{vAx01}", f"ds_read_b128 {vr(A+4)}, v{vAx01} offset:32",
            f"ds_read_b128 {vr(A+8)}, v{vAx23} offset:64", f"ds_read_b128 {vr(A+12)}, v{vAx23} offset:96",
            f"ds_read_b128 {vr(A+16)}, v{vAe}"]
def off_calc():
    return [f"v_add_u32 v{XO+i}, v{XO+i}, v{vXc}" for i in range(4)]+[f"v_add_u32 v{EO}, v{EO}, v{vEc}"]
def flat(L):
    out=[]
    for x in L: out+= x if isinstance(x,list) else [x]
    return out

def stage(j, typ, variant, last, side_exp=[], side_pk=[], head=[], side_late=[]):
    Dc=D[j&1]; Dn=D[(j+1)&1]; jn=(j+1)&3
    L=list(head)
    if typ=="S" and not last:
        L+=[f"ds_read_b32 v{QB+i}, v{QA+i} offset:{jn*128}" for i in range(4)]
    ex=[f"v_exp_f32 v{EE+i}, v{Dc+i}" for i in range(16)]
    ph1=interleave(ex,chain(Dn,jn),3)
    L+=weave(ph1,side_exp,1)
    pk1=[f"v_pk_fma_f32 {vr(EE+2*i,2)}, {vr(EE+2*i,2)}, s[{sSC}:{sSC+1}], s[{sSC}:{sSC+1}]" for i in range(8)]
    q=[] if last else [qmf(Dn,jn,typ)]
    wq=[f"s_waitcnt lgkmcnt({5 if j==2 else 0})"] if (typ=="S" and not last) else []
    if variant=="pair":
        pk1+=[f"v_pk_mul_f32 {vr(PD+2*k,2)}, {vr(EE+4*k,2)}, {vr(EE+4*k+2,2)}" for k in range(4)]
        pk1+=[f"v_pk_mul_f32 {vr(PN+2*k,2)}, {vr(Dc+4*k,2)}, {vr(EE+4*k+2,2)}" for k in range(4)]
        L+=weave(pk1,side_pk,1)
        rc=[f"v_rcp_f32 v{PD+i}, v{PD+i}" for i in range(8)]
        L+=[rc[0]]+wq+q+weave(rc[1:],side_late,1)
        L+=[f"v_pk_fma_f32 {vr(PN+2*k,2)}, {vr(Dc+4*k+2,2)}, {vr(EE+4*k,2)}, {vr(PN+2*k,2)}" for k in range(4)]
        if typ=="F":
            L+=[f"v_pk_fma_f32 {vr(ACC+2*j,2)}, {vr(PN+2*k,2)}, {vr(PD+2*k,2)}, {vr(ACC+2*j,2)}" for k in range(4)]
            return L
        L+=[f"v_pk_mul_f32 {vr(PN+2*k,2)}, {vr(PN+2*k,2)}, {vr(PD+2*k,2)}" for k in range(4)]
    else:
        L+=weave(pk1,side_pk,1)
        rc=[f"v_rcp_f32 v{EE+i}, v{EE+i}" for i in range(16)]
        L+=[rc[0]]+wq+q+weave(rc[1:],side_late,1)
        L+=[f"v_pk_mul_f32 {vr(PN+2*k,2)}, {vr(Dc+4*k,2)}, {vr(EE+4*k,2)}" for k in range(4)]
        L+=[f"v_pk_fma_f32 {vr(PN+2*k,2)}, {vr(Dc+4*k+2,2)}, {vr(EE+4*k+2,2)}, {vr(PN+2*k,2)}" for k in range(4)]
    for k in range(4):
        L.append(f"ds_write_b64 v{KT+2*k+1}, {vr(ACC+2*j,2)} offset:{j*256}")
        L.append(f"v_pk_fma_f32 {vr(ACC+2*j,2)}, {vr(ACC+2*j,2)}, {vr(KT+2*k,2)}, {vr(PN+2*k,2)} op_sel_hi:[1,0,1]")
    return L

def tile(typ, variant):
    L=[]
    lists=[f"ds_read_b128 {vr(XO)}, v{vXLa}", f"ds_read_b32 v{EO}, v{vELa}"]
    qtread=[f"ds_read_b128 {vr(QTV)}, v{vQTa}"]
    incs=[f"v_add_u32 v{vXLa}, 64, v{vXLa}", f"v_add_u32 v{vELa}, 64, v{vELa}", f"v_add_u32 v{vQTa}, 16, v{vQTa}"]
    srdsel=[f"s_cmp_gt_u32 s{sCNT}, 2", f"s_cselect_b32 s{S_X+2}, {XBYTES}, 0", f"s_cmp_gt_u32 s{sCNT}, 3", f"s_cselect_b32 s{S_E+2}, {EBYTES}, 0"]
    if typ=="F":
        L.append(qmf(D[0],0,"F"))
        L+=lists+qtread+incs+srdsel+["s_nop 1"]
    else:
        L+=[f"v_add_u32 v{QA+i}, v{QTV+i}, v{vQc}" for i in range(4)]
        L+=[f"ds_read_b32 v{QB+i}, v{QA+i}" for i in range(4)]
        L+=[f"ds_read_b32 v{FQ+2*j}, v{QA+3} offset:{j*128}" for j in range(4)]
        L+=[f"v_mov_b32 v{KT+1}, v{vPA}"]
        L+=[f"v_lshl_add_u32 v{KT+2*k+1}, v{QTV+k-1}, 1, v{vSegB}" for k in range(1,4)]
        L+=[f"v_lshl_add_u32 v{vPA}, v{QTV+3}, 1, v{vSegB}"]
        for k in range(4):
            prev = vPN if k==0 else QTV+k-1
            L+=[f"v_cmp_eq_u32 vcc, v{QTV+k}, v{prev}", "s_nop 1", f"v_cndmask_b32_e64 v{KT+2*k}, 0, 1.0, vcc"]
        L+=[f"v_mov_b32 v{vPN}, v{QTV+3}"]
        L+=["s_waitcnt lgkmcnt(0)", qmf(D[0],0,"S")]
        L+=lists+qtread+incs+srdsel+["s_nop 1"]
    L+=stage(0,typ,variant,False)
    head1=["s_waitcnt lgkmcnt(0)"]
    side1=[[f"v_cmp_eq_u32 vcc, v{QTV+3}, v{vPN}", "s_cmp_eq_u64 vcc, -1", (f"s_mov_b32 s{sFN}, 1" if 'allF' in OPT else f"s_mov_b32 s{sFN}, 0" if 'allS' in OPT else f"s_cselect_b32 s{sFN}, 1, 0")]]+off_calc()
    L+=stage(1,typ,variant,False,side_exp=side1,head=head1)
    rA=read_A()
    L+=stage(2,typ,variant,False,side_pk=[["s_waitcnt vmcnt(1)",rA[0]]]+rA[1:])
    dm=dma_x()+dma_e()
    L+=stage(3,typ,variant,True,head=["s_waitcnt lgkmcnt(0)"],side_exp=dm[:3],side_pk=dm[3:],
             side_late=[f"v_xor_b32 v{vAe}, 1024, v{vAe}", f"s_xor_b32 s{sME}, s{sME}, 1024", f"s_sub_u32 s{sCNT}, s{sCNT}, 1"])
    return L

def main_loop(a,variant):
    tag=variant
    a(f"s_lshr_b32 s{st[0]}, s{sNT}, 3")
    a(f"s_and_b32 s{st[1]}, s{sNT}, 7")
    a(f"s_cmp_lt_u32 s{sWV}, s{st[1]}")
    a(f"s_cselect_b32 s{st[2]}, 1, 0")
    a(f"s_add_u32 s{sNW}, s{st[0]}, s{st[2]}")
    a(f"s_mul_i32 s{sPW}, s{sWV}, s{st[0]}")
    a(f"s_min_u32 s{st[2]}, s{sWV}, s{st[1]}")
    a(f"s_add_u32 s{sPW}, s{sPW}, s{st[2]}")
    a(f"s_cmp_eq_u32 s{sNW}, 0")
    a(f"s_cbranch_scc1 L_mdone_{tag}")
    a(f"s_mov_b32 s{sCNT}, s{sNW}")
    a(f"s_lshl_b32 s{st[3]}, s{sPW}, 3")
    a(f"s_lshl_b32 s{st[4]}, s{sNW}, 2")
    a("v_lshrrev_b32 v2, 3, v1")
    a("v_lshrrev_b32 v3, 2, v2")
    a("v_and_b32 v4, 3, v2")
    a(f"v_mul_lo_u32 v3, v3, s{st[4]}")
    a(f"v_add3_u32 v3, v3, v4, s{st[3]}")
    a(f"v_lshlrev_b32 v3, 4, v3")
    a(f"v_add_u32 v{vXLa}, {XL}, v3")
    a("v_lshrrev_b32 v2, 5, v1")
    a(f"v_mul_lo_u32 v3, v2, s{st[4]}")
    a(f"v_add_u32 v3, s{st[3]}, v3")
    a("v_bfe_u32 v4, v1, 1, 4")
    a("v_lshlrev_b32 v4, 2, v4")
    a("v_lshl_add_u32 v4, v3, 4, v4")
    a(f"v_add_u32 v{vELa}, {EL}, v4")
    a("v_lshlrev_b32 v4, 2, v3")
    a(f"v_add_u32 v{vQTa}, {QT}, v4")
    a(f"s_lshl_b32 s{st[5]}, s{sWV}, 11")
    a(f"s_add_u32 s{st[5]}, s{st[5]}, {SEG}")
    a("v_and_b32 v4, 31, v1")
    a("v_lshlrev_b32 v4, 3, v4")
    a("v_lshl_add_u32 v4, v2, 10, v4")
    a(f"v_add_u32 v{vSegB}, s{st[5]}, v4")
    a(f"v_and_b32 v{vAe}, 0xfffffbff, v{vAe}")
    a(f"ds_read_b128 {vr(XO)}, v{vXLa}")
    a(f"ds_read_b32 v{EO}, v{vELa}")
    a(f"ds_read_b128 {vr(QTV)}, v{vQTa}")
    a(f"s_mov_b32 s{S_X+2}, {XBYTES}")
    a(f"s_mov_b32 s{S_E+2}, {EBYTES}")
    for j in range(4): a(f"v_mov_b64 {vr(ACC+2*j,2)}, 0")
    a("s_waitcnt lgkmcnt(0)")
    for x in off_calc(): a(x)
    for x in flat(dma_e(0)+dma_x()): a(x)
    a(f"ds_read_b32 v{EO}, v{vELa} offset:64")
    a(f"ds_read_b128 {vr(XO)}, v{vXLa} offset:64")
    a(f"v_mov_b32 v{vPN}, v{QTV}")
    a(f"v_lshl_add_u32 v{vPA}, v{QTV}, 1, v{vSegB}")
    a(f"v_add_u32 v{QA}, v{QTV}, v{vQc}")
    for j in range(4): a(f"ds_read_b32 v{FQ+2*j}, v{QA} offset:{j*128}")
    a(f"v_cmp_eq_u32 vcc, v{QTV+3}, v{vPN}")
    a("s_cmp_eq_u64 vcc, -1")
    a(f"s_cselect_b32 s{sFN}, 1, 0")
    a(f"s_cmp_gt_u32 s{sCNT}, 1")
    a(f"s_cselect_b32 s{S_X+2}, {XBYTES}, 0")
    a(f"s_cselect_b32 s{S_E+2}, {EBYTES}, 0")
    a("s_waitcnt lgkmcnt(0)")
    for x in off_calc(): a(x)
    for x in flat(dma_e(1)): a(x)
    a("s_waitcnt vmcnt(1)")
    for x in read_A(): a(x)
    a(f"ds_read_b32 v{EO}, v{vELa} offset:128")
    a(f"s_cmp_gt_u32 s{sCNT}, 2")
    a(f"s_cselect_b32 s{S_E+2}, {EBYTES}, 0")
    a("s_waitcnt lgkmcnt(0)")
    a(f"v_add_u32 v{EO}, v{EO}, v{vEc}")
    for x in flat(dma_x()+dma_e(0)): a(x)
    for x in chain(D[0],0): a(x)
    a(f"v_add_u32 v{vXLa}, 128, v{vXLa}")
    a(f"v_add_u32 v{vELa}, 192, v{vELa}")
    a(f"v_add_u32 v{vQTa}, 16, v{vQTa}")
    a(f"v_xor_b32 v{vAe}, 1024, v{vAe}")
    a(f"s_add_u32 s{sME}, s{sES}, 1024")
    if DBG[0]=="stamp" and tag=="pair":
        a("s_memtime s[100:101]"); a("s_waitcnt lgkmcnt(0)"); a(f"v_writelane_b32 v{vS}, s100, 10")
    if variant=="pair":
        a(f"s_cmp_eq_u32 s{sFN}, 0")
        a(f"s_cbranch_scc1 L_S_{tag}")
        a(f"L_F_{tag}:")
        a.extend(tile("F",variant))
        a(f"s_cmp_eq_u32 s{sCNT}, 0")
        a(f"s_cbranch_scc1 L_fin_{tag}")
        a(f"s_cmp_lg_u32 s{sFN}, 0")
        a(f"s_cbranch_scc1 L_F_{tag}")
    a(f"L_S_{tag}:")
    a.extend(tile("S",variant))
    a(f"s_cmp_eq_u32 s{sCNT}, 0")
    a(f"s_cbranch_scc1 L_fin_{tag}")
    if variant=="pair":
        a(f"s_cmp_lg_u32 s{sFN}, 0")
        a(f"s_cbranch_scc1 L_F_{tag}")
    a(f"s_branch L_S_{tag}")
    a(f"L_fin_{tag}:")
    for j in range(4): a(f"ds_write_b64 v{vPA}, {vr(ACC+2*j,2)} offset:{j*256}")
    a(f"L_mdone_{tag}:")

def masked_fill(a, count, addr_v, data, offset):
    if count>=512:
        a(f"ds_write_b128 v{addr_v}, {vr(data)} offset:{offset}"); return
    a(f"v_cmp_gt_u32 vcc, {count}, v0")
    a(f"s_and_saveexec_b64 s[{st[8]}:{st[9]}], vcc")
    a(f"ds_write_b128 v{addr_v}, {vr(data)} offset:{offset}")
    a(f"s_mov_b64 exec, s[{st[8]}:{st[9]}]")
def fill_region(a, start, nbytes, data):
    n=nbytes//16; assert nbytes%16==0
    o=start
    big = start+nbytes>65535
    if big:
        a(f"v_lshlrev_b32 v{vT2}, 4, v0")
        a(f"v_add_u32 v{vT2}, {start}, v{vT2}")
        o=0
    while n>0:
        masked_fill(a,min(n,512),vT2 if big else vT0,data,o); o+=512*16; n-=512
def init_lists(a,r_sent,r_dummy):
    for i in range(4): a(f"v_mov_b32 v{r_sent+i}, {SENT:#x}")
    fill_region(a,XL,2*LCAP*4,r_sent)
    for i in range(4): a(f"v_mov_b32 v{r_dummy+i}, {40*512}")
    fill_region(a,QT,LCAP,r_dummy)

def gen_k2(dbg=None):
    DBG[0]=dbg
    a=Asm()
    R=D[0]; HD=PD; RANK=EE; EB=QA
    a("s_cmp_ge_u32 s2, 256")
    a("s_cbranch_scc1 k2_end")
    if dbg=="stamp": a(f"v_mov_b32 v{vS}, 0")
    stamp(a,0,11)
    a("s_load_dwordx16 s[48:63], s[0:1], 0")
    a("s_load_dwordx2 s[64:65], s[0:1], 64")
    a("s_load_dwordx2 s[66:67], s[0:1], 80")
    a("v_and_b32 v1, 63, v0")
    a("v_lshrrev_b32 v2, 6, v0")
    a("s_mul_i32 s43, s2, 625")
    a(f"v_readfirstlane_b32 s{sWV}, v2")
    a(f"v_lshlrev_b32 v{vT0}, 4, v0")
    for i in range(4): a(f"v_mov_b32 v{PN+i}, 0")
    fill_region(a,HIST,XL,PN)
    fill_region(a,QP+40*512,512,PN)
    fill_region(a,SEG+ZROW*1024,1024,PN)
    a("s_add_u32 s44, s43, 640")
    a("s_add_u32 s43, s43, 15")
    a("s_lshr_b32 s43, s43, 4")
    a("s_lshr_b32 s44, s44, 4")
    a("s_sub_u32 s44, s44, s43")
    a(f"s_mov_b32 s{sSC}, 0x33800000")
    a(f"s_mov_b32 s{sSC+1}, 0x33800000")
    a(f"s_mov_b32 s{sSLOW}, 0")
    a(f"s_mov_b32 s{sSAFE}, 0")
    a(f"s_mul_i32 s{sXS}, s{sWV}, {XS_W}")
    a(f"s_add_u32 s{sXS}, s{sXS}, {XS}")
    a(f"s_lshl_b32 s{sES}, s{sWV}, 11")
    a(f"s_add_u32 s{sES}, s{sES}, {ES}")
    a("v_lshrrev_b32 v2, 3, v1")
    a("v_and_b32 v3, 7, v1")
    a("v_and_b32 v4, 31, v1")
    a("v_lshrrev_b32 v5, 5, v1")
    a("v_lshlrev_b32 v14, 4, v1")
    a("v_lshlrev_b32 v15, 7, v2")
    a("s_waitcnt lgkmcnt(0)")
    srd(a,S_T,66,TABLE_BYTES)
    a(f"s_lshl_b32 s{st[0]}, s2, 15")
    a(f"s_lshl_b32 s{st[1]}, s{sWV}, 12")
    a(f"s_add_u32 s{st[0]}, s{st[0]}, s{st[1]}")
    for k in range(4): a(f"buffer_load_dwordx4 {vr(R+4*k)}, v14, s[{S_T}:{S_T+3}], s{st[0]} offen offset:{k*1024}")
    for k in range(4): a(f"buffer_load_dword v{HD+k}, v15, s[{S_T}:{S_T+3}], s{st[0]} offen offset:{k*1024}")
    a("s_barrier")
    srd(a,S_X,48,XBYTES); srd(a,S_E,50,EBYTES); srd(a,S_SRC,52,E*4); srd(a,S_DST,54,E*4)
    srd(a,S_B1,58,256); srd(a,S_B2,62,128); srd(a,S_O,64,N*128); srd(a,S_W,66,WF_BYTES,WF_OFF)
    WB=PN
    a(f"s_lshr_b32 s{st[1]}, s{sWV}, 2")
    a(f"s_and_b32 s{st[2]}, s{sWV}, 3")
    a(f"s_lshl_b32 s{st[3]}, s{st[1]}, 5")
    a(f"s_add_u32 s{st[3]}, s{st[3]}, s{sNB}")
    a(f"v_add_u32 v12, s{st[3]}, v4")
    a("v_lshlrev_b32 v12, 7, v12")
    a("v_lshl_add_u32 v12, v5, 4, v12")
    for ks in range(4): a(f"buffer_load_dwordx4 {vr(A+4*ks)}, v12, s[{S_X}:{S_X+3}], 0 offen offset:{ks*32}")
    a(f"s_lshl_b32 s{st[4]}, s{st[2]}, 12")
    a(f"s_add_u32 s{st[4]}, s{st[4]}, {20*1024}")
    for ks in range(4): a(f"buffer_load_dwordx4 {vr(WB+4*ks)}, v14, s[{S_W}:{S_W+3}], s{st[4]} offen offset:{ks*1024}")
    a(f"s_lshl_b32 s{st[5]}, s{st[2]}, 6")
    a(f"v_lshl_add_u32 v13, v4, 1, s{st[5]}")
    a(f"buffer_load_ushort v{PD+4}, v13, s[{S_B1}:{S_B1+3}], 0 offen")
    for r in range(3):
        if r==2:
            a(f"s_cmp_lt_u32 s{sWV}, 4")
            a("s_cbranch_scc0 k2_wdma_done")
        a(f"s_lshl_b32 s{st[6]}, s{sWV}, 10")
        a(f"s_add_u32 s{st[6]}, s{st[6]}, {r*8192}")
        a(f"s_add_u32 m0, s{st[6]}, {WST}")
        a("s_nop 0")
        a(f"buffer_load_dwordx4 v14, s[{S_W}:{S_W+3}], s{st[6]} offen lds")
    a("k2_wdma_done:")
    a("v_lshlrev_b32 v7, 1, v2")
    a("v_and_b32 v7, 4, v7")
    a("v_xor_b32 v7, v3, v7")
    a(f"v_lshlrev_b32 v{vXc}, 4, v7")
    a("v_lshrrev_b32 v7, 4, v1")
    a("v_xor_b32 v7, v1, v7")
    a("v_and_b32 v7, 1, v7")
    a(f"v_lshlrev_b32 v{vEc}, 4, v7")
    a("v_and_b32 v7, 3, v4")
    a("v_bfe_u32 v8, v4, 2, 1")
    a("v_lshrrev_b32 v9, 3, v4")
    a("v_lshl_add_u32 v10, v8, 2, v9")
    a("v_mul_u32_u24 v11, 1040, v7")
    a("v_lshl_add_u32 v11, v10, 7, v11")
    a("v_lshl_add_u32 v11, v5, 4, v11")
    a(f"v_add_u32 v11, s{sXS}, v11")
    a("v_bfe_u32 v12, v10, 1, 1")
    a("v_lshlrev_b32 v12, 6, v12")
    a(f"v_add_u32 v{vAx01}, v11, v12")
    a(f"v_sub_u32 v{vAx23}, v11, v12")
    a("v_lshl_add_u32 v11, v10, 2, v7")
    a("v_bfe_u32 v12, v11, 3, 1")
    a("v_xor_b32 v12, v5, v12")
    a("v_lshlrev_b32 v12, 4, v12")
    a("v_lshl_add_u32 v12, v11, 5, v12")
    a(f"v_add_u32 v{vAe}, s{sES}, v12")
    a(f"v_lshlrev_b32 v{vQc}, 2, v4")
    a(f"v_add_u32 v{vQc}, {QP}, v{vQc}")
    a("v_lshlrev_b32 v12, 2, v5")
    a("v_sub_u32 v12, v10, v12")
    a("v_mov_b32 v13, 0x3f803f80")
    for r in range(4):
        a(f"v_cmp_eq_u32 vcc, {r}, v12")
        a("s_nop 1")
        a(f"v_cndmask_b32 v{ACS+r}, 0, v13, vcc")
    a("v_cmp_eq_u32 vcc, v8, v5")
    for i in range(12): a(f"v_mov_b32 v{FQ+i}, 0")
    a(f"v_cndmask_b32 v{ACF}, 0, v13, vcc")
    for i in range(10): a(f"v_mov_b32 v{HR+i}, 0")
    a(f"v_lshlrev_b32 v{vT0}, 4, v0")
    init_lists(a,KT,KT+4)
    a(f"s_lshl_b32 s{st[0]}, s{sWV}, 5")
    a(f"v_add_u32 v2, s{st[0]}, v2")
    a("v_mul_u32_u24 v2, 2500, v2")
    for k in range(4): a(f"v_add_u32 v{EB+k}, {k*8*2500}, v2")
    for i in range(4):
        a(f"v_lshlrev_b32 v{XO+i}, 2, v3")
        a(f"v_add_u32 v{XO+i}, {i-1}, v{XO+i}")
    stamp(a,1)
    a(f"s_cmp_lt_u32 s{sWV}, 4")
    a("s_cbranch_scc1 k2_w3")
    a("s_waitcnt vmcnt(11)")
    a("s_branch k2_w3d")
    a("k2_w3:")
    a("s_waitcnt vmcnt(12)")
    a("k2_w3d:")
    stamp(a,2)
    for k in range(4):
        for i in range(4):
            e=4*k+i
            a(f"v_cmp_lt_u32 s[{sMK+2*e}:{sMK+2*e+1}], v{XO+i}, v{HD+k}")
    a(f"v_max_u32 v{vT0}, v{HD}, v{HD+1}")
    a(f"v_max3_u32 v{vT0}, v{HD+2}, v{HD+3}, v{vT0}")
    a(f"v_cmp_lt_u32 vcc, 31, v{vT0}")
    a("s_cbranch_vccz k2_noovf")
    a(f"v_mov_b32 v{vT0}, {FLAG}")
    a(f"v_mov_b32 v{vT1}, 1")
    a(f"ds_write_b32 v{vT0}, v{vT1}")
    a("k2_noovf:")
    def hist(a):
        a(f"s_mov_b32 s{st[0]}, {HIST}")
        for e in range(16):
            a(f"v_lshrrev_b32 v{vT1}, 26, v{R+e}")
            a(f"v_lshl_add_u32 v{RANK+e}, v{vT1}, 2, s{st[0]}")
        a(f"v_mov_b32 v{vT1}, 1")
        for e in range(16):
            a(f"s_mov_b64 exec, s[{sMK+2*e}:{sMK+2*e+1}]")
            a(f"ds_add_rtn_u32 v{RANK+e}, v{RANK+e}, v{vT1}")
        a("s_mov_b64 exec, -1")
    hist(a)
    a("s_waitcnt vmcnt(0)")
    QD=D[1]
    a(mfma(QD,A,WB,None))
    for ks in range(1,4): a(mfma(QD,A+4*ks,WB+4*ks,QD))
    a(f"v_lshlrev_b32 v{PD+4}, 16, v{PD+4}")
    a(f"s_mov_b32 s{st[5]}, {f2u(NEG_LOG2E):#x}")
    a(f"s_lshr_b32 s{st[1]}, s{sWV}, 2")
    a(f"s_and_b32 s{st[2]}, s{sWV}, 3")
    a("v_lshrrev_b32 v5, 5, v1")
    a("v_and_b32 v4, 31, v1")
    a(f"s_lshl_b32 s{st[3]}, s{st[1]}, 14")
    a(f"s_lshl_b32 s{st[4]}, s{st[2]}, 7")
    a(f"s_add_u32 s{st[3]}, s{st[3]}, s{st[4]}")
    a(f"s_add_u32 s{st[3]}, s{st[3]}, {QP}")
    a("v_lshlrev_b32 v12, 11, v5")
    a("v_lshl_add_u32 v12, v4, 2, v12")
    a(f"v_add_u32 v12, s{st[3]}, v12")
    a("s_nop 3")
    for r in range(16):
        a(f"v_add_f32 v{QD+r}, v{QD+r}, v{PD+4}")
        a(f"v_mul_f32 v{QD+r}, s{st[5]}, v{QD+r}")
    for r in range(16):
        t=KT+(r&3)
        a(f"v_cvt_pk_bf16_f32 v{t}, v{QD+r}, v{QD+r}")
        a(f"v_lshlrev_b32 v{vT1}, 16, v{t}")
        a(f"v_sub_f32 v{vT1}, v{QD+r}, v{vT1}")
        a(f"v_cvt_pk_bf16_f32 v{t}, v{QD+r}, v{vT1}")
        if r==4:
            a(f"s_cmp_eq_u32 s{st[1]}, 0")
            a("s_cbranch_scc0 k2_qdone")
        a(f"ds_write_b32 v12, v{t} offset:{((r>>2)*8+(r&3))*512}")
    a("k2_qdone:")
    a("s_waitcnt lgkmcnt(0)")
    stamp(a,3)
    a("s_barrier")
    a("v_lshlrev_b32 v14, 4, v1")
    a(f"v_add_u32 v14, {WST}, v14")
    for f in range(20): a(f"ds_read_b128 {vr(W+4*f)}, v14 offset:{f*1024}")
    a("k2_scan:")
    a(f"v_lshlrev_b32 v{vT0}, 2, v1")
    a(f"ds_read_b32 v{PN}, v{vT0} offset:{HIST}")
    a(f"v_mov_b32 v{vT1}, {FLAG}")
    a(f"ds_read_b32 v{PN+1}, v{vT1}")
    a("s_waitcnt lgkmcnt(0)")
    a(f"v_add_u32 v{PN+2}, 3, v{PN}")
    a(f"v_and_b32 v{PN+2}, -4, v{PN+2}")
    a(f"v_mov_b32 v{PN+3}, v{PN+2}")
    for sh in ("row_shr:1 row_mask:0xf","row_shr:2 row_mask:0xf","row_shr:4 row_mask:0xf","row_shr:8 row_mask:0xf","row_bcast:15 row_mask:0xa","row_bcast:31 row_mask:0xc"):
        a("s_nop 1")
        a(f"v_add_u32_dpp v{PN+3}, v{PN+3}, v{PN+3} {sh} bank_mask:0xf")
    a("s_nop 0")
    a(f"v_readlane_b32 s{sTOT}, v{PN+3}, 63")
    a(f"v_readfirstlane_b32 s{st[0]}, v{PN+1}")
    a(f"v_sub_u32 v{PN+3}, v{PN+3}, v{PN+2}")
    a(f"s_cmp_lg_u32 s{sSLOW}, 0")
    a("s_cbranch_scc1 k2_okcap")
    a(f"s_cmp_gt_u32 s{sTOT}, {LCAP}")
    a(f"s_cselect_b32 s{st[1]}, 1, 0")
    a(f"s_or_b32 s{st[0]}, s{st[0]}, s{st[1]}")
    a(f"s_cmp_lg_u32 s{st[0]}, 0")
    a("s_cbranch_scc1 k2_goslow")
    a("k2_okcap:")
    a(f"s_add_u32 s{sNT}, s{sTOT}, 31")
    a(f"s_lshr_b32 s{sNT}, s{sNT}, 5")
    a(f"s_cmp_eq_u32 s{sWV}, 0")
    a("s_cbranch_scc0 k2_nodeg")
    a(f"v_sub_u32 v{PN+2}, v{PN+2}, v{PN}")
    a(f"ds_add_u32 v{vT0}, v{PN} offset:{DEG}")
    a(f"ds_add_u32 v{vT0}, v{PN+2} offset:{PADC}")
    a(f"ds_write_b32 v{vT0}, v{PN+3} offset:{BASE}")
    a("k2_nodeg:")
    BS=A; ND=D[1]
    for e in range(16):
        a(f"v_lshrrev_b32 v{ND+e}, 26, v{R+e}")
        a(f"v_lshlrev_b32 v{vT1}, 2, v{ND+e}")
        a(f"ds_bpermute_b32 v{BS+e}, v{vT1}, v{PN+3}")
    a(f"s_movk_i32 s{st[0]}, 0x3fff")
    for e in range(16):
        k=e>>2
        a(f"v_lshlrev_b32 v{ND+e}, 9, v{ND+e}")
        a(f"v_bfe_u32 v{KT+(e&7)}, v{R+e}, 14, 12") if False else None
    a("s_waitcnt lgkmcnt(0)")
    for e in range(16):
        k=e>>2
        a(f"v_add_u32 v{BS+e}, v{BS+e}, v{RANK+e}")
        a(f"v_bfe_u32 v{RANK+e}, v{R+e}, 14, 12")
        a(f"v_add_u32 v{RANK+e}, v{RANK+e}, v{EB+k}")
        a(f"v_lshlrev_b32 v{RANK+e}, 5, v{RANK+e}")
        a(f"v_and_b32 v{R+e}, s{st[0]}, v{R+e}")
        a(f"v_lshlrev_b32 v{R+e}, 7, v{R+e}")
    for e in range(16):
        a(f"v_and_b32 v{vT1}, -4, v{BS+e}")
        a(f"v_lshlrev_b32 v{BS+e}, 2, v{BS+e}")
        a(f"s_mov_b64 exec, s[{sMK+2*e}:{sMK+2*e+1}]")
        a(f"ds_write_b32 v{BS+e}, v{R+e} offset:{XL}")
        a(f"ds_write_b32 v{BS+e}, v{RANK+e} offset:{EL}")
        a(f"ds_write_b32 v{vT1}, v{ND+e} offset:{QT}")
        a("s_mov_b64 exec, -1")
    a("s_waitcnt vmcnt(0) lgkmcnt(0)")
    stamp(a,4)
    a("s_barrier")
    stamp(a,5,12)
    a("k2_main:")
    a(f"s_cmp_lg_u32 s{sSAFE}, 0")
    a("s_cbranch_scc1 k2_main_safe")
    main_loop(a,"pair")
    a("s_branch k2_mjoin")
    a("k2_main_safe:")
    main_loop(a,"safe")
    a("k2_mjoin:")
    a("s_waitcnt vmcnt(0) lgkmcnt(0)")
    stamp(a,6,13)
    a(f"s_and_b32 s{st[0]}, s{sWV}, 1")
    a(f"s_lshl_b32 s{st[1]}, s{st[0]}, 13")
    a(f"s_add_u32 s{st[1]}, s{st[1]}, {36*1024}")
    a(f"s_add_u32 s{st[2]}, s{st[1]}, 4096")
    a("v_lshlrev_b32 v14, 4, v1")
    W2F=D[0]
    for ks in range(8):
        a(f"buffer_load_dwordx4 {vr(W2F+4*ks)}, v14, s[{S_W}:{S_W+3}], s{st[1+(ks>>2)]} offen offset:{(ks&3)*1024}")
    a("v_lshrrev_b32 v5, 5, v1")
    a(f"s_lshl_b32 s{st[3]}, s{st[0]}, 6")
    a(f"v_lshl_add_u32 v13, v5, 3, s{st[3]}")
    B2R=KT
    for q in range(4): a(f"buffer_load_dwordx2 {vr(B2R+2*q,2)}, v13, s[{S_B2}:{S_B2+3}], 0 offen offset:{q*16}")
    a("s_barrier")
    a(f"v_lshlrev_b32 v{vT0}, 2, v1")
    a(f"ds_read_b32 v2, v{vT0} offset:{BASE}")
    a(f"s_lshr_b32 s{st[0]}, s{sNT}, 3")
    a(f"s_and_b32 s{st[1]}, s{sNT}, 7")
    a("v_lshrrev_b32 v3, 1, v1")
    a("v_and_b32 v4, 1, v1")
    a(f"v_cmp_gt_u32 vcc, s{st[1]}, v3")
    a(f"v_mul_lo_u32 v6, v3, s{st[0]}")
    a("s_nop 0")
    a(f"v_cndmask_b32_e64 v5, 0, 1, vcc")
    a(f"v_add_u32 v5, s{st[0]}, v5")
    a(f"v_min_u32 v7, s{st[1]}, v3")
    a("v_add_u32 v6, v6, v7")
    a("v_lshlrev_b32 v6, 3, v6")
    a("v_lshlrev_b32 v5, 2, v5")
    a("v_mul_lo_u32 v7, v5, v4")
    a("v_add_u32 v6, v6, v7")
    a("v_add_u32 v7, v6, v5")
    a("v_cmp_gt_u32 vcc, 16, v1")
    a("v_mov_b32 v8, 0x7fffffff")
    a("s_nop 0")
    a("v_cndmask_b32 v6, v8, v6, vcc")
    a(f"v_lshlrev_b32 v9, 4, v1")
    a(f"v_add_u32 v9, {SEG}, v9")
    a("s_waitcnt lgkmcnt(0)")
    SR=EE
    for r in range(5):
        a(f"s_add_u32 s{st[2]}, s{sWV}, {8*r}")
        a(f"s_add_u32 s{st[3]}, s{st[2]}, 1")
        a(f"v_readlane_b32 s{st[4]}, v2, s{st[2]}")
        a(f"v_readlane_b32 s{st[5]}, v2, s{st[3]}")
        a("s_nop 1")
        a(f"s_lshr_b32 s{st[4]}, s{st[4]}, 2")
        a(f"s_lshr_b32 s{st[5]}, s{st[5]}, 2")
        a(f"v_cmp_gt_u32 vcc, s{st[5]}, v6")
        a(f"v_cmp_lt_u32 s[{st[6]}:{st[7]}], s{st[4]}, v7")
        a(f"s_and_b64 vcc, vcc, s[{st[6]}:{st[7]}]")
        a(f"s_cmp_lt_u32 s{st[4]}, s{st[5]}")
        a(f"s_cselect_b32 s{sMK+r}, vcc_lo, 0")
        for t in range(2):
            a(f"s_ff1_i32_b32 s{st[4]}, s{sMK+r}")
            a(f"s_add_u32 s{st[5]}, s{st[4]}, s{st[2]}")
            a(f"s_cmp_eq_u32 s{sMK+r}, 0")
            a(f"s_cselect_b32 s{st[5]}, {ZROW}, s{st[5]}")
            a(f"s_lshl_b32 s{st[5]}, s{st[5]}, 10")
            a(f"v_add_u32 v10, s{st[5]}, v9")
            a(f"ds_read_b128 {vr(SR+8*r+4*t)}, v10")
            a(f"s_add_u32 s{st[4]}, s{sMK+r}, -1")
            a(f"s_and_b32 s{sMK+r}, s{sMK+r}, s{st[4]}")
    a("s_waitcnt lgkmcnt(0)")
    for r in range(5):
        for c in range(2):
            a(f"v_add_f32 v{SR+8*r+2*c}, v{SR+8*r+2*c}, v{SR+8*r+2*c+1}")
            a(f"v_add_f32 v{SR+8*r+4+2*c}, v{SR+8*r+4+2*c}, v{SR+8*r+4+2*c+1}")
            a(f"v_add_f32 v{HR+2*r+c}, v{HR+2*r+c}, v{SR+8*r+2*c}")
            a(f"v_add_f32 v{HR+2*r+c}, v{HR+2*r+c}, v{SR+8*r+4+2*c}")
    for r in range(5):
        a(f"k2_more_{r}:")
        a(f"s_cmp_eq_u32 s{sMK+r}, 0")
        a(f"s_cbranch_scc1 k2_moredone_{r}")
        a(f"s_ff1_i32_b32 s{st[4]}, s{sMK+r}")
        a(f"s_add_u32 s{st[5]}, s{st[4]}, s{sWV}")
        a(f"s_add_u32 s{st[5]}, s{st[5]}, {8*r}")
        a(f"s_lshl_b32 s{st[5]}, s{st[5]}, 10")
        a(f"v_add_u32 v10, s{st[5]}, v9")
        a(f"ds_read_b128 {vr(SR)}, v10")
        a(f"s_add_u32 s{st[4]}, s{sMK+r}, -1")
        a(f"s_and_b32 s{sMK+r}, s{sMK+r}, s{st[4]}")
        a("s_waitcnt lgkmcnt(0)")
        for c in range(2):
            a(f"v_add_f32 v{SR+2*c}, v{SR+2*c}, v{SR+2*c+1}")
            a(f"v_add_f32 v{HR+2*r+c}, v{HR+2*r+c}, v{SR+2*c}")
        a(f"s_branch k2_more_{r}")
        a(f"k2_moredone_{r}:")
    a(f"s_cmp_eq_u32 s{sSLOW}, 0")
    a("s_cbranch_scc1 k2_epi")
    a("s_waitcnt vmcnt(0)")
    a("s_barrier")
    a(f"s_add_u32 s{sB0}, s{sB0}, 2048")
    a(f"s_cmp_lt_u32 s{sB0}, {E}")
    a("s_cbranch_scc1 k2_slowfetch")
    a("s_branch k2_epi")
    a("k2_goslow:")
    a(f"s_mov_b32 s{sSLOW}, 1")
    a(f"s_mov_b32 s{sSAFE}, 1")
    a(f"s_mov_b32 s{sB0}, 0")
    a("s_waitcnt lgkmcnt(0)")
    a("s_barrier")
    a("k2_slowfetch:")
    a(f"s_lshl_b32 s{st[0]}, s{sB0}, 2")
    a(f"v_lshlrev_b32 v{vT1}, 4, v0")
    a(f"v_add_u32 v{vT1}, s{st[0]}, v{vT1}")
    a(f"buffer_load_dwordx4 {vr(A)}, v{vT1}, s[{S_DST}:{S_DST+3}], 0 offen")
    a(f"buffer_load_dwordx4 {vr(A+4)}, v{vT1}, s[{S_SRC}:{S_SRC+3}], 0 offen")
    a(f"v_lshlrev_b32 v{vT0}, 4, v0")
    init_lists(a,KT,KT+4)
    for i in range(4): a(f"v_mov_b32 v{PD+i}, 0")
    fill_region(a,HIST,256,PD)
    a(f"v_lshlrev_b32 v{EB}, 2, v0")
    a(f"v_add_u32 v{EB}, s{sB0}, v{EB}")
    a(f"s_mov_b32 s{st[0]}, {MAGIC}")
    a(f"s_mov_b32 s{st[1]}, {E}")
    a("s_waitcnt vmcnt(0)")
    for i in range(4):
        a(f"v_mul_hi_u32 v{A+8+i}, v{A+i}, s{st[0]}")
        a(f"v_subrev_u32 v{A+i}, s{sNB}, v{A+i}")
        a(f"v_lshlrev_b32 v{A+i}, 26, v{A+i}")
        a(f"v_or_b32 v{R+i}, v{A+i}, v{A+4+i}")
        if i: a(f"v_or_b32 v{R+i}, {i<<14}, v{R+i}")
    a(f"v_cmp_gt_u32 vcc, s{st[1]}, v{EB}")
    for i in range(4):
        a(f"v_cmp_eq_u32 s[{sMK+2*i}:{sMK+2*i+1}], s2, v{A+8+i}")
        a(f"s_and_b64 s[{sMK+2*i}:{sMK+2*i+1}], s[{sMK+2*i}:{sMK+2*i+1}], vcc")
    for e in range(4,16): a(f"s_mov_b64 s[{sMK+2*e}:{sMK+2*e+1}], 0")
    a("s_waitcnt lgkmcnt(0)")
    a("s_barrier")
    hist(a)
    a("s_waitcnt lgkmcnt(0)")
    a("s_barrier")
    a("s_branch k2_scan")
    a("k2_epi:")
    stamp(a,7)
    a(f"v_lshlrev_b32 v2, 3, v1")
    a(f"s_lshl_b32 s{st[3]}, s{sWV}, 9")
    a(f"s_add_u32 s{st[3]}, s{st[3]}, {QP}")
    a(f"v_add_u32 v2, s{st[3]}, v2")
    a(f"s_lshl_b32 s{st[3]}, s{sWV}, 2")
    a(f"v_mov_b32 v3, s{st[3]}")
    a(f"s_mul_i32 s{st[3]}, s{sWV}, 272")
    a(f"s_add_u32 s{st[3]}, s{st[3]}, {HH}")
    a(f"v_lshl_add_u32 v4, v1, 2, s{st[3]}")
    QR=EE; PC=EE+10; T=PD
    for r in range(5):
        a(f"ds_read_b64 {vr(QR+2*r,2)}, v2 offset:{r*8*512}")
        a(f"ds_read_b32 v{PC+r}, v3 offset:{PADC+r*32}")
    a(f"s_mov_b32 s{st[4]}, {f2u(-0.6931471805599453*2.0**-24):#x}")
    a(f"s_mov_b32 s{st[5]}, 0xffff0000")
    a(f"v_mov_b32 v5, 0x207")
    a(f"s_mov_b64 s[{st[6]}:{st[7]}], 0")
    a("s_waitcnt lgkmcnt(0)")
    HV=A
    for r in range(5):
        a(f"v_cvt_f32_u32 v{PC+r}, v{PC+r}")
        for c in range(2):
            qv=QR+2*r+c; hv=HV+2*r+c
            a(f"v_lshlrev_b32 v{T}, 16, v{qv}")
            a(f"v_and_b32 v{T+1}, s{st[5]}, v{qv}")
            a(f"v_add_f32 v{T}, v{T}, v{T+1}")
            a(f"v_exp_f32 v{T+1}, v{T}")
            a("s_nop 0")
            a(f"v_fma_f32 v{T+1}, v{T+1}, s{sSC}, s{sSC}")
            a(f"v_rcp_f32 v{T+1}, v{T+1}")
            a("s_nop 0")
            a(f"v_mul_f32 v{T+1}, v{T}, v{T+1}")
            a(f"v_fma_f32 v{hv}, -v{T+1}, v{PC+r}, v{HR+2*r+c}")
            a(f"v_cmp_class_f32 vcc, v{HR+2*r+c}, v5")
            a(f"s_or_b64 s[{st[6]}:{st[7]}], s[{st[6]}:{st[7]}], vcc")
            a(f"v_mul_f32 v{hv}, s{st[4]}, v{hv}")
        h0=HV+2*r
        a(f"v_cvt_pk_bf16_f32 v{T+4}, v{h0}, v{h0+1}")
        a(f"v_lshlrev_b32 v{T+5}, 16, v{T+4}")
        a(f"v_and_b32 v{T+6}, s{st[5]}, v{T+4}")
        a(f"v_sub_f32 v{T+5}, v{h0}, v{T+5}")
        a(f"v_sub_f32 v{T+6}, v{h0+1}, v{T+6}")
        a(f"v_cvt_pk_bf16_f32 v{T+5}, v{T+5}, v{T+6}")
        a(f"ds_write_b32 v4, v{T+4} offset:{r*8*272}")
        a(f"ds_write_b32 v4, v{T+5} offset:{r*8*272+HL-HH}")
    a(f"s_cmp_eq_u64 s[{st[6]}:{st[7]}], 0")
    a("s_cbranch_scc1 k2_fin")
    a(f"v_mov_b32 v{vT0}, {FLAG+4}")
    a(f"v_mov_b32 v{vT1}, 1")
    a(f"ds_write_b32 v{vT0}, v{vT1}")
    a("k2_fin:")
    a("s_waitcnt lgkmcnt(0)")
    a("s_barrier")
    a(f"v_mov_b32 v{vT0}, {FLAG+4}")
    a(f"ds_read_b32 v{vT1}, v{vT0}")
    a("s_waitcnt lgkmcnt(0)")
    a(f"v_readfirstlane_b32 s{st[0]}, v{vT1}")
    a(f"s_andn2_b32 s{st[0]}, s{st[0]}, s{sSAFE}")
    a(f"s_cmp_lg_u32 s{st[0]}, 0")
    a("s_cbranch_scc0 k2_final")
    a(f"s_mov_b32 s{sSAFE}, 1")
    a("s_waitcnt vmcnt(0)")
    for i in range(10): a(f"v_mov_b32 v{HR+i}, 0")
    a("s_barrier")
    a("s_branch k2_main")
    a("k2_final:")
    stamp(a,8)
    if dbg=="stamp":
        a(f"s_cmp_ge_u32 s{sWV}, 4")
        a("s_cbranch_scc0 k2_final2")
        stamp_out(a)
        a("s_endpgm")
        a("k2_final2:")
    a(f"s_cmp_ge_u32 s{sWV}, 4")
    a("s_cbranch_scc1 k2_end")
    a(f"s_lshr_b32 s{st[1]}, s{sWV}, 1")
    a("v_and_b32 v4, 31, v1")
    a("v_lshrrev_b32 v5, 5, v1")
    a(f"s_lshl_b32 s{st[2]}, s{st[1]}, 5")
    a(f"v_add_u32 v6, s{st[2]}, v4")
    a("v_mul_u32_u24 v7, 272, v6")
    a("v_lshl_add_u32 v7, v5, 4, v7")
    a(f"v_add_u32 v7, {HH}, v7")
    for ks in range(8):
        a(f"ds_read_b128 {vr(W+8*ks)}, v7 offset:{ks*32}")
        a(f"ds_read_b128 {vr(W+8*ks+4)}, v7 offset:{ks*32+HL-HH}")
    a("v_lshlrev_b32 v8, 2, v6")
    a(f"ds_read_b32 v9, v8 offset:{DEG}")
    a("s_waitcnt vmcnt(0) lgkmcnt(0)")
    OD=EE
    for ks in range(8):
        a(mfma(OD,W2F+4*ks,W+8*ks,None if ks==0 else OD))
        a(mfma(OD,W2F+4*ks,W+8*ks+4,OD))
    a("v_cvt_f32_u32 v9, v9")
    a(f"s_mov_b32 s{st[5]}, 0xffff0000")
    BU=A
    for q in range(4):
        for c in range(2):
            a(f"v_lshlrev_b32 v{BU+4*q+2*c}, 16, v{B2R+2*q+c}")
            a(f"v_and_b32 v{BU+4*q+2*c+1}, s{st[5]}, v{B2R+2*q+c}")
    a(f"s_and_b32 s{st[0]}, s{sWV}, 1")
    a(f"s_lshl_b32 s{st[0]}, s{st[0]}, 6")
    a(f"v_add_u32 v10, s{sNB}, v6")
    a("v_lshlrev_b32 v10, 7, v10")
    a("v_lshl_add_u32 v10, v5, 3, v10")
    a(f"v_add_u32 v10, s{st[0]}, v10")
    a(f"v_cmp_gt_u32 vcc, s{sNN}, v6")
    a("s_nop 3")
    for r in range(16): a(f"v_fma_f32 v{OD+r}, v9, v{BU+r}, v{OD+r}")
    for q in range(4):
        a(f"v_cvt_pk_bf16_f32 v{PD+2*q}, v{OD+4*q}, v{OD+4*q+1}")
        a(f"v_cvt_pk_bf16_f32 v{PD+2*q+1}, v{OD+4*q+2}, v{OD+4*q+3}")
    a(f"s_and_saveexec_b64 s[{st[6]}:{st[7]}], vcc")
    a("s_cbranch_execz k2_end")
    for q in range(4): a(f"buffer_store_dwordx2 {vr(PD+2*q,2)}, v10, s[{S_O}:{S_O+3}], 0 offen offset:{q*16}")
    if dbg=="stamp":
        a("s_mov_b64 exec, -1")
        a("s_waitcnt vmcnt(0)")
        stamp(a,9)
        stamp_out(a)
    a("k2_end:")
    a("s_endpgm")
    return a
```

```python
import sys
sys.path.insert(0,"gen")
from gen_tile import *
ks.clear(); args.clear()
def stage_v(j, opt, last=False):
    Dc=D[j&1]; Dn=D[(j+1)&1]; jn=(j+1)&3
    ex=[f"v_exp_f32 v{EE+i}, v{Dc+i}" for i in range(16)]
    ch=chain(Dn,jn)
    dd=[f"v_pk_fma_f32 {vr(EE+2*i,2)}, {vr(EE+2*i,2)}, s[{sSC}:{sSC+1}], s[{sSC}:{sSC+1}]" for i in range(8)]
    pm=[f"v_pk_mul_f32 {vr(PD+2*k,2)}, {vr(EE+4*k,2)}, {vr(EE+4*k+2,2)}" for k in range(4)]
    n1=[f"v_pk_mul_f32 {vr(PN+2*k,2)}, {vr(Dc+4*k,2)}, {vr(EE+4*k+2,2)}" for k in range(4)]
    rc=[f"v_rcp_f32 v{PD+i}, v{PD+i}" for i in range(8)]
    n2=[f"v_pk_fma_f32 {vr(PN+2*k,2)}, {vr(Dc+4*k+2,2)}, {vr(EE+4*k,2)}, {vr(PN+2*k,2)}" for k in range(4)]
    ac=[f"v_pk_fma_f32 {vr(ACC+2*j,2)}, {vr(PN+2*k,2)}, {vr(PD+2*k,2)}, {vr(ACC+2*j,2)}" for k in range(4)]
    q=[mfma(Dn,ACF,FQ+2*jn,Dn)]
    if opt=="base":
        return interleave(ex,ch,3)+dd+pm+n1+[rc[0]]+q+rc[1:]+n2+ac
    if opt=="noac":
        ac2=[f"v_pk_fma_f32 {vr(KT+2*k,2)}, {vr(PN+2*k,2)}, {vr(PD+2*k,2)}, {vr(KT+2*k,2)}" for k in range(4)]
        return interleave(ex,ch,3)+dd+pm+n1+[rc[0]]+q+rc[1:]+n2+ac2
    if opt=="ilac":
        tail=[n2[0],n2[1],ac[0],n2[2],ac[1],n2[3],ac[2],ac[3]]
        return interleave(ex,ch,3)+dd+pm+n1+[rc[0]]+q+rc[1:]+tail
    if opt=="n2early":
        return interleave(ex,ch,3)+dd+pm+n1+n2+q+rc+ac
    if opt=="n2early_il":
        tail=rc[:6]+[rc[6],ac[0],rc[7],ac[1],ac[2],ac[3]]
        return interleave(ex,ch,3)+dd+pm+n1+n2+q+tail
    if opt=="mf_first":
        e1=interleave(ex,ch,3)
        mix=[dd[0],dd[1],dd[2],dd[3],pm[0],dd[4],dd[5],pm[1],n1[0],dd[6],dd[7],n1[1],pm[2],pm[3],n1[2],n1[3]]
        return e1+mix+n2+q+rc+ac
    if opt=="qlate":
        return interleave(ex,ch,3)+dd+pm+n1+n2+rc[:1]+q+rc[1:]+ac
    if opt=="noq":
        return interleave(ex,ch,3)+dd+pm+n1+n2+rc+ac
    if opt=="nomfma":
        return ex+dd+pm+n1+n2+rc+ac
    if opt=="il2":
        return interleave(ex,ch,3,0)[:]+dd+pm+n1+n2+q+rc+ac
for opt in ("base","noac","ilac","n2early","n2early_il","mf_first","qlate","noq","nomfma"):
    L=[]
    for j in range(4): L+=stage_v(j,opt)
    variant("V_"+opt,L)
build("tile2.s", ks)
open("tile2.args","w").write(" ".join(args))
```

```python
from common import *
KNAME="gather_scatter__edge_featured_mpnn_mpnn__graph_kernel"
FL_OFF=WF_OFF+65536
LCAP=3328
HIST=0; DEG=256; PADC=512; FLAG=768; BASE=832
XL=1088; EL=XL+LCAP*4; QT=EL+LCAP*4; QP=QT+LCAP; XS=QP+41*512; XS_W=4160
ES=86016; assert XS+8*XS_W<=ES
SEG=ES+8*2048; ZROW=57; LDS_BYTES=SEG+58*1024
HH=XS; HL=HH+40*272; assert HL+64*272<=SEG
WST=XS
CNT=SEG; IMG=SEG+1024; IMG_S=144; assert IMG+256*IMG_S<=SEG+ZROW*1024
SENT=0x7FFFFF00
XBIAS=3120
W=16; A=96; D=[116,132]; EE=148; PD=164; PN=172; ACC=180; FQ=188; ACF=196; ACS=200; QB=204; QA=208; KT=212
XO=220; EO=224; vXLa=225; vELa=226; vQTa=227; QTV=228
vXc=232; vEc=233; vAx01=234; vAx23=235; vAe=236; vQc=237; vSegB=238; vPN=239; vPA=240; vT0=241; vT1=242; vT2=243
HR=244
NVGPR=254
vS=254
S_X=4; S_E=8; S_T=12; S_W=16; S_O=20; S_B1=24; S_B2=28; S_SRC=32; S_DST=36
sSC=40; sWV=42; sNB=43; sNN=44; sNT=45; sTOT=46; sSLOW=47; sMK=48
S_WR=68; S_DBG=72; S_FL=76
sSAFE=80; sB0=81; sCNT=82; sXO=83; sXS=86; sES=87; sME=88; sNW=89
st=[90,91,92,93,94,95,96,97,98,99]
XBYTES=N*128; EBYTES=E*32
DBG=[None]
def Wf(j,k): return W+(j*5+k)*4
def mfma(d,a_,b_,c=None):
    cs = "0" if c is None else vr(c,16)
    return f"v_mfma_f32_32x32x16_bf16 {vr(d,16)}, {vr(a_)}, {vr(b_)}, {cs}"
def chain(Dn,j):
    L=[mfma(Dn,A+0,Wf(j,0),None)]
    for k in range(1,4): L.append(mfma(Dn,A+4*k,Wf(j,k),Dn))
    L.append(mfma(Dn,A+16,Wf(j,4),Dn))
    return L
def qmf(Dn,j,typ):
    return mfma(Dn,ACF,FQ+2*j,Dn) if typ=="F" else mfma(Dn,ACS,QB,Dn)
def dstamp(a,slot):
    a(f"s_cmp_eq_u32 s{sWV}, 0")
    a(f"s_cbranch_scc0 ds_skip_{slot}")
    a("s_memrealtime s[100:101]")
    a("s_waitcnt lgkmcnt(0)")
    a("s_load_dwordx2 s[98:99], s[0:1], 72")
    a("s_waitcnt lgkmcnt(0)")
    a("v_mov_b32 v254, s100")
    a("v_mov_b32 v255, 0")
    a("s_mov_b64 s[96:97], exec")
    a("s_mov_b64 exec, 1")
    a(f"global_atomic_umax v255, v254, s[98:99] offset:{slot*4+4}")
    a("s_nop 1")
    a("v_not_b32 v254, v254")
    a("s_nop 1")
    a(f"global_atomic_umax v255, v254, s[98:99] offset:{slot*4}")
    a("s_mov_b64 exec, s[96:97]")
    a(f"ds_skip_{slot}:")
def stamp(a,idx,extra=None):
    if DBG[0]=="dbgtime":
        m={0:2,3:4,4:6,8:8,9:10,10:12}
        if idx in m: dstamp(a,m[idx])
        return
    if DBG[0]!="stamp": return
    a("s_memrealtime s[100:101]")
    a("s_waitcnt lgkmcnt(0)")
    a(f"v_writelane_b32 v{vS}, s100, {idx}")
    if extra is not None:
        a("s_memtime s[100:101]")
        a("s_waitcnt lgkmcnt(0)")
        a(f"v_writelane_b32 v{vS}, s100, {extra}")
def stamp_out(a):
    if DBG[0]!="stamp": return
    a(f"v_writelane_b32 v{vS}, s{sNT}, 14")
    a("s_load_dwordx2 s[92:93], s[0:1], 80")
    a("s_waitcnt lgkmcnt(0)")
    a(f"s_add_u32 s92, s92, {(17<<20)}")
    a("s_addc_u32 s93, s93, 0")
    a("s_and_b32 s93, s93, 0xffff")
    a("s_mov_b32 s94, 0x100000")
    a("s_mov_b32 s95, 0x20000")
    a("v_lshrrev_b32 v2, 6, v0")
    a("s_lshl_b32 s96, s2, 4")
    a("v_add_u32 v2, s96, v2")
    a("v_lshlrev_b32 v2, 6, v2")
    a("v_and_b32 v3, 63, v0")
    a("v_lshl_add_u32 v2, v3, 2, v2")
    a("v_cmp_gt_u32 vcc, 32, v3")
    a("s_and_saveexec_b64 s[96:97], vcc")
    a("v_cmp_gt_u32 vcc, 16, v3")
    a("s_and_b64 exec, exec, vcc")
    a(f"buffer_store_dword v{vS}, v2, s[92:95], 0 offen")
    a("s_mov_b64 exec, s[96:97]")

def dma_x():
    L=[]
    for i in range(4):
        so = f"s{sXO+i}" if i<3 else "0"
        off = f" offset:{i*1040}" if i else ""
        L.append(f"buffer_load_dwordx4 v{XO+i}, s[{S_X}:{S_X+3}], {so} offen{off} lds")
    return L
def dma_e(slot=None, filler="s_nop 0"):
    m = f"s_mov_b32 m0, s{sME}" if slot is None else f"s_add_u32 m0, s{sES}, {slot*1024}"
    return [[m,filler,f"buffer_load_dwordx4 v{EO}, s[{S_E}:{S_E+3}], 0 offen nt lds", f"s_mov_b32 m0, s{sXS}"]]
def read_A():
    return [f"ds_read_b128 {vr(A+0)}, v{vAx01}", f"ds_read_b128 {vr(A+4)}, v{vAx01} offset:32",
            f"ds_read_b128 {vr(A+8)}, v{vAx23} offset:64", f"ds_read_b128 {vr(A+12)}, v{vAx23} offset:96",
            f"ds_read_b128 {vr(A+16)}, v{vAe}"]
def off_calc():
    return [f"v_add_u32 v{XO+i}, v{XO+i}, v{vXc}" for i in range(4)]+[f"v_add_u32 v{EO}, v{EO}, v{vEc}"]
def flat(L):
    out=[]
    for x in L: out+= x if isinstance(x,list) else [x]
    return out

def stage(j, typ, variant, last, side_exp=[], side_pk=[], head=[], side_late=[]):
    Dc=D[j&1]; Dn=D[(j+1)&1]; jn=(j+1)&3
    L=list(head)
    if typ=="S" and not last:
        L+=[f"ds_read_b32 v{QB+i}, v{QA+i} offset:{jn*128}" for i in range(4)]
    ex=[f"v_exp_f32 v{EE+i}, v{Dc+i}" for i in range(16)]
    ph1=interleave(ex,chain(Dn,jn),3)
    L+=weave(ph1,side_exp,1)
    pk1=[f"v_pk_fma_f32 {vr(EE+2*i,2)}, {vr(EE+2*i,2)}, s[{sSC}:{sSC+1}], s[{sSC}:{sSC+1}]" for i in range(8)]
    q=[] if last else [qmf(Dn,jn,typ)]
    wq=[f"s_waitcnt lgkmcnt({5 if j==2 else 0})"] if (typ=="S" and not last) else []
    if variant=="pair":
        pk1+=[f"v_pk_mul_f32 {vr(PD+2*k,2)}, {vr(EE+4*k,2)}, {vr(EE+4*k+2,2)}" for k in range(4)]
        pk1+=[f"v_pk_mul_f32 {vr(PN+2*k,2)}, {vr(Dc+4*k,2)}, {vr(EE+4*k+2,2)}" for k in range(4)]
        L+=weave(pk1,side_pk,1)
        rc=[f"v_rcp_f32 v{PD+i}, v{PD+i}" for i in range(8)]
        L+=[rc[0]]+wq+q+weave(rc[1:],side_late,1)
        L+=[f"v_pk_fma_f32 {vr(PN+2*k,2)}, {vr(Dc+4*k+2,2)}, {vr(EE+4*k,2)}, {vr(PN+2*k,2)}" for k in range(4)]
        if typ=="F":
            L+=[f"v_pk_fma_f32 {vr(ACC+2*j,2)}, {vr(PN+2*k,2)}, {vr(PD+2*k,2)}, {vr(ACC+2*j,2)}" for k in range(4)]
            return L
        L+=[f"v_pk_mul_f32 {vr(PN+2*k,2)}, {vr(PN+2*k,2)}, {vr(PD+2*k,2)}" for k in range(4)]
    else:
        L+=weave(pk1,side_pk,1)
        rc=[f"v_rcp_f32 v{EE+i}, v{EE+i}" for i in range(16)]
        L+=[rc[0]]+wq+q+weave(rc[1:],side_late,1)
        L+=[f"v_pk_mul_f32 {vr(PN+2*k,2)}, {vr(Dc+4*k,2)}, {vr(EE+4*k,2)}" for k in range(4)]
        L+=[f"v_pk_fma_f32 {vr(PN+2*k,2)}, {vr(Dc+4*k+2,2)}, {vr(EE+4*k+2,2)}, {vr(PN+2*k,2)}" for k in range(4)]
    for k in range(4):
        L.append(f"ds_write_b64 v{KT+2*k+1}, {vr(ACC+2*j,2)} offset:{j*256}")
        L.append(f"v_pk_fma_f32 {vr(ACC+2*j,2)}, {vr(ACC+2*j,2)}, {vr(KT+2*k,2)}, {vr(PN+2*k,2)} op_sel_hi:[1,0,1]")
    return L

def tile(typ, variant):
    L=[]
    lists=[f"ds_read_b128 {vr(XO)}, v{vXLa}", f"ds_read_b32 v{EO}, v{vELa}"]
    qtread=[f"ds_read_b128 {vr(QTV)}, v{vQTa}"]
    incs=[f"v_add_u32 v{vXLa}, 64, v{vXLa}", f"v_add_u32 v{vELa}, 64, v{vELa}", f"v_add_u32 v{vQTa}, 16, v{vQTa}"]
    srdsel=[f"s_cmp_gt_u32 s{sCNT}, 2", f"s_cselect_b32 s{S_E+2}, {EBYTES}, 0"]
    if typ=="F":
        L.append(qmf(D[0],0,"F"))
        L+=lists+qtread+incs+srdsel+["s_nop 3"]
    else:
        L+=[f"v_add_u32 v{QA+i}, v{QTV+i}, v{vQc}" for i in range(4)]
        L+=[f"ds_read_b32 v{QB+i}, v{QA+i}" for i in range(4)]
        L+=[f"ds_read_b32 v{FQ+2*j}, v{QA+3} offset:{j*128}" for j in range(4)]
        L+=[f"v_cmp_eq_u32 s[{st[0]}:{st[1]}], v{QTV}, v{vPN}"]
        L+=[f"v_cmp_eq_u32 s[{st[0]+2*k}:{st[1]+2*k}], v{QTV+k}, v{QTV+k-1}" for k in range(1,4)]
        L+=[f"v_mov_b32 v{KT+1}, v{vPA}"]
        L+=[f"v_lshl_add_u32 v{KT+2*k+1}, v{QTV+k-1}, 1, v{vSegB}" for k in range(1,4)]
        L+=[f"v_lshl_add_u32 v{vPA}, v{QTV+3}, 1, v{vSegB}", f"v_mov_b32 v{vPN}, v{QTV+3}"]
        L+=[f"v_cndmask_b32_e64 v{KT+2*k}, 0, 1.0, s[{st[0]+2*k}:{st[1]+2*k}]" for k in range(4)]
        L+=["s_waitcnt lgkmcnt(0)", qmf(D[0],0,"S")]
        L+=lists+qtread+incs+srdsel+["s_nop 3"]
    L+=stage(0,typ,variant,False)
    head1=["s_waitcnt lgkmcnt(0)"]
    side1=[f"v_cmp_ne_u32 vcc, v{QTV+3}, v{vPN}"]+off_calc()
    L+=stage(1,typ,variant,False,side_exp=side1,head=head1)
    rA=read_A()
    L+=stage(2,typ,variant,False,side_pk=[["s_waitcnt vmcnt(1)",rA[0]]]+rA[1:])
    dx=dma_x(); de=dma_e(None,f"s_xor_b32 s{sME}, s{sME}, 1024")
    L+=stage(3,typ,variant,True,head=["s_waitcnt lgkmcnt(0)"],side_exp=dx[:3],side_pk=[dx[3]]+de,
             side_late=[f"v_xor_b32 v{vAe}, 1024, v{vAe}"])
    return L

def main_loop(a,variant):
    tag=variant
    sPW=st[6]
    a(f"s_lshr_b32 s{st[0]}, s{sNT}, 3")
    a(f"s_and_b32 s{st[1]}, s{sNT}, 7")
    a(f"s_cmp_lt_u32 s{sWV}, s{st[1]}")
    a(f"s_cselect_b32 s{st[2]}, 1, 0")
    a(f"s_add_u32 s{sNW}, s{st[0]}, s{st[2]}")
    a(f"s_mul_i32 s{sPW}, s{sWV}, s{st[0]}")
    a(f"s_min_u32 s{st[2]}, s{sWV}, s{st[1]}")
    a(f"s_add_u32 s{sPW}, s{sPW}, s{st[2]}")
    a(f"s_cmp_eq_u32 s{sNW}, 0")
    a(f"s_cbranch_scc1 L_mdone_{tag}")
    a(f"s_sub_u32 s{sCNT}, s{sNW}, 1")
    a(f"s_lshl_b32 s{st[3]}, s{sPW}, 3")
    a(f"s_lshl_b32 s{st[4]}, s{sNW}, 2")
    a("v_lshrrev_b32 v2, 3, v1")
    a("v_lshrrev_b32 v3, 2, v2")
    a("v_and_b32 v4, 3, v2")
    a(f"v_mul_u32_u24 v3, s{st[4]}, v3")
    a(f"v_add3_u32 v3, v3, v4, s{st[3]}")
    a(f"v_lshlrev_b32 v3, 4, v3")
    a(f"v_add_u32 v{vXLa}, {XL}, v3")
    a("v_lshrrev_b32 v2, 5, v1")
    a(f"v_mul_u32_u24 v3, s{st[4]}, v2")
    a(f"v_add_u32 v3, s{st[3]}, v3")
    a("v_bfe_u32 v4, v1, 1, 4")
    a("v_lshlrev_b32 v4, 2, v4")
    a("v_lshl_add_u32 v4, v3, 4, v4")
    a(f"v_add_u32 v{vELa}, {EL}, v4")
    a("v_lshlrev_b32 v4, 2, v3")
    a(f"v_add_u32 v{vQTa}, {QT}, v4")
    a(f"ds_read_b128 {vr(XO)}, v{vXLa}")
    a(f"ds_read_b32 v{EO}, v{vELa}")
    a(f"ds_read_b128 {vr(QTV)}, v{vQTa}")
    a(f"s_lshl_b32 s{st[5]}, s{sWV}, 11")
    a(f"s_add_u32 s{st[5]}, s{st[5]}, {SEG}")
    a("v_and_b32 v4, 31, v1")
    a("v_lshlrev_b32 v4, 3, v4")
    a("v_lshl_add_u32 v4, v2, 10, v4")
    a(f"v_add_u32 v{vSegB}, s{st[5]}, v4")
    a(f"v_and_b32 v{vAe}, 0xfffffbff, v{vAe}")
    a(f"s_mov_b32 s{S_E+2}, {EBYTES}")
    for j in range(4): a(f"v_mov_b64 {vr(ACC+2*j,2)}, 0")
    a("s_waitcnt lgkmcnt(0)")
    for x in off_calc(): a(x)
    for x in flat(dma_e(0))+["s_nop 0"]+dma_x(): a(x)
    a(f"ds_read_b32 v{EO}, v{vELa} offset:64")
    a(f"ds_read_b128 {vr(XO)}, v{vXLa} offset:64")
    a(f"v_mov_b32 v{vPN}, v{QTV}")
    a(f"v_lshl_add_u32 v{vPA}, v{QTV}, 1, v{vSegB}")
    a(f"v_add_u32 v{QA}, v{QTV}, v{vQc}")
    for j in range(4): a(f"ds_read_b32 v{FQ+2*j}, v{QA} offset:{j*128}")
    a(f"v_cmp_ne_u32 vcc, v{QTV+3}, v{vPN}")
    a(f"s_cmp_gt_u32 s{sCNT}, 0")
    a(f"s_cselect_b32 s{S_E+2}, {EBYTES}, 0")
    a("s_waitcnt lgkmcnt(0)")
    for x in off_calc(): a(x)
    for x in flat(dma_e(1)): a(x)
    a("s_waitcnt vmcnt(1)")
    for x in read_A(): a(x)
    a(f"ds_read_b32 v{EO}, v{vELa} offset:128")
    a(f"s_cmp_gt_u32 s{sCNT}, 1")
    a(f"s_cselect_b32 s{S_E+2}, {EBYTES}, 0")
    a("s_waitcnt lgkmcnt(0)")
    a(f"v_add_u32 v{EO}, v{EO}, v{vEc}")
    for x in dma_x()+flat(dma_e(0)): a(x)
    for x in chain(D[0],0): a(x)
    a(f"v_add_u32 v{vXLa}, 128, v{vXLa}")
    a(f"v_add_u32 v{vELa}, 192, v{vELa}")
    a(f"v_add_u32 v{vQTa}, 16, v{vQTa}")
    a(f"v_xor_b32 v{vAe}, 1024, v{vAe}")
    a(f"s_add_u32 s{sME}, s{sES}, 1024")
    if DBG[0]=="stamp" and tag=="pair":
        a("s_memtime s[100:101]"); a("s_waitcnt lgkmcnt(0)"); a(f"v_writelane_b32 v{vS}, s100, 15")
    if variant=="pair":
        a(f"s_cbranch_vccnz L_S_{tag}")
        a(f"L_F_{tag}:")
        a.extend(tile("F",variant))
        a(f"s_sub_u32 s{sCNT}, s{sCNT}, 1")
        a(f"s_cbranch_scc1 L_fin_{tag}")
        a(f"s_cbranch_vccz L_F_{tag}")
    a(f"L_S_{tag}:")
    a.extend(tile("S",variant))
    a(f"s_sub_u32 s{sCNT}, s{sCNT}, 1")
    a(f"s_cbranch_scc1 L_fin_{tag}")
    if variant=="pair":
        a(f"s_cbranch_vccz L_F_{tag}")
    a(f"s_branch L_S_{tag}")
    a(f"L_fin_{tag}:")
    for j in range(4): a(f"ds_write_b64 v{vPA}, {vr(ACC+2*j,2)} offset:{j*256}")
    a(f"L_mdone_{tag}:")

def masked_fill(a, count, addr_v, data, offset):
    if count>=512:
        a(f"ds_write_b128 v{addr_v}, {vr(data)} offset:{offset}"); return
    a(f"v_cmp_gt_u32 vcc, {count}, v0")
    a(f"s_and_saveexec_b64 s[{st[8]}:{st[9]}], vcc")
    a(f"ds_write_b128 v{addr_v}, {vr(data)} offset:{offset}")
    a(f"s_mov_b64 exec, s[{st[8]}:{st[9]}]")
def fill_region(a, start, nbytes, data):
    n=nbytes//16; assert nbytes%16==0
    o=start
    big = start+nbytes>65535
    if big:
        a(f"v_lshlrev_b32 v{vT2}, 4, v0")
        a(f"v_add_u32 v{vT2}, {start}, v{vT2}")
        o=0
    while n>0:
        masked_fill(a,min(n,512),vT2 if big else vT0,data,o); o+=512*16; n-=512
def init_lists(a,r_sent,r_dummy):
    for i in range(4): a(f"v_mov_b32 v{r_sent+i}, {SENT:#x}")
    fill_region(a,XL,2*LCAP*4,r_sent)
    for i in range(4): a(f"v_mov_b32 v{r_dummy+i}, {40*512}")
    fill_region(a,QT,LCAP,r_dummy)

def phase_a(a):
    PV=16
    a(f"s_cmp_ge_u32 s{sWV}, 6")
    a("s_cbranch_scc1 pa_pref")
    a(f"s_mul_i32 s{st[0]}, s2, 10000")
    a("v_lshlrev_b32 v6, 4, v0")
    a(f"v_add_u32 v6, s{st[0]}, v6")
    a(f"buffer_load_dwordx4 v[16:19], v6, s[{S_DST}:{S_DST+3}], 0 offen")
    a(f"buffer_load_dwordx4 v[20:23], v6, s[{S_SRC}:{S_SRC+3}], 0 offen")
    a("v_cmp_gt_u32 vcc, 241, v0")
    a(f"s_and_saveexec_b64 s[{st[6]}:{st[7]}], vcc")
    a(f"s_cbranch_execz pa_r1skip")
    a(f"s_movk_i32 s{st[1]}, 6144")
    a(f"buffer_load_dwordx4 v[24:27], v6, s[{S_DST}:{S_DST+3}], s{st[1]} offen")
    a(f"buffer_load_dwordx4 v[28:31], v6, s[{S_SRC}:{S_SRC+3}], s{st[1]} offen")
    a("pa_r1skip:")
    a(f"s_mov_b64 exec, s[{st[6]}:{st[7]}]")
    a(f"s_cmp_eq_u32 s{sWV}, 5")
    a("s_cbranch_scc0 pa_now")
    a("s_cmp_lt_u32 s2, 208")
    a("s_cbranch_scc0 pa_now")
    a(f"s_and_b32 s{st[0]}, s2, 3")
    a(f"s_lshl_b32 s{st[0]}, s{st[0]}, 6")
    a(f"v_add_u32 v32, s{st[0]}, v1")
    a("v_lshrrev_b32 v33, 2, v32")
    a("v_and_b32 v34, 3, v32")
    a("v_and_b32 v35, 31, v33")
    a("v_lshrrev_b32 v36, 5, v33")
    a("v_lshlrev_b32 v37, 3, v36")
    a("v_lshl_add_u32 v37, v34, 1, v37")
    a("s_cmp_lt_u32 s2, 80")
    a("s_cbranch_scc1 pa_w_main")
    a("s_cmp_lt_u32 s2, 144")
    a("s_cbranch_scc1 pa_w_b")
    a(f"s_sub_u32 s{st[1]}, s2, 144")
    a(f"s_lshr_b32 s{st[1]}, s{st[1]}, 2")
    a(f"s_add_u32 s{st[2]}, s{st[1]}, 36")
    a(f"s_lshr_b32 s{st[3]}, s{st[1]}, 3")
    a(f"s_and_b32 s{st[4]}, s{st[1]}, 7")
    a(f"s_lshl_b32 s{st[4]}, s{st[4]}, 4")
    a(f"s_lshl_b32 s{st[3]}, s{st[3]}, 5")
    srd(a,S_WR,60,128*64*2)
    a(f"s_movk_i32 s{st[5]}, 128")
    a(f"s_mov_b32 s{sB0}, 0")
    a("s_branch pa_w_go")
    a("pa_w_b:")
    a(f"s_sub_u32 s{st[1]}, s2, 80")
    a(f"s_lshr_b32 s{st[1]}, s{st[1]}, 2")
    a(f"s_add_u32 s{st[2]}, s{st[1]}, 20")
    a(f"s_lshr_b32 s{st[3]}, s{st[1]}, 2")
    a(f"s_and_b32 s{st[4]}, s{st[1]}, 3")
    a(f"s_lshl_b32 s{st[4]}, s{st[4]}, 4")
    a(f"s_add_u32 s{st[4]}, s{st[4]}, 64")
    a(f"s_lshl_b32 s{st[3]}, s{st[3]}, 5")
    srd(a,S_WR,56,144*128*2)
    a(f"s_movk_i32 s{st[5]}, 256")
    a(f"s_mov_b32 s{sB0}, 0")
    a("s_branch pa_w_go")
    a("pa_w_main:")
    a(f"s_lshr_b32 s{st[2]}, s2, 2")
    a(f"s_mul_i32 s{st[3]}, s{st[2]}, 13")
    a(f"s_lshr_b32 s{st[3]}, s{st[3]}, 6")
    a(f"s_mul_i32 s{st[4]}, s{st[3]}, 5")
    a(f"s_sub_u32 s{st[4]}, s{st[2]}, s{st[4]}")
    a(f"s_cmp_eq_u32 s{st[4]}, 4")
    a(f"s_cselect_b32 s{st[4]}, 8, s{st[4]}")
    a(f"s_lshl_b32 s{st[4]}, s{st[4]}, 4")
    a(f"s_lshl_b32 s{st[3]}, s{st[3]}, 5")
    srd(a,S_WR,56,144*128*2)
    a(f"s_movk_i32 s{st[5]}, 256")
    a(f"s_mov_b32 s{sB0}, 1")
    a("pa_w_go:")
    a(f"v_add_u32 v37, s{st[4]}, v37")
    a(f"v_add_u32 v35, s{st[3]}, v35")
    a(f"v_mul_lo_u32 v37, v37, s{st[5]}")
    a("v_lshl_add_u32 v37, v35, 1, v37")
    a(f"v_add_u32 v38, s{st[5]}, v37")
    a(f"buffer_load_ushort v39, v37, s[{S_WR}:{S_WR+3}], 0 offen")
    a(f"buffer_load_ushort v40, v38, s[{S_WR}:{S_WR+3}], 0 offen")
    a(f"s_lshl_b32 s{st[2]}, s{st[2]}, 10")
    a(f"v_lshl_add_u32 v41, v32, 2, s{st[2]}")
    a("s_waitcnt vmcnt(0)")
    a("v_lshl_or_b32 v42, v40, 16, v39")
    a(f"s_cmp_eq_u32 s{sB0}, 0")
    a("s_cbranch_scc1 pa_w_st")
    a("v_lshlrev_b32 v39, 16, v39")
    a("v_lshlrev_b32 v40, 16, v40")
    a(f"s_mov_b32 s{st[1]}, {f2u(NEG_LOG2E):#x}")
    a(f"v_mul_f32 v39, s{st[1]}, v39")
    a(f"v_mul_f32 v40, s{st[1]}, v40")
    a("v_cvt_pk_bf16_f32 v42, v39, v40")
    a("pa_w_st:")
    a(f"buffer_store_dword v42, v41, s[{S_W}:{S_W+3}], 0 offen sc1")
    a("s_branch pa_now")
    a("pa_pref:")
    a(f"s_lshr_b32 s{st[0]}, s2, 3")
    a(f"s_mul_i32 s{st[0]}, s{st[0]}, 40000")
    a(f"s_sub_u32 s{st[1]}, s{sWV}, 6")
    a(f"s_mul_i32 s{st[2]}, s{st[1]}, 20480")
    a(f"s_add_u32 s{st[0]}, s{st[0]}, s{st[2]}")
    a(f"s_add_u32 s{st[0]}, s{st[0]}, {XBIAS}")
    a("v_lshlrev_b32 v6, 4, v1")
    for k in range(20):
        if k and k%4==0: a(f"s_add_u32 s{st[0]}, s{st[0]}, 4096")
        a(f"buffer_load_dwordx4 v[16:19], v6, s[{S_X}:{S_X+3}], s{st[0]} offen offset:{(k%4)*1024}")
    if 'nopf' not in OPT:
        a(f"s_mul_i32 s{st[0]}, s2, 80000")
        a(f"s_mul_i32 s{st[2]}, s{st[1]}, 40960")
        a(f"s_add_u32 s{st[0]}, s{st[0]}, s{st[2]}")
        for k in range(36):
            if k and k%4==0: a(f"s_add_u32 s{st[0]}, s{st[0]}, 4096")
            a(f"buffer_load_dwordx4 v[20:23], v6, s[{S_E}:{S_E+3}], s{st[0]} offen offset:{(k%4)*1024} nt")
    a("pa_now:")

def phase_a2(a):
    a(f"s_cmp_ge_u32 s{sWV}, 6")
    a("s_cbranch_scc1 pa_b1")
    a(f"s_mov_b32 s{st[0]}, {MAGIC}")
    a(f"s_movk_i32 s{st[1]}, 625")
    a(f"s_movk_i32 s{st[2]}, {IMG_S}")
    a(f"s_mov_b32 s{st[3]}, {CNT}")
    a(f"s_mov_b32 s{st[4]}, {IMG+4}")
    a("v_mov_b32 v5, 1")
    def rnd(r,dv,sv,tv):
        for i in range(4): a(f"v_mul_hi_u32 v{tv+i}, v{dv+i}, s{st[0]}")
        for i in range(4):
            a(f"v_lshl_add_u32 v{tv+4+i}, v{tv+i}, 2, s{st[3]}")
            a(f"ds_add_rtn_u32 v{tv+4+i}, v{tv+4+i}, v5")
        for i in range(4):
            a(f"v_mad_u32_u24 v{tv+8+i}, v{tv+i}, s{st[1]}, 15")
            a(f"v_lshrrev_b32 v{tv+8+i}, 4, v{tv+8+i}")
            a(f"v_sub_u32 v{tv+8+i}, v{dv+i}, v{tv+8+i}")
            a(f"v_lshlrev_b32 v{tv+8+i}, 26, v{tv+8+i}")
            a(f"v_mul_u32_u24 v{tv+12+i}, s{st[2]}, v{tv+i}")
            a(f"v_or3_b32 v{tv+8+i}, v{tv+8+i}, v7, v{sv+i}")
            if i: a(f"v_or_b32 v{tv+8+i}, {i<<14}, v{tv+8+i}")
    def wr(tv):
        for i in range(4):
            a(f"v_min_u32 v{tv+4+i}, 31, v{tv+4+i}")
            a(f"v_lshl_add_u32 v{tv+4+i}, v{tv+4+i}, 2, v{tv+12+i}")
            a(f"v_add_u32 v{tv+4+i}, s{st[4]}, v{tv+4+i}")
            a(f"ds_write_b32 v{tv+4+i}, v{tv+8+i}")
    a("v_lshlrev_b32 v7, 16, v0")
    a("s_waitcnt vmcnt(0)")
    rnd(0,16,20,32)
    a("v_cmp_gt_u32 vcc, 241, v0")
    a(f"s_and_saveexec_b64 s[{st[6]}:{st[7]}], vcc")
    a("s_cbranch_execz pa_r1done")
    a(f"v_add_u32 v7, {(4*384)<<14}, v7")
    rnd(1,24,28,48)
    a("s_waitcnt lgkmcnt(0)")
    wr(48)
    a("pa_r1done:")
    a(f"s_mov_b64 exec, s[{st[6]}:{st[7]}]")
    a("s_waitcnt lgkmcnt(0)")
    wr(32)
    a("s_waitcnt lgkmcnt(0)")
    a("pa_b1:")
    a("s_barrier")
    a(f"s_cmp_ge_u32 s{sWV}, 6")
    a("s_cbranch_scc1 pa_b2")
    a("v_lshrrev_b32 v4, 3, v0")
    a("v_and_b32 v5, 7, v0")
    a(f"v_mul_u32_u24 v6, {IMG_S}, v4")
    a("v_lshl_add_u32 v6, v5, 4, v6")
    a(f"v_add_u32 v6, {IMG}, v6")
    a("v_lshlrev_b32 v7, 2, v4")
    a(f"v_add_u32 v7, {CNT}, v7")
    for r in range(6):
        if r==5:
            a("v_cmp_gt_u32 vcc, 128, v0")
            a(f"s_and_saveexec_b64 s[{st[6]}:{st[7]}], vcc")
        a(f"ds_read_b128 v[{16+4*r}:{19+4*r}], v6 offset:{r*48*IMG_S}")
        a(f"ds_read_b32 v{40+r}, v7 offset:{r*48*4}")
    a(f"s_mov_b64 exec, s[{st[6]}:{st[7]}]")
    a("v_lshlrev_b32 v8, 15, v4")
    a("v_lshl_add_u32 v8, v5, 4, v8")
    a("v_cmp_eq_u32 vcc, 0, v5")
    a(f"s_lshl_b32 s{st[0]}, s2, 7")
    a("s_waitcnt lgkmcnt(0)")
    for r in range(6): a(f"v_cndmask_b32 v{16+4*r}, v{16+4*r}, v{40+r}, vcc")
    for r in range(6):
        if r==5:
            a("v_cmp_gt_u32 vcc, 128, v0")
            a(f"s_and_saveexec_b64 s[{st[6]}:{st[7]}], vcc")
            a("s_cbranch_execz pa_st5")
        a(f"buffer_store_dwordx4 v[{16+4*r}:{19+4*r}], v8, s[{S_T}:{S_T+3}], s{st[0]} offen sc1")
        if r<5: a(f"s_add_u32 s{st[0]}, s{st[0]}, {48*32768}")
    a("pa_st5:")
    a(f"s_mov_b64 exec, s[{st[6]}:{st[7]}]")
    a("s_waitcnt vmcnt(0)")
    a("pa_b2:")
    a("s_barrier")

def gen(dbg=None):
    DBG[0]=dbg
    a=Asm()
    R=D[0]; HD=PD; RANK=EE; EB=QA; WB=PN
    a("s_cmp_ge_u32 s2, 256")
    a("s_cbranch_scc1 k_end")
    if dbg=="stamp": a(f"v_mov_b32 v{vS}, 0")
    if dbg!="dbgtime": stamp(a,0,11)
    a("s_load_dwordx16 s[48:63], s[0:1], 0")
    a("s_load_dwordx4 s[64:67], s[0:1], 64")
    a("s_load_dwordx2 s[92:93], s[0:1], 80")
    a("v_and_b32 v1, 63, v0")
    a("v_lshrrev_b32 v2, 6, v0")
    a("s_mul_i32 s43, s2, 625")
    a(f"v_readfirstlane_b32 s{sWV}, v2")
    if dbg=="dbgtime":
        a("s_nop 3"); stamp(a,0)
    a(f"v_lshlrev_b32 v{vT0}, 4, v0")
    for i in range(4): a(f"v_mov_b32 v{PN+i}, 0")
    fill_region(a,HIST,XL,PN)
    fill_region(a,CNT,1024,PN)
    a("s_add_u32 s44, s43, 640")
    a("s_add_u32 s43, s43, 15")
    a("s_lshr_b32 s43, s43, 4")
    a("s_lshr_b32 s44, s44, 4")
    a("s_sub_u32 s44, s44, s43")
    a(f"s_mul_i32 s{sXS}, s{sWV}, {XS_W}")
    a(f"s_add_u32 s{sXS}, s{sXS}, {XS}")
    a(f"s_lshl_b32 s{sES}, s{sWV}, 11")
    a(f"s_add_u32 s{sES}, s{sES}, {ES}")
    a("s_waitcnt lgkmcnt(0)")
    srd(a,S_DST,54,E*4); srd(a,S_SRC,52,E*4)
    a(f"s_sub_u32 s{S_X}, s48, {XBIAS}")
    a(f"s_subb_u32 s{S_X+1}, s49, 0")
    a(f"s_and_b32 s{S_X+1}, s{S_X+1}, 0xffff")
    a(f"s_mov_b32 s{S_X+2}, {XBYTES+XBIAS}")
    a(f"s_mov_b32 s{S_X+3}, 0x20000")
    srd(a,S_E,50,EBYTES); srd(a,S_T,92,TABLE_BYTES); srd(a,S_W,92,WF_BYTES,WF_OFF)
    srd(a,S_DBG,66,256); srd(a,S_FL,92,1024,FL_OFF)
    a("s_cmp_eq_u32 s2, 0")
    a("s_cbranch_scc0 k_notag")
    a(f"s_cmp_eq_u32 s{sWV}, 7")
    a("s_cbranch_scc0 k_notag")
    a(f"s_memrealtime s[{st[4]}:{st[5]}]")
    a("s_waitcnt lgkmcnt(0)")
    a(f"s_or_b32 s{st[4]}, s{st[4]}, 1")
    a(f"v_mov_b32 v2, s{st[4]}")
    a("v_mov_b32 v3, 0")
    a(f"buffer_store_dword v2, v3, s[{S_DBG}:{S_DBG+3}], 0 offen sc1")
    a("k_notag:")
    a("s_barrier")
    phase_a(a)
    stamp(a,1)
    srd(a,S_B1,58,256); srd(a,S_B2,62,128); srd(a,S_O,64,N*128)
    a(f"s_mov_b32 s{sSC}, 0x33800000")
    a(f"s_mov_b32 s{sSC+1}, 0x33800000")
    a(f"s_mov_b32 s{sSLOW}, 0")
    a(f"s_mov_b32 s{sSAFE}, 0")
    a(f"s_movk_i32 s{sXO}, {XBIAS}")
    a(f"s_movk_i32 s{sXO+1}, {XBIAS-1040}")
    a(f"s_movk_i32 s{sXO+2}, {XBIAS-2080}")
    a("v_lshrrev_b32 v2, 3, v1")
    a("v_and_b32 v3, 7, v1")
    a("v_and_b32 v4, 31, v1")
    a("v_lshrrev_b32 v5, 5, v1")
    a(f"s_lshr_b32 s{st[1]}, s{sWV}, 2")
    a(f"s_and_b32 s{st[2]}, s{sWV}, 3")
    a(f"s_lshl_b32 s{st[3]}, s{st[1]}, 5")
    a(f"s_add_u32 s{st[3]}, s{st[3]}, s{sNB}")
    a(f"v_add_u32 v12, s{st[3]}, v4")
    a("v_lshlrev_b32 v12, 7, v12")
    a("v_lshl_add_u32 v12, v5, 4, v12")
    for ks in range(4): a(f"buffer_load_dwordx4 {vr(A+4*ks)}, v12, s[{S_X}:{S_X+3}], s{sXO} offen offset:{ks*32}")
    a(f"s_lshl_b32 s{st[5]}, s{st[2]}, 6")
    a(f"v_lshl_add_u32 v13, v4, 1, s{st[5]}")
    a(f"buffer_load_ushort v{PD+4}, v13, s[{S_B1}:{S_B1+3}], 0 offen")
    a("v_lshlrev_b32 v7, 1, v2")
    a("v_and_b32 v7, 4, v7")
    a("v_xor_b32 v7, v3, v7")
    a(f"v_lshlrev_b32 v{vXc}, 4, v7")
    a("v_lshrrev_b32 v7, 4, v1")
    a("v_xor_b32 v7, v1, v7")
    a("v_and_b32 v7, 1, v7")
    a(f"v_lshlrev_b32 v{vEc}, 4, v7")
    a("v_and_b32 v7, 3, v4")
    a("v_bfe_u32 v8, v4, 2, 1")
    a("v_lshrrev_b32 v9, 3, v4")
    a("v_lshl_add_u32 v10, v8, 2, v9")
    a("v_mul_u32_u24 v11, 1040, v7")
    a("v_lshl_add_u32 v11, v10, 7, v11")
    a("v_lshl_add_u32 v11, v5, 4, v11")
    a(f"v_add_u32 v11, s{sXS}, v11")
    a("v_bfe_u32 v12, v10, 1, 1")
    a("v_lshlrev_b32 v12, 6, v12")
    a(f"v_add_u32 v{vAx01}, v11, v12")
    a(f"v_sub_u32 v{vAx23}, v11, v12")
    a("v_lshl_add_u32 v11, v10, 2, v7")
    a("v_bfe_u32 v12, v11, 3, 1")
    a("v_xor_b32 v12, v5, v12")
    a("v_lshlrev_b32 v12, 4, v12")
    a("v_lshl_add_u32 v12, v11, 5, v12")
    a(f"v_add_u32 v{vAe}, s{sES}, v12")
    a(f"v_lshlrev_b32 v{vQc}, 2, v4")
    a(f"v_add_u32 v{vQc}, {QP}, v{vQc}")
    a("v_lshlrev_b32 v12, 2, v5")
    a("v_sub_u32 v12, v10, v12")
    a("v_mov_b32 v13, 0x3f803f80")
    for r in range(4): a(f"v_cmp_eq_u32 s[{st[0]+2*r}:{st[1]+2*r}], {r}, v12")
    a("v_cmp_eq_u32 vcc, v8, v5")
    for r in range(4): a(f"v_cndmask_b32_e64 v{ACS+r}, 0, v13, s[{st[0]+2*r}:{st[1]+2*r}]")
    for i in range(12): a(f"v_mov_b32 v{FQ+i}, 0")
    a(f"v_cndmask_b32 v{ACF}, 0, v13, vcc")
    for i in range(10): a(f"v_mov_b32 v{HR+i}, 0")
    a(f"v_lshlrev_b32 v{vT0}, 4, v0")
    init_lists(a,KT,KT+4)
    for i in range(4): a(f"v_mov_b32 v{KT+i}, 0")
    fill_region(a,QP+40*512,512,KT)
    fill_region(a,SEG+ZROW*1024,1024,KT)
    a(f"s_lshl_b32 s{st[0]}, s{sWV}, 5")
    a(f"v_add_u32 v2, s{st[0]}, v2")
    a("v_mul_u32_u24 v2, 2500, v2")
    for k in range(4): a(f"v_add_u32 v{EB+k}, {k*8*2500}, v2")
    for i in range(4):
        a(f"v_lshlrev_b32 v{XO+i}, 2, v3")
        a(f"v_add_u32 v{XO+i}, {i-1}, v{XO+i}")
    stamp(a,2)
    phase_a2(a)
    stamp(a,3)
    a(f"s_cmp_eq_u32 s{sWV}, 0")
    a("s_cbranch_scc0 k_wait_done")
    a("v_mov_b32 v6, 0")
    a(f"s_mov_b32 s{st[1]}, 400000")
    a("k_tagpoll:")
    a(f"buffer_load_dword v7, v6, s[{S_DBG}:{S_DBG+3}], 0 offen sc1")
    a("s_waitcnt vmcnt(0)")
    a(f"v_readfirstlane_b32 s{st[0]}, v7")
    a(f"s_sub_u32 s{st[1]}, s{st[1]}, 1")
    a("s_cbranch_scc1 k_tagdone")
    a(f"s_cmp_eq_u32 s{st[0]}, 0")
    a("s_cbranch_scc1 k_tagpoll")
    a("k_tagdone:")
    a(f"s_lshl_b32 s{st[2]}, s2, 2")
    a(f"v_mov_b32 v6, s{st[2]}")
    a(f"v_mov_b32 v7, s{st[0]}")
    a(f"s_mov_b64 s[{st[6]}:{st[7]}], exec")
    a("s_mov_b64 exec, 1")
    a(f"buffer_store_dword v7, v6, s[{S_FL}:{S_FL+3}], 0 offen sc1")
    a(f"s_mov_b64 exec, s[{st[6]}:{st[7]}]")
    a("v_lshlrev_b32 v6, 4, v1")
    a(f"s_mov_b32 s{st[1]}, 400000")
    a("s_sleep 8")
    a("k_poll:")
    a(f"buffer_load_dwordx4 v[8:11], v6, s[{S_FL}:{S_FL+3}], 0 offen sc1")
    a("s_waitcnt vmcnt(0)")
    a(f"v_cmp_ne_u32 vcc, s{st[0]}, v8")
    a(f"v_cmp_ne_u32 s[{st[4]}:{st[5]}], s{st[0]}, v9")
    a(f"s_or_b64 vcc, vcc, s[{st[4]}:{st[5]}]")
    a(f"v_cmp_ne_u32 s[{st[4]}:{st[5]}], s{st[0]}, v10")
    a(f"s_or_b64 vcc, vcc, s[{st[4]}:{st[5]}]")
    a(f"v_cmp_ne_u32 s[{st[4]}:{st[5]}], s{st[0]}, v11")
    a(f"s_or_b64 vcc, vcc, s[{st[4]}:{st[5]}]")
    a("s_cmp_eq_u64 vcc, 0")
    a("s_cbranch_scc1 k_wait_done")
    a(f"s_sub_u32 s{st[1]}, s{st[1]}, 1")
    a("s_cbranch_scc1 k_wait_done")
    a("s_sleep 6")
    a("s_branch k_poll")
    a("k_wait_done:")
    a("s_barrier")
    stamp(a,4)
    a("v_lshlrev_b32 v14, 4, v1")
    a("v_lshrrev_b32 v15, 3, v1")
    a("v_lshlrev_b32 v15, 7, v15")
    a(f"s_lshl_b32 s{st[0]}, s2, 15")
    a(f"s_lshl_b32 s{st[1]}, s{sWV}, 12")
    a(f"s_add_u32 s{st[0]}, s{st[0]}, s{st[1]}")
    for k in range(4): a(f"buffer_load_dword v{HD+k}, v15, s[{S_T}:{S_T+3}], s{st[0]} offen offset:{k*1024} sc1")
    for k in range(4): a(f"buffer_load_dwordx4 {vr(R+4*k)}, v14, s[{S_T}:{S_T+3}], s{st[0]} offen offset:{k*1024} sc1")
    a(f"s_and_b32 s{st[2]}, s{sWV}, 3")
    a(f"s_lshl_b32 s{st[4]}, s{st[2]}, 12")
    a(f"s_add_u32 s{st[4]}, s{st[4]}, {20*1024}")
    for ks in range(4): a(f"buffer_load_dwordx4 {vr(WB+4*ks)}, v14, s[{S_W}:{S_W+3}], s{st[4]} offen offset:{ks*1024} sc1")
    a(f"s_lshl_b32 s{st[6]}, s{sWV}, 10")
    a(f"s_add_u32 s{st[5]}, s{st[6]}, 8192")
    a(f"s_add_u32 s{st[7]}, s{st[6]}, 16384")
    WT=W
    a(f"buffer_load_dwordx4 {vr(WT)}, v14, s[{S_W}:{S_W+3}], s{st[6]} offen sc1")
    a(f"buffer_load_dwordx4 {vr(WT+4)}, v14, s[{S_W}:{S_W+3}], s{st[5]} offen sc1")
    a(f"buffer_load_dwordx4 {vr(WT+8)}, v14, s[{S_W}:{S_W+3}], s{st[7]} offen sc1")
    a("s_waitcnt vmcnt(7)")
    stamp(a,5)
    for k in range(4):
        for i in range(4):
            e=4*k+i
            a(f"v_cmp_lt_u32 s[{sMK+2*e}:{sMK+2*e+1}], v{XO+i}, v{HD+k}")
    a(f"v_max_u32 v{vT0}, v{HD}, v{HD+1}")
    a(f"v_max3_u32 v{vT0}, v{HD+2}, v{HD+3}, v{vT0}")
    a(f"v_cmp_lt_u32 vcc, 31, v{vT0}")
    a("s_cbranch_vccz k_noovf")
    a(f"v_mov_b32 v{vT0}, {FLAG}")
    a(f"v_mov_b32 v{vT1}, 1")
    a(f"ds_write_b32 v{vT0}, v{vT1}")
    a("k_noovf:")
    ND=D[1]
    def hist(a):
        for e in range(16):
            a(f"v_lshrrev_b32 v{ND+e}, 26, v{R+e}")
            a(f"v_lshlrev_b32 v{RANK+e}, 2, v{ND+e}")
        a(f"v_mov_b32 v{vT1}, 1")
        for e in range(16):
            a(f"s_mov_b64 exec, s[{sMK+2*e}:{sMK+2*e+1}]")
            a(f"ds_add_rtn_u32 v{RANK+e}, v{RANK+e}, v{vT1}")
        a("s_mov_b64 exec, -1")
    hist(a)
    a("s_waitcnt vmcnt(0)")
    QD=FQ-0
    QD=W+16
    a(mfma(QD,A,WB,None))
    for ks in range(1,4): a(mfma(QD,A+4*ks,WB+4*ks,QD))
    a(f"v_add_u32 v13, {WST}, v14")
    a(f"s_lshl_b32 s{st[6]}, s{sWV}, 10")
    a(f"v_add_u32 v13, s{st[6]}, v13")
    a(f"ds_write_b128 v13, {vr(WT)}")
    a(f"ds_write_b128 v13, {vr(WT+4)} offset:8192")
    a(f"s_cmp_lt_u32 s{sWV}, 4")
    a("s_cbranch_scc0 k_w3")
    a(f"ds_write_b128 v13, {vr(WT+8)} offset:16384")
    a("k_w3:")
    a(f"v_lshlrev_b32 v{PD+4}, 16, v{PD+4}")
    a(f"s_mov_b32 s{st[5]}, {f2u(NEG_LOG2E):#x}")
    a(f"s_lshr_b32 s{st[1]}, s{sWV}, 2")
    a(f"s_and_b32 s{st[2]}, s{sWV}, 3")
    a("v_lshrrev_b32 v5, 5, v1")
    a("v_and_b32 v4, 31, v1")
    a(f"s_lshl_b32 s{st[3]}, s{st[1]}, 14")
    a(f"s_lshl_b32 s{st[4]}, s{st[2]}, 7")
    a(f"s_add_u32 s{st[3]}, s{st[3]}, s{st[4]}")
    a(f"s_add_u32 s{st[3]}, s{st[3]}, {QP}")
    a("v_lshlrev_b32 v12, 11, v5")
    a("v_lshl_add_u32 v12, v4, 2, v12")
    a(f"v_add_u32 v12, s{st[3]}, v12")
    a("s_nop 1")
    for r in range(16):
        if r==4:
            a(f"s_cmp_eq_u32 s{st[1]}, 0")
            a("s_cbranch_scc0 k_qdone")
        t=KT+(r&3)
        a(f"v_add_f32 v{QD+r}, v{QD+r}, v{PD+4}")
        a(f"v_mul_f32 v{QD+r}, s{st[5]}, v{QD+r}")
        a(f"v_cvt_pk_bf16_f32 v{t}, v{QD+r}, v{QD+r}")
        a(f"v_lshlrev_b32 v{vT1}, 16, v{t}")
        a(f"v_sub_f32 v{vT1}, v{QD+r}, v{vT1}")
        a(f"v_cvt_pk_bf16_f32 v{t}, v{QD+r}, v{vT1}")
        a(f"ds_write_b32 v12, v{t} offset:{((r>>2)*8+(r&3))*512}")
    a("k_qdone:")
    a("s_waitcnt lgkmcnt(0)")
    stamp(a,6)
    a("s_barrier")
    a(f"v_add_u32 v14, {WST}, v14")
    for f in range(20): a(f"ds_read_b128 {vr(W+4*f)}, v14 offset:{f*1024}")
    a("k_scan:")
    a(f"v_lshlrev_b32 v{vT0}, 2, v1")
    a(f"ds_read_b32 v{PN}, v{vT0} offset:{HIST}")
    a(f"v_mov_b32 v{vT1}, {FLAG}")
    a(f"ds_read_b32 v{PN+1}, v{vT1}")
    a("s_waitcnt lgkmcnt(0)")
    a(f"v_add_u32 v{PN+2}, 3, v{PN}")
    a(f"v_and_b32 v{PN+2}, -4, v{PN+2}")
    a(f"v_mov_b32 v{PN+3}, v{PN+2}")
    for sh in ("row_shr:1 row_mask:0xf","row_shr:2 row_mask:0xf","row_shr:4 row_mask:0xf","row_shr:8 row_mask:0xf","row_bcast:15 row_mask:0xa","row_bcast:31 row_mask:0xc"):
        a("s_nop 1")
        a(f"v_add_u32_dpp v{PN+3}, v{PN+3}, v{PN+3} {sh} bank_mask:0xf")
    a("s_nop 0")
    a(f"v_readlane_b32 s{sTOT}, v{PN+3}, 63")
    a(f"v_readfirstlane_b32 s{st[0]}, v{PN+1}")
    a(f"v_sub_u32 v{PN+3}, v{PN+3}, v{PN+2}")
    a(f"s_cmp_lg_u32 s{sSLOW}, 0")
    a("s_cbranch_scc1 k_okcap")
    a(f"s_cmp_gt_u32 s{sTOT}, {LCAP}")
    a(f"s_cselect_b32 s{st[1]}, 1, 0")
    a(f"s_or_b32 s{st[0]}, s{st[0]}, s{st[1]}")
    a(f"s_cmp_lg_u32 s{st[0]}, 0")
    a("s_cbranch_scc1 k_goslow")
    a("k_okcap:")
    a(f"s_add_u32 s{sNT}, s{sTOT}, 31")
    a(f"s_lshr_b32 s{sNT}, s{sNT}, 5")
    BS=A
    for e in range(16):
        a(f"v_lshlrev_b32 v{vT1}, 2, v{ND+e}")
        a(f"ds_bpermute_b32 v{BS+e}, v{vT1}, v{PN+3}")
    a(f"s_cmp_eq_u32 s{sWV}, 0")
    a("s_cbranch_scc0 k_nodeg")
    a(f"v_sub_u32 v{PN+2}, v{PN+2}, v{PN}")
    a(f"ds_add_u32 v{vT0}, v{PN} offset:{DEG}")
    a(f"ds_add_u32 v{vT0}, v{PN+2} offset:{PADC}")
    a(f"ds_write_b32 v{vT0}, v{PN+3} offset:{BASE}")
    a("k_nodeg:")
    a(f"s_movk_i32 s{st[0]}, 0x3fff")
    XV=PD
    EV=PN+4
    for e in range(16):
        a(f"v_lshlrev_b32 v{ND+e}, 9, v{ND+e}")
    a("s_waitcnt lgkmcnt(0)")
    for e in range(16):
        k=e>>2
        a(f"v_add_u32 v{BS+e}, v{BS+e}, v{RANK+e}")
        a(f"v_bfe_u32 v{RANK+e}, v{R+e}, 14, 12")
        a(f"v_and_b32 v{R+e}, s{st[0]}, v{R+e}")
        a(f"v_add_lshl_u32 v{RANK+e}, v{RANK+e}, v{EB+k}, 5")
        a(f"v_lshlrev_b32 v{R+e}, 7, v{R+e}")
        a(f"v_and_b32 v{vT1}, -4, v{BS+e}")
        a(f"v_lshlrev_b32 v{BS+e}, 2, v{BS+e}")
        a(f"s_mov_b64 exec, s[{sMK+2*e}:{sMK+2*e+1}]")
        a(f"ds_write_b32 v{BS+e}, v{R+e} offset:{XL}")
        a(f"ds_write_b32 v{BS+e}, v{RANK+e} offset:{EL}")
        a(f"ds_write_b32 v{vT1}, v{ND+e} offset:{QT}")
        a("s_mov_b64 exec, -1")
    a(f"s_mov_b32 m0, s{sXS}")
    a("s_waitcnt vmcnt(0) lgkmcnt(0)")
    stamp(a,7)
    a("s_barrier")
    stamp(a,8,12)
    a("k_main:")
    a(f"s_cmp_lg_u32 s{sSAFE}, 0")
    a("s_cbranch_scc1 k_main_safe")
    main_loop(a,"pair")
    a("s_branch k_mjoin")
    a("k_main_safe:")
    main_loop(a,"safe")
    a("k_mjoin:")
    a("s_waitcnt vmcnt(0) lgkmcnt(0)")
    stamp(a,9,13)
    a(f"s_and_b32 s{st[0]}, s{sWV}, 1")
    a(f"s_lshl_b32 s{st[1]}, s{st[0]}, 13")
    a(f"s_add_u32 s{st[1]}, s{st[1]}, {36*1024}")
    a(f"s_add_u32 s{st[2]}, s{st[1]}, 4096")
    a("v_lshlrev_b32 v14, 4, v1")
    W2F=D[0]
    for ks in range(8):
        a(f"buffer_load_dwordx4 {vr(W2F+4*ks)}, v14, s[{S_W}:{S_W+3}], s{st[1+(ks>>2)]} offen offset:{(ks&3)*1024} sc1")
    a("v_lshrrev_b32 v5, 5, v1")
    a(f"s_lshl_b32 s{st[3]}, s{st[0]}, 6")
    a(f"v_lshl_add_u32 v13, v5, 3, s{st[3]}")
    B2R=KT
    for q in range(4): a(f"buffer_load_dwordx2 {vr(B2R+2*q,2)}, v13, s[{S_B2}:{S_B2+3}], 0 offen offset:{q*16}")
    a(f"s_lshr_b32 s{st[0]}, s{sNT}, 3")
    a(f"s_and_b32 s{st[1]}, s{sNT}, 7")
    a("v_lshrrev_b32 v3, 1, v1")
    a("v_and_b32 v4, 1, v1")
    a(f"v_cmp_gt_u32 vcc, s{st[1]}, v3")
    a(f"v_mul_u32_u24 v6, s{st[0]}, v3")
    a(f"v_min_u32 v7, s{st[1]}, v3")
    a(f"v_cndmask_b32_e64 v5, 0, 1, vcc")
    a(f"v_add_u32 v5, s{st[0]}, v5")
    a("v_add_u32 v6, v6, v7")
    a("v_lshlrev_b32 v6, 3, v6")
    a("v_lshlrev_b32 v5, 2, v5")
    a("v_mul_u32_u24 v7, v5, v4")
    a("v_add_u32 v6, v6, v7")
    a("v_add_u32 v7, v6, v5")
    a("v_cmp_gt_u32 vcc, 16, v1")
    a("v_mov_b32 v8, 0x7fffffff")
    a(f"v_lshlrev_b32 v9, 4, v1")
    a("v_cndmask_b32 v6, v8, v6, vcc")
    a(f"v_add_u32 v9, {SEG}, v9")
    a(f"v_lshlrev_b32 v{vT0}, 2, v1")
    a(f"ds_read_b32 v2, v{vT0} offset:{BASE}")
    a("s_barrier")
    a("s_waitcnt lgkmcnt(0)")
    SR=EE
    for r in range(5):
        a(f"s_add_u32 s{st[2]}, s{sWV}, {8*r}")
        a(f"s_add_u32 s{st[3]}, s{st[2]}, 1")
        a(f"v_readlane_b32 s{st[4]}, v2, s{st[2]}")
        a(f"v_readlane_b32 s{st[5]}, v2, s{st[3]}")
        a("s_nop 1")
        a(f"s_lshr_b32 s{st[4]}, s{st[4]}, 2")
        a(f"s_lshr_b32 s{st[5]}, s{st[5]}, 2")
        a(f"v_cmp_gt_u32 vcc, s{st[5]}, v6")
        a(f"v_cmp_lt_u32 s[{st[6]}:{st[7]}], s{st[4]}, v7")
        a(f"s_and_b64 vcc, vcc, s[{st[6]}:{st[7]}]")
        a(f"s_cmp_lt_u32 s{st[4]}, s{st[5]}")
        a(f"s_cselect_b32 s{sMK+r}, vcc_lo, 0")
        for t in range(2):
            a(f"s_ff1_i32_b32 s{st[4]}, s{sMK+r}")
            a(f"s_add_u32 s{st[5]}, s{st[4]}, s{st[2]}")
            a(f"s_cmp_eq_u32 s{sMK+r}, 0")
            a(f"s_cselect_b32 s{st[5]}, {ZROW}, s{st[5]}")
            a(f"s_lshl_b32 s{st[5]}, s{st[5]}, 10")
            a(f"v_add_u32 v10, s{st[5]}, v9")
            a(f"ds_read_b128 {vr(SR+8*r+4*t)}, v10")
            a(f"s_add_u32 s{st[4]}, s{sMK+r}, -1")
            a(f"s_and_b32 s{sMK+r}, s{sMK+r}, s{st[4]}")
    a("s_waitcnt lgkmcnt(0)")
    for r in range(5):
        for c in range(2):
            a(f"v_add_f32 v{SR+8*r+2*c}, v{SR+8*r+2*c}, v{SR+8*r+2*c+1}")
            a(f"v_add_f32 v{SR+8*r+4+2*c}, v{SR+8*r+4+2*c}, v{SR+8*r+4+2*c+1}")
            a(f"v_add_f32 v{HR+2*r+c}, v{HR+2*r+c}, v{SR+8*r+2*c}")
            a(f"v_add_f32 v{HR+2*r+c}, v{HR+2*r+c}, v{SR+8*r+4+2*c}")
    for r in range(5):
        a(f"k_more_{r}:")
        a(f"s_cmp_eq_u32 s{sMK+r}, 0")
        a(f"s_cbranch_scc1 k_moredone_{r}")
        a(f"s_ff1_i32_b32 s{st[4]}, s{sMK+r}")
        a(f"s_add_u32 s{st[5]}, s{st[4]}, s{sWV}")
        a(f"s_add_u32 s{st[5]}, s{st[5]}, {8*r}")
        a(f"s_lshl_b32 s{st[5]}, s{st[5]}, 10")
        a(f"v_add_u32 v10, s{st[5]}, v9")
        a(f"ds_read_b128 {vr(SR)}, v10")
        a(f"s_add_u32 s{st[4]}, s{sMK+r}, -1")
        a(f"s_and_b32 s{sMK+r}, s{sMK+r}, s{st[4]}")
        a("s_waitcnt lgkmcnt(0)")
        for c in range(2):
            a(f"v_add_f32 v{SR+2*c}, v{SR+2*c}, v{SR+2*c+1}")
            a(f"v_add_f32 v{HR+2*r+c}, v{HR+2*r+c}, v{SR+2*c}")
        a(f"s_branch k_more_{r}")
        a(f"k_moredone_{r}:")
    a(f"s_cmp_eq_u32 s{sSLOW}, 0")
    a("s_cbranch_scc1 k_epi")
    a("s_waitcnt vmcnt(0)")
    a("s_barrier")
    a(f"s_add_u32 s{sB0}, s{sB0}, 2048")
    a(f"s_cmp_lt_u32 s{sB0}, {E}")
    a("s_cbranch_scc1 k_slowfetch")
    a("s_branch k_epi")
    a("k_goslow:")
    a(f"s_mov_b32 s{sSLOW}, 1")
    a(f"s_mov_b32 s{sSAFE}, 1")
    a(f"s_mov_b32 s{sB0}, 0")
    a("s_waitcnt lgkmcnt(0)")
    a("s_barrier")
    a("k_slowfetch:")
    a(f"s_lshl_b32 s{st[0]}, s{sB0}, 2")
    a(f"v_lshlrev_b32 v{vT1}, 4, v0")
    a(f"v_add_u32 v{vT1}, s{st[0]}, v{vT1}")
    a(f"buffer_load_dwordx4 {vr(A)}, v{vT1}, s[{S_DST}:{S_DST+3}], 0 offen")
    a(f"buffer_load_dwordx4 {vr(A+4)}, v{vT1}, s[{S_SRC}:{S_SRC+3}], 0 offen")
    a(f"v_lshlrev_b32 v{vT0}, 4, v0")
    init_lists(a,KT,KT+4)
    for i in range(4): a(f"v_mov_b32 v{PD+i}, 0")
    fill_region(a,HIST,256,PD)
    a(f"v_lshlrev_b32 v{EB}, 2, v0")
    a(f"v_add_u32 v{EB}, s{sB0}, v{EB}")
    a(f"s_mov_b32 s{st[0]}, {MAGIC}")
    a(f"s_mov_b32 s{st[1]}, {E}")
    a("s_waitcnt vmcnt(0)")
    for i in range(4):
        a(f"v_mul_hi_u32 v{A+8+i}, v{A+i}, s{st[0]}")
        a(f"v_subrev_u32 v{A+i}, s{sNB}, v{A+i}")
        a(f"v_lshlrev_b32 v{A+i}, 26, v{A+i}")
        a(f"v_or_b32 v{R+i}, v{A+i}, v{A+4+i}")
        if i: a(f"v_or_b32 v{R+i}, {i<<14}, v{R+i}")
    a(f"v_cmp_gt_u32 vcc, s{st[1]}, v{EB}")
    for i in range(4):
        a(f"v_cmp_eq_u32 s[{sMK+2*i}:{sMK+2*i+1}], s2, v{A+8+i}")
        a(f"s_and_b64 s[{sMK+2*i}:{sMK+2*i+1}], s[{sMK+2*i}:{sMK+2*i+1}], vcc")
    for e in range(4,16): a(f"s_mov_b64 s[{sMK+2*e}:{sMK+2*e+1}], 0")
    a("s_waitcnt lgkmcnt(0)")
    a("s_barrier")
    hist(a)
    a("s_waitcnt lgkmcnt(0)")
    a("s_barrier")
    a("s_branch k_scan")
    a("k_epi:")
    stamp(a,10)
    a(f"v_lshlrev_b32 v2, 3, v1")
    a(f"s_lshl_b32 s{st[3]}, s{sWV}, 9")
    a(f"s_add_u32 s{st[3]}, s{st[3]}, {QP}")
    a(f"v_add_u32 v2, s{st[3]}, v2")
    a(f"s_lshl_b32 s{st[3]}, s{sWV}, 2")
    a(f"v_mov_b32 v3, s{st[3]}")
    a(f"s_mul_i32 s{st[3]}, s{sWV}, 272")
    a(f"s_add_u32 s{st[3]}, s{st[3]}, {HH}")
    a(f"v_lshl_add_u32 v4, v1, 2, s{st[3]}")
    QR=EE; PC=EE+10; T=PD
    for r in range(5):
        a(f"ds_read_b64 {vr(QR+2*r,2)}, v2 offset:{r*8*512}")
        a(f"ds_read_b32 v{PC+r}, v3 offset:{PADC+r*32}")
    a(f"s_mov_b32 s{st[4]}, {f2u(-0.6931471805599453*2.0**-24):#x}")
    a(f"s_mov_b32 s{st[5]}, 0xffff0000")
    a(f"v_mov_b32 v5, 0x207")
    a(f"s_mov_b64 s[{st[6]}:{st[7]}], 0")
    a("s_waitcnt lgkmcnt(0)")
    HV=A; TA=A+10; TB=PN
    for r in range(5):
        a(f"v_cvt_f32_u32 v{PC+r}, v{PC+r}")
    for x in range(10):
        a(f"v_lshlrev_b32 v{TA+x if x<10 else 0}, 16, v{QR+x}")
        a(f"v_and_b32 v{TB+x}, s{st[5]}, v{QR+x}")
        a(f"v_add_f32 v{TA+x}, v{TA+x}, v{TB+x}")
    for x in range(10): a(f"v_exp_f32 v{TB+x}, v{TA+x}")
    for x in range(10): a(f"v_fma_f32 v{TB+x}, v{TB+x}, s{sSC}, s{sSC}")
    for x in range(10): a(f"v_rcp_f32 v{TB+x}, v{TB+x}")
    for x in range(10): a(f"v_mul_f32 v{TB+x}, v{TA+x}, v{TB+x}")
    for x in range(10):
        a(f"v_fma_f32 v{HV+x}, -v{TB+x}, v{PC+(x>>1)}, v{HR+x}")
        a(f"v_cmp_class_f32 vcc, v{HR+x}, v5")
        a(f"s_or_b64 s[{st[6]}:{st[7]}], s[{st[6]}:{st[7]}], vcc")
        a(f"v_mul_f32 v{HV+x}, s{st[4]}, v{HV+x}")
    for r in range(5):
        h0=HV+2*r
        a(f"v_cvt_pk_bf16_f32 v{T}, v{h0}, v{h0+1}")
        a(f"v_lshlrev_b32 v{T+1}, 16, v{T}")
        a(f"v_and_b32 v{T+2}, s{st[5]}, v{T}")
        a(f"v_sub_f32 v{T+1}, v{h0}, v{T+1}")
        a(f"v_sub_f32 v{T+2}, v{h0+1}, v{T+2}")
        a(f"ds_write_b32 v4, v{T} offset:{r*8*272}")
        a(f"v_cvt_pk_bf16_f32 v{T+3}, v{T+1}, v{T+2}")
        a(f"ds_write_b32 v4, v{T+3} offset:{r*8*272+HL-HH}")
    a(f"s_cmp_eq_u64 s[{st[6]}:{st[7]}], 0")
    a("s_cbranch_scc1 k_fin")
    a(f"v_mov_b32 v{vT0}, {FLAG+4}")
    a(f"v_mov_b32 v{vT1}, 1")
    a(f"ds_write_b32 v{vT0}, v{vT1}")
    a("k_fin:")
    a("s_waitcnt lgkmcnt(0)")
    a("s_barrier")
    a(f"v_mov_b32 v{vT0}, {FLAG+4}")
    a(f"ds_read_b32 v{vT1}, v{vT0}")
    a(f"s_lshr_b32 s{st[1]}, s{sWV}, 1")
    a("v_and_b32 v4, 31, v1")
    a("v_lshrrev_b32 v5, 5, v1")
    a(f"s_lshl_b32 s{st[2]}, s{st[1]}, 5")
    a(f"v_add_u32 v6, s{st[2]}, v4")
    a("s_waitcnt lgkmcnt(0)")
    a(f"v_readfirstlane_b32 s{st[0]}, v{vT1}")
    a(f"s_andn2_b32 s{st[0]}, s{st[0]}, s{sSAFE}")
    a(f"s_cmp_lg_u32 s{st[0]}, 0")
    a("s_cbranch_scc0 k_final")
    a(f"s_mov_b32 s{sSAFE}, 1")
    a("s_waitcnt vmcnt(0)")
    for i in range(10): a(f"v_mov_b32 v{HR+i}, 0")
    a("s_barrier")
    a("s_branch k_main")
    a("k_final:")
    if dbg=="stamp":
        a(f"s_cmp_ge_u32 s{sWV}, 4")
        a("s_cbranch_scc0 k_final2")
        stamp_out(a)
        a("s_endpgm")
        a("k_final2:")
    a(f"s_cmp_ge_u32 s{sWV}, 4")
    a("s_cbranch_scc1 k_end")
    a("v_mul_u32_u24 v7, 272, v6")
    a("v_lshl_add_u32 v7, v5, 4, v7")
    a(f"v_add_u32 v7, {HH}, v7")
    for ks in range(8):
        a(f"ds_read_b128 {vr(W+8*ks)}, v7 offset:{ks*32}")
        a(f"ds_read_b128 {vr(W+8*ks+4)}, v7 offset:{ks*32+HL-HH}")
    a("v_lshlrev_b32 v8, 2, v6")
    a(f"ds_read_b32 v9, v8 offset:{DEG}")
    a(f"s_mov_b32 s{st[5]}, 0xffff0000")
    BU=A
    a("s_waitcnt vmcnt(0)")
    for q in range(4):
        for c in range(2):
            a(f"v_lshlrev_b32 v{BU+4*q+2*c}, 16, v{B2R+2*q+c}")
            a(f"v_and_b32 v{BU+4*q+2*c+1}, s{st[5]}, v{B2R+2*q+c}")
    OD=EE
    for ks in range(8):
        a(f"s_waitcnt lgkmcnt({max(0,15-2*ks) if ks<8 else 0})") if False else None
    a("s_waitcnt lgkmcnt(0)")
    for ks in range(8):
        a(mfma(OD,W2F+4*ks,W+8*ks,None if ks==0 else OD))
        a(mfma(OD,W2F+4*ks,W+8*ks+4,OD))
    a("v_cvt_f32_u32 v9, v9")
    a(f"s_and_b32 s{st[0]}, s{sWV}, 1")
    a(f"s_lshl_b32 s{st[0]}, s{st[0]}, 6")
    a(f"v_add_u32 v10, s{sNB}, v6")
    a("v_lshlrev_b32 v10, 7, v10")
    a("v_lshl_add_u32 v10, v5, 3, v10")
    a(f"v_add_u32 v10, s{st[0]}, v10")
    a(f"v_cmp_gt_u32 vcc, s{sNN}, v6")
    a("s_nop 7")
    for r in range(16): a(f"v_fma_f32 v{OD+r}, v9, v{BU+r}, v{OD+r}")
    for q in range(4):
        a(f"v_cvt_pk_bf16_f32 v{PD+2*q}, v{OD+4*q}, v{OD+4*q+1}")
        a(f"v_cvt_pk_bf16_f32 v{PD+2*q+1}, v{OD+4*q+2}, v{OD+4*q+3}")
    a(f"s_and_saveexec_b64 s[{st[6]}:{st[7]}], vcc")
    a("s_cbranch_execz k_end")
    for q in range(4): a(f"buffer_store_dwordx2 {vr(PD+2*q,2)}, v10, s[{S_O}:{S_O+3}], 0 offen offset:{q*16}")
    if dbg=="stamp":
        a("s_mov_b64 exec, -1")
        a("s_waitcnt vmcnt(0)")
        stamp_out(a)
    if dbg=="dbgtime":
        a("s_mov_b64 exec, -1")
        a("s_waitcnt vmcnt(0)")
        dstamp(a,14)
    a("k_end:")
    a("s_endpgm")
    return a
```

```python
import sys, os
from common import *
import k3
HEADER=open(os.path.join(os.path.dirname(os.path.abspath(__file__)),"header.txt")).read()
def build(path, dbg=None):
    kk=k3.gen(dbg)
    errs=check(kk.lines,"k3")
    for tag in ("pair","safe"):
        for t1 in ("F","S"):
            for t2 in ("F","S"):
                if tag=="safe" and (t1=="F" or t2=="F"): continue
                errs+=check(k3.tile(t1,tag)[-40:]+k3.tile(t2,tag)[:60],f"{tag}{t1}{t2}")
    for e in errs: print("HAZARD",e)
    vg=256 if dbg else k3.NVGPR
    s=HEADER
    s+=f"; @launch grid=(256,1,1) block=(512,1,1) lds={k3.LDS_BYTES}\n"
    s+='.amdgcn_target "amdgcn-amd-amdhsa--gfx950"\n.text\n'
    s+=kernel_text(k3.KNAME,kk)
    s+='.section .rodata,"a"\n'
    s+=desc(k3.KNAME,vg,102)
    open(path,"w").write(s)
    print("wrote",path,len(s),"bytes; LDS",k3.LDS_BYTES,"hazards",len(errs))
if __name__=="__main__":
    out=sys.argv[1] if len(sys.argv)>1 else f"cdna_kernels/{NAME}.s"
    build(out, sys.argv[2] if len(sys.argv)>2 else None)
```

```python
from common import *
KNAME="gather_scatter__edge_featured_mpnn_mpnn__graph_kernel"
FL_OFF=WF_OFF+65536
LCAP=3328
HIST=0; DEG=256; PADC=512; FLAG=768; BASE=832
XL=1088; EL=XL+LCAP*4; QT=EL+LCAP*4; QP=QT+LCAP; XS=QP+41*512; XS_W=4160
ES=86016; assert XS+8*XS_W<=ES
SEG=ES+8*2048; ZROW=57; LDS_BYTES=SEG+58*1024
HH=XS; HL=HH+40*272; assert HL+64*272<=SEG
WST=XS
CNT=SEG; IMG=SEG+1024; IMG_S=144; assert IMG+256*IMG_S<=SEG+ZROW*1024
SENT=0x7FFFFF00
XBIAS=3120
W=16; A=96; D=[116,132]; EE=148; PD=164; PN=172; ACC=180; FQ=188; ACF=196; ACS=200; QB=204; QA=208; KT=212
XO=220; EO=224; vXLa=225; vELa=226; vQTa=227; QTV=228
vXc=232; vEc=233; vAx01=234; vAx23=235; vAe=236; vQc=237; vSegB=238; vPN=239; vPA=240; vT0=241; vT1=242; vT2=243
HR=244
NVGPR=254
vS=254
S_X=4; S_E=8; S_T=12; S_W=16; S_O=20; S_B1=24; S_B2=28; S_SRC=32; S_DST=36
sSC=40; sWV=42; sNB=43; sNN=44; sNT=45; sTOT=46; sSLOW=47; sMK=48
S_WR=68; S_DBG=72; S_FL=76
sSAFE=80; sB0=81; sCNT=82; sXO=83; sXS=86; sES=87; sME=88; sNW=89
st=[90,91,92,93,94,95,96,97,98,99]
XBYTES=N*128; EBYTES=E*32
DBG=[None]
def Wf(j,k): return W+(j*5+k)*4
def mfma(d,a_,b_,c=None):
    cs = "0" if c is None else vr(c,16)
    return f"v_mfma_f32_32x32x16_bf16 {vr(d,16)}, {vr(a_)}, {vr(b_)}, {cs}"
def chain(Dn,j):
    L=[mfma(Dn,A+0,Wf(j,0),None)]
    for k in range(1,4): L.append(mfma(Dn,A+4*k,Wf(j,k),Dn))
    L.append(mfma(Dn,A+16,Wf(j,4),Dn))
    return L
def qmf(Dn,j,typ):
    return mfma(Dn,ACF,FQ+2*j,Dn) if typ=="F" else mfma(Dn,ACS,QB,Dn)
def dstamp(a,slot):
    a(f"s_cmp_eq_u32 s{sWV}, 0")
    a(f"s_cbranch_scc0 ds_skip_{slot}")
    a("s_mov_b32 s97, 0")
    a("s_cmp_eq_u32 s2, 0")
    a(f"s_cbranch_scc1 ds_go_{slot}")
    a("s_mov_b32 s97, 28")
    a("s_cmp_eq_u32 s2, 255")
    a(f"s_cbranch_scc0 ds_skip_{slot}")
    a(f"ds_go_{slot}:")
    a("s_memrealtime s[100:101]")
    a("s_load_dwordx2 s[98:99], s[0:1], 72")
    a("s_waitcnt lgkmcnt(0)")
    a("v_mov_b32 v254, s100")
    a("v_mov_b32 v255, s97")
    a(f"global_store_dword v255, v254, s[98:99] offset:{4+slot*4}")
    a(f"ds_skip_{slot}:")
def stamp(a,idx,extra=None):
    if DBG[0]=="dbgtime":
        m={0:0,3:1,4:2,8:3,9:4,10:5}
        if idx in m: dstamp(a,m[idx])
        return
    if DBG[0]!="stamp": return
    a("s_memrealtime s[100:101]")
    a("s_waitcnt lgkmcnt(0)")
    a(f"v_writelane_b32 v{vS}, s100, {idx}")
    if extra is not None:
        a("s_memtime s[100:101]")
        a("s_waitcnt lgkmcnt(0)")
        a(f"v_writelane_b32 v{vS}, s100, {extra}")
def stamp_out(a):
    if DBG[0]!="stamp": return
    a(f"v_writelane_b32 v{vS}, s{sNT}, 14")
    a("s_load_dwordx2 s[92:93], s[0:1], 80")
    a("s_waitcnt lgkmcnt(0)")
    a(f"s_add_u32 s92, s92, {(17<<20)}")
    a("s_addc_u32 s93, s93, 0")
    a("s_and_b32 s93, s93, 0xffff")
    a("s_mov_b32 s94, 0x100000")
    a("s_mov_b32 s95, 0x20000")
    a("v_lshrrev_b32 v2, 6, v0")
    a("s_lshl_b32 s96, s2, 4")
    a("v_add_u32 v2, s96, v2")
    a("v_lshlrev_b32 v2, 6, v2")
    a("v_and_b32 v3, 63, v0")
    a("v_lshl_add_u32 v2, v3, 2, v2")
    a("v_cmp_gt_u32 vcc, 32, v3")
    a("s_and_saveexec_b64 s[96:97], vcc")
    a("v_cmp_gt_u32 vcc, 16, v3")
    a("s_and_b64 exec, exec, vcc")
    a(f"buffer_store_dword v{vS}, v2, s[92:95], 0 offen")
    a("s_mov_b64 exec, s[96:97]")

def dma_x():
    L=[]
    for i in range(4):
        so = f"s{sXO+i}" if i<3 else "0"
        off = f" offset:{i*1040}" if i else ""
        L.append(f"buffer_load_dwordx4 v{XO+i}, s[{S_X}:{S_X+3}], {so} offen{off} lds")
    return L
def dma_e(slot=None, filler="s_nop 0"):
    m = f"s_mov_b32 m0, s{sME}" if slot is None else f"s_add_u32 m0, s{sES}, {slot*1024}"
    return [[m,filler,f"buffer_load_dwordx4 v{EO}, s[{S_E}:{S_E+3}], 0 offen nt lds", f"s_mov_b32 m0, s{sXS}"]]
def read_A():
    return [f"ds_read_b128 {vr(A+0)}, v{vAx01}", f"ds_read_b128 {vr(A+4)}, v{vAx01} offset:32",
            f"ds_read_b128 {vr(A+8)}, v{vAx23} offset:64", f"ds_read_b128 {vr(A+12)}, v{vAx23} offset:96",
            f"ds_read_b128 {vr(A+16)}, v{vAe}"]
def off_calc():
    return [f"v_add_u32 v{XO+i}, v{XO+i}, v{vXc}" for i in range(4)]+[f"v_add_u32 v{EO}, v{EO}, v{vEc}"]
def flat(L):
    out=[]
    for x in L: out+= x if isinstance(x,list) else [x]
    return out

def stage(j, typ, variant, last, side_exp=[], side_pk=[], head=[], side_late=[]):
    Dc=D[j&1]; Dn=D[(j+1)&1]; jn=(j+1)&3
    L=list(head)
    if typ=="S" and not last:
        L+=[f"ds_read_b32 v{QB+i}, v{QA+i} offset:{jn*128}" for i in range(4)]
    ex=[f"v_exp_f32 v{EE+i}, v{Dc+i}" for i in range(16)]
    ph1=interleave(ex,chain(Dn,jn),3)
    L+=weave(ph1,side_exp,1)
    pk1=[f"v_pk_fma_f32 {vr(EE+2*i,2)}, {vr(EE+2*i,2)}, s[{sSC}:{sSC+1}], s[{sSC}:{sSC+1}]" for i in range(8)]
    q=[] if last else [qmf(Dn,jn,typ)]
    wq=[f"s_waitcnt lgkmcnt({5 if j==2 else 0})"] if (typ=="S" and not last) else []
    if variant=="pair":
        pk1+=[f"v_pk_mul_f32 {vr(PD+2*k,2)}, {vr(EE+4*k,2)}, {vr(EE+4*k+2,2)}" for k in range(4)]
        pk1+=[f"v_pk_mul_f32 {vr(PN+2*k,2)}, {vr(Dc+4*k,2)}, {vr(EE+4*k+2,2)}" for k in range(4)]
        L+=weave(pk1,side_pk,1)
        rc=[f"v_rcp_f32 v{PD+i}, v{PD+i}" for i in range(8)]
        L+=[rc[0]]+wq+q+weave(rc[1:],side_late,1)
        L+=[f"v_pk_fma_f32 {vr(PN+2*k,2)}, {vr(Dc+4*k+2,2)}, {vr(EE+4*k,2)}, {vr(PN+2*k,2)}" for k in range(4)]
        if typ=="F":
            L+=[f"v_pk_fma_f32 {vr(ACC+2*j,2)}, {vr(PN+2*k,2)}, {vr(PD+2*k,2)}, {vr(ACC+2*j,2)}" for k in range(4)]
            return L
        L+=[f"v_pk_mul_f32 {vr(PN+2*k,2)}, {vr(PN+2*k,2)}, {vr(PD+2*k,2)}" for k in range(4)]
    else:
        L+=weave(pk1,side_pk,1)
        rc=[f"v_rcp_f32 v{EE+i}, v{EE+i}" for i in range(16)]
        L+=[rc[0]]+wq+q+weave(rc[1:],side_late,1)
        L+=[f"v_pk_mul_f32 {vr(PN+2*k,2)}, {vr(Dc+4*k,2)}, {vr(EE+4*k,2)}" for k in range(4)]
        L+=[f"v_pk_fma_f32 {vr(PN+2*k,2)}, {vr(Dc+4*k+2,2)}, {vr(EE+4*k+2,2)}, {vr(PN+2*k,2)}" for k in range(4)]
    for k in range(4):
        L.append(f"ds_write_b64 v{KT+2*k+1}, {vr(ACC+2*j,2)} offset:{j*256}")
        L.append(f"v_pk_fma_f32 {vr(ACC+2*j,2)}, {vr(ACC+2*j,2)}, {vr(KT+2*k,2)}, {vr(PN+2*k,2)} op_sel_hi:[1,0,1]")
    return L

def tile(typ, variant):
    L=[]
    lists=[f"ds_read_b128 {vr(XO)}, v{vXLa}", f"ds_read_b32 v{EO}, v{vELa}"]
    qtread=[f"ds_read_b128 {vr(QTV)}, v{vQTa}"]
    incs=[f"v_add_u32 v{vXLa}, 64, v{vXLa}", f"v_add_u32 v{vELa}, 64, v{vELa}", f"v_add_u32 v{vQTa}, 16, v{vQTa}"]
    srdsel=[f"s_cmp_gt_u32 s{sCNT}, 2", f"s_cselect_b32 s{S_E+2}, {EBYTES}, 0"]
    if typ=="F":
        L.append(qmf(D[0],0,"F"))
        L+=lists+qtread+incs+srdsel+["s_nop 3"]
    else:
        L+=[f"v_add_u32 v{QA+i}, v{QTV+i}, v{vQc}" for i in range(4)]
        L+=[f"ds_read_b32 v{QB+i}, v{QA+i}" for i in range(4)]
        L+=[f"ds_read_b32 v{FQ+2*j}, v{QA+3} offset:{j*128}" for j in range(4)]
        L+=[f"v_cmp_eq_u32 s[{st[0]}:{st[1]}], v{QTV}, v{vPN}"]
        L+=[f"v_cmp_eq_u32 s[{st[0]+2*k}:{st[1]+2*k}], v{QTV+k}, v{QTV+k-1}" for k in range(1,4)]
        L+=[f"v_mov_b32 v{KT+1}, v{vPA}"]
        L+=[f"v_lshl_add_u32 v{KT+2*k+1}, v{QTV+k-1}, 1, v{vSegB}" for k in range(1,4)]
        L+=[f"v_lshl_add_u32 v{vPA}, v{QTV+3}, 1, v{vSegB}", f"v_mov_b32 v{vPN}, v{QTV+3}"]
        L+=[f"v_cndmask_b32_e64 v{KT+2*k}, 0, 1.0, s[{st[0]+2*k}:{st[1]+2*k}]" for k in range(4)]
        L+=["s_waitcnt lgkmcnt(0)", qmf(D[0],0,"S")]
        L+=lists+qtread+incs+srdsel+["s_nop 3"]
    L+=stage(0,typ,variant,False)
    head1=["s_waitcnt lgkmcnt(0)"]
    side1=[f"v_cmp_ne_u32 vcc, v{QTV+3}, v{vPN}"]+off_calc()
    L+=stage(1,typ,variant,False,side_exp=side1,head=head1)
    rA=read_A()
    L+=stage(2,typ,variant,False,side_pk=[["s_waitcnt vmcnt(1)",rA[0]]]+rA[1:])
    dx=dma_x(); de=dma_e(None,f"s_xor_b32 s{sME}, s{sME}, 1024")
    L+=stage(3,typ,variant,True,head=["s_waitcnt lgkmcnt(0)"],side_exp=dx[:3],side_pk=[dx[3]]+de,
             side_late=[f"v_xor_b32 v{vAe}, 1024, v{vAe}"])
    return L

def main_loop(a,variant):
    tag=variant
    sPW=st[6]
    a(f"s_lshr_b32 s{st[0]}, s{sNT}, 3")
    a(f"s_and_b32 s{st[1]}, s{sNT}, 7")
    a(f"s_cmp_lt_u32 s{sWV}, s{st[1]}")
    a(f"s_cselect_b32 s{st[2]}, 1, 0")
    a(f"s_add_u32 s{sNW}, s{st[0]}, s{st[2]}")
    a(f"s_mul_i32 s{sPW}, s{sWV}, s{st[0]}")
    a(f"s_min_u32 s{st[2]}, s{sWV}, s{st[1]}")
    a(f"s_add_u32 s{sPW}, s{sPW}, s{st[2]}")
    a(f"s_cmp_eq_u32 s{sNW}, 0")
    a(f"s_cbranch_scc1 L_mdone_{tag}")
    a(f"s_sub_u32 s{sCNT}, s{sNW}, 1")
    a(f"s_lshl_b32 s{st[3]}, s{sPW}, 3")
    a(f"s_lshl_b32 s{st[4]}, s{sNW}, 2")
    a("v_lshrrev_b32 v2, 3, v1")
    a("v_lshrrev_b32 v3, 2, v2")
    a("v_and_b32 v4, 3, v2")
    a(f"v_mul_u32_u24 v3, s{st[4]}, v3")
    a(f"v_add3_u32 v3, v3, v4, s{st[3]}")
    a(f"v_lshlrev_b32 v3, 4, v3")
    a(f"v_add_u32 v{vXLa}, {XL}, v3")
    a("v_lshrrev_b32 v2, 5, v1")
    a(f"v_mul_u32_u24 v3, s{st[4]}, v2")
    a(f"v_add_u32 v3, s{st[3]}, v3")
    a("v_bfe_u32 v4, v1, 1, 4")
    a("v_lshlrev_b32 v4, 2, v4")
    a("v_lshl_add_u32 v4, v3, 4, v4")
    a(f"v_add_u32 v{vELa}, {EL}, v4")
    a("v_lshlrev_b32 v4, 2, v3")
    a(f"v_add_u32 v{vQTa}, {QT}, v4")
    a(f"ds_read_b128 {vr(XO)}, v{vXLa}")
    a(f"ds_read_b32 v{EO}, v{vELa}")
    a(f"ds_read_b128 {vr(QTV)}, v{vQTa}")
    a(f"s_lshl_b32 s{st[5]}, s{sWV}, 11")
    a(f"s_add_u32 s{st[5]}, s{st[5]}, {SEG}")
    a("v_and_b32 v4, 31, v1")
    a("v_lshlrev_b32 v4, 3, v4")
    a("v_lshl_add_u32 v4, v2, 10, v4")
    a(f"v_add_u32 v{vSegB}, s{st[5]}, v4")
    a(f"v_and_b32 v{vAe}, 0xfffffbff, v{vAe}")
    a(f"s_mov_b32 s{S_E+2}, {EBYTES}")
    for j in range(4): a(f"v_mov_b64 {vr(ACC+2*j,2)}, 0")
    a("s_waitcnt lgkmcnt(0)")
    for x in off_calc(): a(x)
    for x in flat(dma_e(0))+["s_nop 0"]+dma_x(): a(x)
    a(f"ds_read_b32 v{EO}, v{vELa} offset:64")
    a(f"ds_read_b128 {vr(XO)}, v{vXLa} offset:64")
    a(f"v_mov_b32 v{vPN}, v{QTV}")
    a(f"v_lshl_add_u32 v{vPA}, v{QTV}, 1, v{vSegB}")
    a(f"v_add_u32 v{QA}, v{QTV}, v{vQc}")
    for j in range(4): a(f"ds_read_b32 v{FQ+2*j}, v{QA} offset:{j*128}")
    a(f"v_cmp_ne_u32 vcc, v{QTV+3}, v{vPN}")
    a(f"s_cmp_gt_u32 s{sCNT}, 0")
    a(f"s_cselect_b32 s{S_E+2}, {EBYTES}, 0")
    a("s_waitcnt lgkmcnt(0)")
    for x in off_calc(): a(x)
    for x in flat(dma_e(1)): a(x)
    a("s_waitcnt vmcnt(1)")
    for x in read_A(): a(x)
    a(f"ds_read_b32 v{EO}, v{vELa} offset:128")
    a(f"s_cmp_gt_u32 s{sCNT}, 1")
    a(f"s_cselect_b32 s{S_E+2}, {EBYTES}, 0")
    a("s_waitcnt lgkmcnt(0)")
    a(f"v_add_u32 v{EO}, v{EO}, v{vEc}")
    for x in dma_x()+flat(dma_e(0)): a(x)
    for x in chain(D[0],0): a(x)
    a(f"v_add_u32 v{vXLa}, 128, v{vXLa}")
    a(f"v_add_u32 v{vELa}, 192, v{vELa}")
    a(f"v_add_u32 v{vQTa}, 16, v{vQTa}")
    a(f"v_xor_b32 v{vAe}, 1024, v{vAe}")
    a(f"s_add_u32 s{sME}, s{sES}, 1024")
    if DBG[0]=="stamp" and tag=="pair":
        a("s_memtime s[100:101]"); a("s_waitcnt lgkmcnt(0)"); a(f"v_writelane_b32 v{vS}, s100, 15")
    if variant=="pair":
        a(f"s_cbranch_vccnz L_S_{tag}")
        a(f"L_F_{tag}:")
        a.extend(tile("F",variant))
        a(f"s_sub_u32 s{sCNT}, s{sCNT}, 1")
        a(f"s_cbranch_scc1 L_fin_{tag}")
        a(f"s_cbranch_vccz L_F_{tag}")
    a(f"L_S_{tag}:")
    a.extend(tile("S",variant))
    a(f"s_sub_u32 s{sCNT}, s{sCNT}, 1")
    a(f"s_cbranch_scc1 L_fin_{tag}")
    if variant=="pair":
        a(f"s_cbranch_vccz L_F_{tag}")
    a(f"s_branch L_S_{tag}")
    a(f"L_fin_{tag}:")
    for j in range(4): a(f"ds_write_b64 v{vPA}, {vr(ACC+2*j,2)} offset:{j*256}")
    a(f"L_mdone_{tag}:")

def masked_fill(a, count, addr_v, data, offset):
    if count>=512:
        a(f"ds_write_b128 v{addr_v}, {vr(data)} offset:{offset}"); return
    a(f"v_cmp_gt_u32 vcc, {count}, v0")
    a(f"s_and_saveexec_b64 s[{st[8]}:{st[9]}], vcc")
    a(f"ds_write_b128 v{addr_v}, {vr(data)} offset:{offset}")
    a(f"s_mov_b64 exec, s[{st[8]}:{st[9]}]")
def fill_region(a, start, nbytes, data):
    n=nbytes//16; assert nbytes%16==0
    o=start
    big = start+nbytes>65535
    if big:
        a(f"v_lshlrev_b32 v{vT2}, 4, v0")
        a(f"v_add_u32 v{vT2}, {start}, v{vT2}")
        o=0
    while n>0:
        masked_fill(a,min(n,512),vT2 if big else vT0,data,o); o+=512*16; n-=512
def init_lists(a,r_sent,r_dummy):
    for i in range(4): a(f"v_mov_b32 v{r_sent+i}, {SENT:#x}")
    fill_region(a,XL,2*LCAP*4,r_sent)
    for i in range(4): a(f"v_mov_b32 v{r_dummy+i}, {40*512}")
    fill_region(a,QT,LCAP,r_dummy)

def phase_a(a):
    PV=16
    a(f"s_cmp_ge_u32 s{sWV}, 6")
    a("s_cbranch_scc1 pa_pref")
    a(f"s_mul_i32 s{st[0]}, s2, 10000")
    a("v_lshlrev_b32 v6, 4, v0")
    a(f"v_add_u32 v6, s{st[0]}, v6")
    a(f"buffer_load_dwordx4 v[16:19], v6, s[{S_DST}:{S_DST+3}], 0 offen")
    a(f"buffer_load_dwordx4 v[20:23], v6, s[{S_SRC}:{S_SRC+3}], 0 offen")
    a("v_cmp_gt_u32 vcc, 241, v0")
    a(f"s_and_saveexec_b64 s[{st[6]}:{st[7]}], vcc")
    a(f"s_cbranch_execz pa_r1skip")
    a(f"s_movk_i32 s{st[1]}, 6144")
    a(f"buffer_load_dwordx4 v[24:27], v6, s[{S_DST}:{S_DST+3}], s{st[1]} offen")
    a(f"buffer_load_dwordx4 v[28:31], v6, s[{S_SRC}:{S_SRC+3}], s{st[1]} offen")
    a("pa_r1skip:")
    a(f"s_mov_b64 exec, s[{st[6]}:{st[7]}]")
    a(f"s_cmp_eq_u32 s{sWV}, 5")
    a("s_cbranch_scc0 pa_now")
    a("s_cmp_lt_u32 s2, 208")
    a("s_cbranch_scc0 pa_now")
    a(f"s_and_b32 s{st[0]}, s2, 3")
    a(f"s_lshl_b32 s{st[0]}, s{st[0]}, 6")
    a(f"v_add_u32 v32, s{st[0]}, v1")
    a("v_lshrrev_b32 v33, 2, v32")
    a("v_and_b32 v34, 3, v32")
    a("v_and_b32 v35, 31, v33")
    a("v_lshrrev_b32 v36, 5, v33")
    a("v_lshlrev_b32 v37, 3, v36")
    a("v_lshl_add_u32 v37, v34, 1, v37")
    a("s_cmp_lt_u32 s2, 80")
    a("s_cbranch_scc1 pa_w_main")
    a("s_cmp_lt_u32 s2, 144")
    a("s_cbranch_scc1 pa_w_b")
    a(f"s_sub_u32 s{st[1]}, s2, 144")
    a(f"s_lshr_b32 s{st[1]}, s{st[1]}, 2")
    a(f"s_add_u32 s{st[2]}, s{st[1]}, 36")
    a(f"s_lshr_b32 s{st[3]}, s{st[1]}, 3")
    a(f"s_and_b32 s{st[4]}, s{st[1]}, 7")
    a(f"s_lshl_b32 s{st[4]}, s{st[4]}, 4")
    a(f"s_lshl_b32 s{st[3]}, s{st[3]}, 5")
    srd(a,S_WR,60,128*64*2)
    a(f"s_movk_i32 s{st[5]}, 128")
    a(f"s_mov_b32 s{sB0}, 0")
    a("s_branch pa_w_go")
    a("pa_w_b:")
    a(f"s_sub_u32 s{st[1]}, s2, 80")
    a(f"s_lshr_b32 s{st[1]}, s{st[1]}, 2")
    a(f"s_add_u32 s{st[2]}, s{st[1]}, 20")
    a(f"s_lshr_b32 s{st[3]}, s{st[1]}, 2")
    a(f"s_and_b32 s{st[4]}, s{st[1]}, 3")
    a(f"s_lshl_b32 s{st[4]}, s{st[4]}, 4")
    a(f"s_add_u32 s{st[4]}, s{st[4]}, 64")
    a(f"s_lshl_b32 s{st[3]}, s{st[3]}, 5")
    srd(a,S_WR,56,144*128*2)
    a(f"s_movk_i32 s{st[5]}, 256")
    a(f"s_mov_b32 s{sB0}, 0")
    a("s_branch pa_w_go")
    a("pa_w_main:")
    a(f"s_lshr_b32 s{st[2]}, s2, 2")
    a(f"s_mul_i32 s{st[3]}, s{st[2]}, 13")
    a(f"s_lshr_b32 s{st[3]}, s{st[3]}, 6")
    a(f"s_mul_i32 s{st[4]}, s{st[3]}, 5")
    a(f"s_sub_u32 s{st[4]}, s{st[2]}, s{st[4]}")
    a(f"s_cmp_eq_u32 s{st[4]}, 4")
    a(f"s_cselect_b32 s{st[4]}, 8, s{st[4]}")
    a(f"s_lshl_b32 s{st[4]}, s{st[4]}, 4")
    a(f"s_lshl_b32 s{st[3]}, s{st[3]}, 5")
    srd(a,S_WR,56,144*128*2)
    a(f"s_movk_i32 s{st[5]}, 256")
    a(f"s_mov_b32 s{sB0}, 1")
    a("pa_w_go:")
    a(f"v_add_u32 v37, s{st[4]}, v37")
    a(f"v_add_u32 v35, s{st[3]}, v35")
    a(f"v_mul_lo_u32 v37, v37, s{st[5]}")
    a("v_lshl_add_u32 v37, v35, 1, v37")
    a(f"v_add_u32 v38, s{st[5]}, v37")
    a(f"buffer_load_ushort v39, v37, s[{S_WR}:{S_WR+3}], 0 offen")
    a(f"buffer_load_ushort v40, v38, s[{S_WR}:{S_WR+3}], 0 offen")
    a(f"s_lshl_b32 s{st[2]}, s{st[2]}, 10")
    a(f"v_lshl_add_u32 v41, v32, 2, s{st[2]}")
    a("s_waitcnt vmcnt(0)")
    a("v_lshl_or_b32 v42, v40, 16, v39")
    a(f"s_cmp_eq_u32 s{sB0}, 0")
    a("s_cbranch_scc1 pa_w_st")
    a("v_lshlrev_b32 v39, 16, v39")
    a("v_lshlrev_b32 v40, 16, v40")
    a(f"s_mov_b32 s{st[1]}, {f2u(NEG_LOG2E):#x}")
    a(f"v_mul_f32 v39, s{st[1]}, v39")
    a(f"v_mul_f32 v40, s{st[1]}, v40")
    a("v_cvt_pk_bf16_f32 v42, v39, v40")
    a("pa_w_st:")
    a(f"buffer_store_dword v42, v41, s[{S_W}:{S_W+3}], 0 offen sc1")
    a("s_branch pa_now")
    a("pa_pref:")
    a(f"s_lshr_b32 s{st[0]}, s2, 3")
    a(f"s_mul_i32 s{st[0]}, s{st[0]}, 40000")
    a(f"s_sub_u32 s{st[1]}, s{sWV}, 6")
    a(f"s_mul_i32 s{st[2]}, s{st[1]}, 20480")
    a(f"s_add_u32 s{st[0]}, s{st[0]}, s{st[2]}")
    a(f"s_add_u32 s{st[0]}, s{st[0]}, {XBIAS}")
    a("v_lshlrev_b32 v6, 4, v1")
    for k in range(20):
        if k and k%4==0: a(f"s_add_u32 s{st[0]}, s{st[0]}, 4096")
        a(f"buffer_load_dwordx4 v[16:19], v6, s[{S_X}:{S_X+3}], s{st[0]} offen offset:{(k%4)*1024}")
    if 'nopf' not in OPT:
        a(f"s_mul_i32 s{st[0]}, s2, 80000")
        a(f"s_mul_i32 s{st[2]}, s{st[1]}, 40960")
        a(f"s_add_u32 s{st[0]}, s{st[0]}, s{st[2]}")
        for k in range(36):
            if k and k%4==0: a(f"s_add_u32 s{st[0]}, s{st[0]}, 4096")
            a(f"buffer_load_dwordx4 v[20:23], v6, s[{S_E}:{S_E+3}], s{st[0]} offen offset:{(k%4)*1024} nt")
    a("pa_now:")

def phase_a2(a):
    a(f"s_cmp_ge_u32 s{sWV}, 6")
    a("s_cbranch_scc1 pa_b1")
    a(f"s_mov_b32 s{st[0]}, {MAGIC}")
    a(f"s_movk_i32 s{st[1]}, 625")
    a(f"s_movk_i32 s{st[2]}, {IMG_S}")
    a(f"s_mov_b32 s{st[3]}, {CNT}")
    a(f"s_mov_b32 s{st[4]}, {IMG+4}")
    a("v_mov_b32 v5, 1")
    def rnd(r,dv,sv,tv):
        for i in range(4): a(f"v_mul_hi_u32 v{tv+i}, v{dv+i}, s{st[0]}")
        for i in range(4):
            a(f"v_lshl_add_u32 v{tv+4+i}, v{tv+i}, 2, s{st[3]}")
            a(f"ds_add_rtn_u32 v{tv+4+i}, v{tv+4+i}, v5")
        for i in range(4):
            a(f"v_mad_u32_u24 v{tv+8+i}, v{tv+i}, s{st[1]}, 15")
            a(f"v_lshrrev_b32 v{tv+8+i}, 4, v{tv+8+i}")
            a(f"v_sub_u32 v{tv+8+i}, v{dv+i}, v{tv+8+i}")
            a(f"v_lshlrev_b32 v{tv+8+i}, 26, v{tv+8+i}")
            a(f"v_mul_u32_u24 v{tv+12+i}, s{st[2]}, v{tv+i}")
            a(f"v_or3_b32 v{tv+8+i}, v{tv+8+i}, v7, v{sv+i}")
            if i: a(f"v_or_b32 v{tv+8+i}, {i<<14}, v{tv+8+i}")
    def wr(tv):
        for i in range(4):
            a(f"v_min_u32 v{tv+4+i}, 31, v{tv+4+i}")
            a(f"v_lshl_add_u32 v{tv+4+i}, v{tv+4+i}, 2, v{tv+12+i}")
            a(f"v_add_u32 v{tv+4+i}, s{st[4]}, v{tv+4+i}")
            a(f"ds_write_b32 v{tv+4+i}, v{tv+8+i}")
    a("v_lshlrev_b32 v7, 16, v0")
    a("s_waitcnt vmcnt(0)")
    rnd(0,16,20,32)
    a("v_cmp_gt_u32 vcc, 241, v0")
    a(f"s_and_saveexec_b64 s[{st[6]}:{st[7]}], vcc")
    a("s_cbranch_execz pa_r1done")
    a(f"v_add_u32 v7, {(4*384)<<14}, v7")
    rnd(1,24,28,48)
    a("s_waitcnt lgkmcnt(0)")
    wr(48)
    a("pa_r1done:")
    a(f"s_mov_b64 exec, s[{st[6]}:{st[7]}]")
    a("s_waitcnt lgkmcnt(0)")
    wr(32)
    a("s_waitcnt lgkmcnt(0)")
    a("pa_b1:")
    a("s_barrier")
    a(f"s_cmp_ge_u32 s{sWV}, 6")
    a("s_cbranch_scc1 pa_b2")
    a("v_lshrrev_b32 v4, 3, v0")
    a("v_and_b32 v5, 7, v0")
    a(f"v_mul_u32_u24 v6, {IMG_S}, v4")
    a("v_lshl_add_u32 v6, v5, 4, v6")
    a(f"v_add_u32 v6, {IMG}, v6")
    a("v_lshlrev_b32 v7, 2, v4")
    a(f"v_add_u32 v7, {CNT}, v7")
    for r in range(6):
        if r==5:
            a("v_cmp_gt_u32 vcc, 128, v0")
            a(f"s_and_saveexec_b64 s[{st[6]}:{st[7]}], vcc")
        a(f"ds_read_b128 v[{16+4*r}:{19+4*r}], v6 offset:{r*48*IMG_S}")
        a(f"ds_read_b32 v{40+r}, v7 offset:{r*48*4}")
    a(f"s_mov_b64 exec, s[{st[6]}:{st[7]}]")
    a("v_lshlrev_b32 v8, 15, v4")
    a("v_lshl_add_u32 v8, v5, 4, v8")
    a("v_cmp_eq_u32 vcc, 0, v5")
    a(f"s_lshl_b32 s{st[0]}, s2, 7")
    a("s_waitcnt lgkmcnt(0)")
    for r in range(6): a(f"v_cndmask_b32 v{16+4*r}, v{16+4*r}, v{40+r}, vcc")
    for r in range(6):
        if r==5:
            a("v_cmp_gt_u32 vcc, 128, v0")
            a(f"s_and_saveexec_b64 s[{st[6]}:{st[7]}], vcc")
            a("s_cbranch_execz pa_st5")
        a(f"buffer_store_dwordx4 v[{16+4*r}:{19+4*r}], v8, s[{S_T}:{S_T+3}], s{st[0]} offen sc1")
        if r<5: a(f"s_add_u32 s{st[0]}, s{st[0]}, {48*32768}")
    a("pa_st5:")
    a(f"s_mov_b64 exec, s[{st[6]}:{st[7]}]")
    a("s_waitcnt vmcnt(0)")
    a("pa_b2:")
    a("s_barrier")

def gen(dbg=None):
    DBG[0]=dbg
    a=Asm()
    R=D[0]; HD=PD; RANK=EE; EB=QA; WB=PN
    a("s_cmp_ge_u32 s2, 256")
    a("s_cbranch_scc1 k_end")
    if dbg=="stamp": a(f"v_mov_b32 v{vS}, 0")
    if dbg!="dbgtime": stamp(a,0,11)
    a("s_load_dwordx16 s[48:63], s[0:1], 0")
    a("s_load_dwordx4 s[64:67], s[0:1], 64")
    a("s_load_dwordx2 s[92:93], s[0:1], 80")
    a("v_and_b32 v1, 63, v0")
    a("v_lshrrev_b32 v2, 6, v0")
    a("s_mul_i32 s43, s2, 625")
    a(f"v_readfirstlane_b32 s{sWV}, v2")
    if dbg=="dbgtime":
        a("s_nop 3"); stamp(a,0)
    a(f"v_lshlrev_b32 v{vT0}, 4, v0")
    for i in range(4): a(f"v_mov_b32 v{PN+i}, 0")
    fill_region(a,HIST,XL,PN)
    fill_region(a,CNT,1024,PN)
    a("s_add_u32 s44, s43, 640")
    a("s_add_u32 s43, s43, 15")
    a("s_lshr_b32 s43, s43, 4")
    a("s_lshr_b32 s44, s44, 4")
    a("s_sub_u32 s44, s44, s43")
    a(f"s_mul_i32 s{sXS}, s{sWV}, {XS_W}")
    a(f"s_add_u32 s{sXS}, s{sXS}, {XS}")
    a(f"s_lshl_b32 s{sES}, s{sWV}, 11")
    a(f"s_add_u32 s{sES}, s{sES}, {ES}")
    a("s_waitcnt lgkmcnt(0)")
    srd(a,S_DST,54,E*4); srd(a,S_SRC,52,E*4)
    a(f"s_sub_u32 s{S_X}, s48, {XBIAS}")
    a(f"s_subb_u32 s{S_X+1}, s49, 0")
    a(f"s_and_b32 s{S_X+1}, s{S_X+1}, 0xffff")
    a(f"s_mov_b32 s{S_X+2}, {XBYTES+XBIAS}")
    a(f"s_mov_b32 s{S_X+3}, 0x20000")
    srd(a,S_E,50,EBYTES); srd(a,S_T,92,TABLE_BYTES); srd(a,S_W,92,WF_BYTES,WF_OFF)
    srd(a,S_DBG,66,256); srd(a,S_FL,92,1024,FL_OFF)
    a("s_cmp_eq_u32 s2, 0")
    a("s_cbranch_scc0 k_notag")
    a(f"s_cmp_eq_u32 s{sWV}, 7")
    a("s_cbranch_scc0 k_notag")
    a(f"s_memrealtime s[{st[4]}:{st[5]}]")
    a("s_waitcnt lgkmcnt(0)")
    a(f"s_or_b32 s{st[4]}, s{st[4]}, 1")
    a(f"v_mov_b32 v2, s{st[4]}")
    a("v_mov_b32 v3, 0")
    a(f"buffer_store_dword v2, v3, s[{S_DBG}:{S_DBG+3}], 0 offen sc1")
    a("k_notag:")
    a("s_barrier")
    phase_a(a)
    stamp(a,1)
    srd(a,S_B1,58,256); srd(a,S_B2,62,128); srd(a,S_O,64,N*128)
    a(f"s_mov_b32 s{sSC}, 0x33800000")
    a(f"s_mov_b32 s{sSC+1}, 0x33800000")
    a(f"s_mov_b32 s{sSLOW}, 0")
    a(f"s_mov_b32 s{sSAFE}, 0")
    a(f"s_movk_i32 s{sXO}, {XBIAS}")
    a(f"s_movk_i32 s{sXO+1}, {XBIAS-1040}")
    a(f"s_movk_i32 s{sXO+2}, {XBIAS-2080}")
    a("v_lshrrev_b32 v2, 3, v1")
    a("v_and_b32 v3, 7, v1")
    a("v_and_b32 v4, 31, v1")
    a("v_lshrrev_b32 v5, 5, v1")
    a(f"s_lshr_b32 s{st[1]}, s{sWV}, 2")
    a(f"s_and_b32 s{st[2]}, s{sWV}, 3")
    a(f"s_lshl_b32 s{st[3]}, s{st[1]}, 5")
    a(f"s_add_u32 s{st[3]}, s{st[3]}, s{sNB}")
    a(f"v_add_u32 v12, s{st[3]}, v4")
    a("v_lshlrev_b32 v12, 7, v12")
    a("v_lshl_add_u32 v12, v5, 4, v12")
    for ks in range(4): a(f"buffer_load_dwordx4 {vr(A+4*ks)}, v12, s[{S_X}:{S_X+3}], s{sXO} offen offset:{ks*32}")
    a(f"s_lshl_b32 s{st[5]}, s{st[2]}, 6")
    a(f"v_lshl_add_u32 v13, v4, 1, s{st[5]}")
    a(f"buffer_load_ushort v{PD+4}, v13, s[{S_B1}:{S_B1+3}], 0 offen")
    a("v_lshlrev_b32 v7, 1, v2")
    a("v_and_b32 v7, 4, v7")
    a("v_xor_b32 v7, v3, v7")
    a(f"v_lshlrev_b32 v{vXc}, 4, v7")
    a("v_lshrrev_b32 v7, 4, v1")
    a("v_xor_b32 v7, v1, v7")
    a("v_and_b32 v7, 1, v7")
    a(f"v_lshlrev_b32 v{vEc}, 4, v7")
    a("v_and_b32 v7, 3, v4")
    a("v_bfe_u32 v8, v4, 2, 1")
    a("v_lshrrev_b32 v9, 3, v4")
    a("v_lshl_add_u32 v10, v8, 2, v9")
    a("v_mul_u32_u24 v11, 1040, v7")
    a("v_lshl_add_u32 v11, v10, 7, v11")
    a("v_lshl_add_u32 v11, v5, 4, v11")
    a(f"v_add_u32 v11, s{sXS}, v11")
    a("v_bfe_u32 v12, v10, 1, 1")
    a("v_lshlrev_b32 v12, 6, v12")
    a(f"v_add_u32 v{vAx01}, v11, v12")
    a(f"v_sub_u32 v{vAx23}, v11, v12")
    a("v_lshl_add_u32 v11, v10, 2, v7")
    a("v_bfe_u32 v12, v11, 3, 1")
    a("v_xor_b32 v12, v5, v12")
    a("v_lshlrev_b32 v12, 4, v12")
    a("v_lshl_add_u32 v12, v11, 5, v12")
    a(f"v_add_u32 v{vAe}, s{sES}, v12")
    a(f"v_lshlrev_b32 v{vQc}, 2, v4")
    a(f"v_add_u32 v{vQc}, {QP}, v{vQc}")
    a("v_lshlrev_b32 v12, 2, v5")
    a("v_sub_u32 v12, v10, v12")
    a("v_mov_b32 v13, 0x3f803f80")
    for r in range(4): a(f"v_cmp_eq_u32 s[{st[0]+2*r}:{st[1]+2*r}], {r}, v12")
    a("v_cmp_eq_u32 vcc, v8, v5")
    for r in range(4): a(f"v_cndmask_b32_e64 v{ACS+r}, 0, v13, s[{st[0]+2*r}:{st[1]+2*r}]")
    for i in range(12): a(f"v_mov_b32 v{FQ+i}, 0")
    a(f"v_cndmask_b32 v{ACF}, 0, v13, vcc")
    for i in range(10): a(f"v_mov_b32 v{HR+i}, 0")
    a(f"v_lshlrev_b32 v{vT0}, 4, v0")
    init_lists(a,KT,KT+4)
    for i in range(4): a(f"v_mov_b32 v{KT+i}, 0")
    fill_region(a,QP+40*512,512,KT)
    fill_region(a,SEG+ZROW*1024,1024,KT)
    a(f"s_lshl_b32 s{st[0]}, s{sWV}, 5")
    a(f"v_add_u32 v2, s{st[0]}, v2")
    a("v_mul_u32_u24 v2, 2500, v2")
    for k in range(4): a(f"v_add_u32 v{EB+k}, {k*8*2500}, v2")
    for i in range(4):
        a(f"v_lshlrev_b32 v{XO+i}, 2, v3")
        a(f"v_add_u32 v{XO+i}, {i-1}, v{XO+i}")
    stamp(a,2)
    phase_a2(a)
    stamp(a,3)
    a(f"s_cmp_eq_u32 s{sWV}, 0")
    a("s_cbranch_scc0 k_wait_done")
    a("v_mov_b32 v6, 0")
    a(f"s_mov_b32 s{st[1]}, 400000")
    a("k_tagpoll:")
    a(f"buffer_load_dword v7, v6, s[{S_DBG}:{S_DBG+3}], 0 offen sc1")
    a("s_waitcnt vmcnt(0)")
    a(f"v_readfirstlane_b32 s{st[0]}, v7")
    a(f"s_sub_u32 s{st[1]}, s{st[1]}, 1")
    a("s_cbranch_scc1 k_tagdone")
    a(f"s_cmp_eq_u32 s{st[0]}, 0")
    a("s_cbranch_scc1 k_tagpoll")
    a("k_tagdone:")
    a(f"s_lshl_b32 s{st[2]}, s2, 2")
    a(f"v_mov_b32 v6, s{st[2]}")
    a(f"v_mov_b32 v7, s{st[0]}")
    a(f"s_mov_b64 s[{st[6]}:{st[7]}], exec")
    a("s_mov_b64 exec, 1")
    a(f"buffer_store_dword v7, v6, s[{S_FL}:{S_FL+3}], 0 offen sc1")
    a(f"s_mov_b64 exec, s[{st[6]}:{st[7]}]")
    a("v_lshlrev_b32 v6, 4, v1")
    a(f"s_mov_b32 s{st[1]}, 400000")
    a("s_sleep 8")
    a("k_poll:")
    a(f"buffer_load_dwordx4 v[8:11], v6, s[{S_FL}:{S_FL+3}], 0 offen sc1")
    a("s_waitcnt vmcnt(0)")
    a(f"v_cmp_ne_u32 vcc, s{st[0]}, v8")
    a(f"v_cmp_ne_u32 s[{st[4]}:{st[5]}], s{st[0]}, v9")
    a(f"s_or_b64 vcc, vcc, s[{st[4]}:{st[5]}]")
    a(f"v_cmp_ne_u32 s[{st[4]}:{st[5]}], s{st[0]}, v10")
    a(f"s_or_b64 vcc, vcc, s[{st[4]}:{st[5]}]")
    a(f"v_cmp_ne_u32 s[{st[4]}:{st[5]}], s{st[0]}, v11")
    a(f"s_or_b64 vcc, vcc, s[{st[4]}:{st[5]}]")
    a("s_cmp_eq_u64 vcc, 0")
    a("s_cbranch_scc1 k_wait_done")
    a(f"s_sub_u32 s{st[1]}, s{st[1]}, 1")
    a("s_cbranch_scc1 k_wait_done")
    a("s_sleep 6")
    a("s_branch k_poll")
    a("k_wait_done:")
    a("s_barrier")
    stamp(a,4)
    a("v_lshlrev_b32 v14, 4, v1")
    a("v_lshrrev_b32 v15, 3, v1")
    a("v_lshlrev_b32 v15, 7, v15")
    a(f"s_lshl_b32 s{st[0]}, s2, 15")
    a(f"s_lshl_b32 s{st[1]}, s{sWV}, 12")
    a(f"s_add_u32 s{st[0]}, s{st[0]}, s{st[1]}")
    for k in range(4): a(f"buffer_load_dword v{HD+k}, v15, s[{S_T}:{S_T+3}], s{st[0]} offen offset:{k*1024} sc1")
    for k in range(4): a(f"buffer_load_dwordx4 {vr(R+4*k)}, v14, s[{S_T}:{S_T+3}], s{st[0]} offen offset:{k*1024} sc1")
    a(f"s_and_b32 s{st[2]}, s{sWV}, 3")
    a(f"s_lshl_b32 s{st[4]}, s{st[2]}, 12")
    a(f"s_add_u32 s{st[4]}, s{st[4]}, {20*1024}")
    for ks in range(4): a(f"buffer_load_dwordx4 {vr(WB+4*ks)}, v14, s[{S_W}:{S_W+3}], s{st[4]} offen offset:{ks*1024} sc1")
    a(f"s_lshl_b32 s{st[6]}, s{sWV}, 10")
    a(f"s_add_u32 s{st[5]}, s{st[6]}, 8192")
    a(f"s_add_u32 s{st[7]}, s{st[6]}, 16384")
    WT=W
    a(f"buffer_load_dwordx4 {vr(WT)}, v14, s[{S_W}:{S_W+3}], s{st[6]} offen sc1")
    a(f"buffer_load_dwordx4 {vr(WT+4)}, v14, s[{S_W}:{S_W+3}], s{st[5]} offen sc1")
    a(f"buffer_load_dwordx4 {vr(WT+8)}, v14, s[{S_W}:{S_W+3}], s{st[7]} offen sc1")
    a("s_waitcnt vmcnt(7)")
    stamp(a,5)
    for k in range(4):
        for i in range(4):
            e=4*k+i
            a(f"v_cmp_lt_u32 s[{sMK+2*e}:{sMK+2*e+1}], v{XO+i}, v{HD+k}")
    a(f"v_max_u32 v{vT0}, v{HD}, v{HD+1}")
    a(f"v_max3_u32 v{vT0}, v{HD+2}, v{HD+3}, v{vT0}")
    a(f"v_cmp_lt_u32 vcc, 31, v{vT0}")
    a("s_cbranch_vccz k_noovf")
    a(f"v_mov_b32 v{vT0}, {FLAG}")
    a(f"v_mov_b32 v{vT1}, 1")
    a(f"ds_write_b32 v{vT0}, v{vT1}")
    a("k_noovf:")
    ND=D[1]
    def hist(a):
        for e in range(16):
            a(f"v_lshrrev_b32 v{ND+e}, 26, v{R+e}")
            a(f"v_lshlrev_b32 v{RANK+e}, 2, v{ND+e}")
        a(f"v_mov_b32 v{vT1}, 1")
        for e in range(16):
            a(f"s_mov_b64 exec, s[{sMK+2*e}:{sMK+2*e+1}]")
            a(f"ds_add_rtn_u32 v{RANK+e}, v{RANK+e}, v{vT1}")
        a("s_mov_b64 exec, -1")
    hist(a)
    a("s_waitcnt vmcnt(0)")
    QD=FQ-0
    QD=W+16
    a(mfma(QD,A,WB,None))
    for ks in range(1,4): a(mfma(QD,A+4*ks,WB+4*ks,QD))
    a(f"v_add_u32 v13, {WST}, v14")
    a(f"s_lshl_b32 s{st[6]}, s{sWV}, 10")
    a(f"v_add_u32 v13, s{st[6]}, v13")
    a(f"ds_write_b128 v13, {vr(WT)}")
    a(f"ds_write_b128 v13, {vr(WT+4)} offset:8192")
    a(f"s_cmp_lt_u32 s{sWV}, 4")
    a("s_cbranch_scc0 k_w3")
    a(f"ds_write_b128 v13, {vr(WT+8)} offset:16384")
    a("k_w3:")
    a(f"v_lshlrev_b32 v{PD+4}, 16, v{PD+4}")
    a(f"s_mov_b32 s{st[5]}, {f2u(NEG_LOG2E):#x}")
    a(f"s_lshr_b32 s{st[1]}, s{sWV}, 2")
    a(f"s_and_b32 s{st[2]}, s{sWV}, 3")
    a("v_lshrrev_b32 v5, 5, v1")
    a("v_and_b32 v4, 31, v1")
    a(f"s_lshl_b32 s{st[3]}, s{st[1]}, 14")
    a(f"s_lshl_b32 s{st[4]}, s{st[2]}, 7")
    a(f"s_add_u32 s{st[3]}, s{st[3]}, s{st[4]}")
    a(f"s_add_u32 s{st[3]}, s{st[3]}, {QP}")
    a("v_lshlrev_b32 v12, 11, v5")
    a("v_lshl_add_u32 v12, v4, 2, v12")
    a(f"v_add_u32 v12, s{st[3]}, v12")
    a("s_nop 1")
    for r in range(16):
        if r==4:
            a(f"s_cmp_eq_u32 s{st[1]}, 0")
            a("s_cbranch_scc0 k_qdone")
        t=KT+(r&3)
        a(f"v_add_f32 v{QD+r}, v{QD+r}, v{PD+4}")
        a(f"v_mul_f32 v{QD+r}, s{st[5]}, v{QD+r}")
        a(f"v_cvt_pk_bf16_f32 v{t}, v{QD+r}, v{QD+r}")
        a(f"v_lshlrev_b32 v{vT1}, 16, v{t}")
        a(f"v_sub_f32 v{vT1}, v{QD+r}, v{vT1}")
        a(f"v_cvt_pk_bf16_f32 v{t}, v{QD+r}, v{vT1}")
        a(f"ds_write_b32 v12, v{t} offset:{((r>>2)*8+(r&3))*512}")
    a("k_qdone:")
    a("s_waitcnt lgkmcnt(0)")
    stamp(a,6)
    a("s_barrier")
    a(f"v_add_u32 v14, {WST}, v14")
    for f in range(20): a(f"ds_read_b128 {vr(W+4*f)}, v14 offset:{f*1024}")
    a("k_scan:")
    a(f"v_lshlrev_b32 v{vT0}, 2, v1")
    a(f"ds_read_b32 v{PN}, v{vT0} offset:{HIST}")
    a(f"v_mov_b32 v{vT1}, {FLAG}")
    a(f"ds_read_b32 v{PN+1}, v{vT1}")
    a("s_waitcnt lgkmcnt(0)")
    a(f"v_add_u32 v{PN+2}, 3, v{PN}")
    a(f"v_and_b32 v{PN+2}, -4, v{PN+2}")
    a(f"v_mov_b32 v{PN+3}, v{PN+2}")
    for sh in ("row_shr:1 row_mask:0xf","row_shr:2 row_mask:0xf","row_shr:4 row_mask:0xf","row_shr:8 row_mask:0xf","row_bcast:15 row_mask:0xa","row_bcast:31 row_mask:0xc"):
        a("s_nop 1")
        a(f"v_add_u32_dpp v{PN+3}, v{PN+3}, v{PN+3} {sh} bank_mask:0xf")
    a("s_nop 0")
    a(f"v_readlane_b32 s{sTOT}, v{PN+3}, 63")
    a(f"v_readfirstlane_b32 s{st[0]}, v{PN+1}")
    a(f"v_sub_u32 v{PN+3}, v{PN+3}, v{PN+2}")
    a(f"s_cmp_lg_u32 s{sSLOW}, 0")
    a("s_cbranch_scc1 k_okcap")
    a(f"s_cmp_gt_u32 s{sTOT}, {LCAP}")
    a(f"s_cselect_b32 s{st[1]}, 1, 0")
    a(f"s_or_b32 s{st[0]}, s{st[0]}, s{st[1]}")
    a(f"s_cmp_lg_u32 s{st[0]}, 0")
    a("s_cbranch_scc1 k_goslow")
    a("k_okcap:")
    a(f"s_add_u32 s{sNT}, s{sTOT}, 31")
    a(f"s_lshr_b32 s{sNT}, s{sNT}, 5")
    BS=A
    for e in range(16):
        a(f"v_lshlrev_b32 v{vT1}, 2, v{ND+e}")
        a(f"ds_bpermute_b32 v{BS+e}, v{vT1}, v{PN+3}")
    a(f"s_cmp_eq_u32 s{sWV}, 0")
    a("s_cbranch_scc0 k_nodeg")
    a(f"v_sub_u32 v{PN+2}, v{PN+2}, v{PN}")
    a(f"ds_add_u32 v{vT0}, v{PN} offset:{DEG}")
    a(f"ds_add_u32 v{vT0}, v{PN+2} offset:{PADC}")
    a(f"ds_write_b32 v{vT0}, v{PN+3} offset:{BASE}")
    a("k_nodeg:")
    a(f"s_movk_i32 s{st[0]}, 0x3fff")
    XV=PD
    EV=PN+4
    for e in range(16):
        a(f"v_lshlrev_b32 v{ND+e}, 9, v{ND+e}")
    a("s_waitcnt lgkmcnt(0)")
    for e in range(16):
        k=e>>2
        a(f"v_add_u32 v{BS+e}, v{BS+e}, v{RANK+e}")
        a(f"v_bfe_u32 v{RANK+e}, v{R+e}, 14, 12")
        a(f"v_and_b32 v{R+e}, s{st[0]}, v{R+e}")
        a(f"v_add_lshl_u32 v{RANK+e}, v{RANK+e}, v{EB+k}, 5")
        a(f"v_lshlrev_b32 v{R+e}, 7, v{R+e}")
        a(f"v_and_b32 v{vT1}, -4, v{BS+e}")
        a(f"v_lshlrev_b32 v{BS+e}, 2, v{BS+e}")
        a(f"s_mov_b64 exec, s[{sMK+2*e}:{sMK+2*e+1}]")
        a(f"ds_write_b32 v{BS+e}, v{R+e} offset:{XL}")
        a(f"ds_write_b32 v{BS+e}, v{RANK+e} offset:{EL}")
        a(f"ds_write_b32 v{vT1}, v{ND+e} offset:{QT}")
        a("s_mov_b64 exec, -1")
    a(f"s_mov_b32 m0, s{sXS}")
    a("s_waitcnt vmcnt(0) lgkmcnt(0)")
    stamp(a,7)
    a("s_barrier")
    stamp(a,8,12)
    a("k_main:")
    a(f"s_cmp_lg_u32 s{sSAFE}, 0")
    a("s_cbranch_scc1 k_main_safe")
    main_loop(a,"pair")
    a("s_branch k_mjoin")
    a("k_main_safe:")
    main_loop(a,"safe")
    a("k_mjoin:")
    a("s_waitcnt vmcnt(0) lgkmcnt(0)")
    stamp(a,9,13)
    a(f"s_and_b32 s{st[0]}, s{sWV}, 1")
    a(f"s_lshl_b32 s{st[1]}, s{st[0]}, 13")
    a(f"s_add_u32 s{st[1]}, s{st[1]}, {36*1024}")
    a(f"s_add_u32 s{st[2]}, s{st[1]}, 4096")
    a("v_lshlrev_b32 v14, 4, v1")
    W2F=D[0]
    for ks in range(8):
        a(f"buffer_load_dwordx4 {vr(W2F+4*ks)}, v14, s[{S_W}:{S_W+3}], s{st[1+(ks>>2)]} offen offset:{(ks&3)*1024} sc1")
    a("v_lshrrev_b32 v5, 5, v1")
    a(f"s_lshl_b32 s{st[3]}, s{st[0]}, 6")
    a(f"v_lshl_add_u32 v13, v5, 3, s{st[3]}")
    B2R=KT
    for q in range(4): a(f"buffer_load_dwordx2 {vr(B2R+2*q,2)}, v13, s[{S_B2}:{S_B2+3}], 0 offen offset:{q*16}")
    a(f"s_lshr_b32 s{st[0]}, s{sNT}, 3")
    a(f"s_and_b32 s{st[1]}, s{sNT}, 7")
    a("v_lshrrev_b32 v3, 1, v1")
    a("v_and_b32 v4, 1, v1")
    a(f"v_cmp_gt_u32 vcc, s{st[1]}, v3")
    a(f"v_mul_u32_u24 v6, s{st[0]}, v3")
    a(f"v_min_u32 v7, s{st[1]}, v3")
    a(f"v_cndmask_b32_e64 v5, 0, 1, vcc")
    a(f"v_add_u32 v5, s{st[0]}, v5")
    a("v_add_u32 v6, v6, v7")
    a("v_lshlrev_b32 v6, 3, v6")
    a("v_lshlrev_b32 v5, 2, v5")
    a("v_mul_u32_u24 v7, v5, v4")
    a("v_add_u32 v6, v6, v7")
    a("v_add_u32 v7, v6, v5")
    a("v_cmp_gt_u32 vcc, 16, v1")
    a("v_mov_b32 v8, 0x7fffffff")
    a(f"v_lshlrev_b32 v9, 4, v1")
    a("v_cndmask_b32 v6, v8, v6, vcc")
    a(f"v_add_u32 v9, {SEG}, v9")
    a(f"v_lshlrev_b32 v{vT0}, 2, v1")
    a(f"ds_read_b32 v2, v{vT0} offset:{BASE}")
    a("s_barrier")
    a("s_waitcnt lgkmcnt(0)")
    SR=EE
    for r in range(5):
        a(f"s_add_u32 s{st[2]}, s{sWV}, {8*r}")
        a(f"s_add_u32 s{st[3]}, s{st[2]}, 1")
        a(f"v_readlane_b32 s{st[4]}, v2, s{st[2]}")
        a(f"v_readlane_b32 s{st[5]}, v2, s{st[3]}")
        a("s_nop 1")
        a(f"s_lshr_b32 s{st[4]}, s{st[4]}, 2")
        a(f"s_lshr_b32 s{st[5]}, s{st[5]}, 2")
        a(f"v_cmp_gt_u32 vcc, s{st[5]}, v6")
        a(f"v_cmp_lt_u32 s[{st[6]}:{st[7]}], s{st[4]}, v7")
        a(f"s_and_b64 vcc, vcc, s[{st[6]}:{st[7]}]")
        a(f"s_cmp_lt_u32 s{st[4]}, s{st[5]}")
        a(f"s_cselect_b32 s{sMK+r}, vcc_lo, 0")
        for t in range(2):
            a(f"s_ff1_i32_b32 s{st[4]}, s{sMK+r}")
            a(f"s_add_u32 s{st[5]}, s{st[4]}, s{st[2]}")
            a(f"s_cmp_eq_u32 s{sMK+r}, 0")
            a(f"s_cselect_b32 s{st[5]}, {ZROW}, s{st[5]}")
            a(f"s_lshl_b32 s{st[5]}, s{st[5]}, 10")
            a(f"v_add_u32 v10, s{st[5]}, v9")
            a(f"ds_read_b128 {vr(SR+8*r+4*t)}, v10")
            a(f"s_add_u32 s{st[4]}, s{sMK+r}, -1")
            a(f"s_and_b32 s{sMK+r}, s{sMK+r}, s{st[4]}")
    a("s_waitcnt lgkmcnt(0)")
    for r in range(5):
        for c in range(2):
            a(f"v_add_f32 v{SR+8*r+2*c}, v{SR+8*r+2*c}, v{SR+8*r+2*c+1}")
            a(f"v_add_f32 v{SR+8*r+4+2*c}, v{SR+8*r+4+2*c}, v{SR+8*r+4+2*c+1}")
            a(f"v_add_f32 v{HR+2*r+c}, v{HR+2*r+c}, v{SR+8*r+2*c}")
            a(f"v_add_f32 v{HR+2*r+c}, v{HR+2*r+c}, v{SR+8*r+4+2*c}")
    for r in range(5):
        a(f"k_more_{r}:")
        a(f"s_cmp_eq_u32 s{sMK+r}, 0")
        a(f"s_cbranch_scc1 k_moredone_{r}")
        a(f"s_ff1_i32_b32 s{st[4]}, s{sMK+r}")
        a(f"s_add_u32 s{st[5]}, s{st[4]}, s{sWV}")
        a(f"s_add_u32 s{st[5]}, s{st[5]}, {8*r}")
        a(f"s_lshl_b32 s{st[5]}, s{st[5]}, 10")
        a(f"v_add_u32 v10, s{st[5]}, v9")
        a(f"ds_read_b128 {vr(SR)}, v10")
        a(f"s_add_u32 s{st[4]}, s{sMK+r}, -1")
        a(f"s_and_b32 s{sMK+r}, s{sMK+r}, s{st[4]}")
        a("s_waitcnt lgkmcnt(0)")
        for c in range(2):
            a(f"v_add_f32 v{SR+2*c}, v{SR+2*c}, v{SR+2*c+1}")
            a(f"v_add_f32 v{HR+2*r+c}, v{HR+2*r+c}, v{SR+2*c}")
        a(f"s_branch k_more_{r}")
        a(f"k_moredone_{r}:")
    a(f"s_cmp_eq_u32 s{sSLOW}, 0")
    a("s_cbranch_scc1 k_epi")
    a("s_waitcnt vmcnt(0)")
    a("s_barrier")
    a(f"s_add_u32 s{sB0}, s{sB0}, 2048")
    a(f"s_cmp_lt_u32 s{sB0}, {E}")
    a("s_cbranch_scc1 k_slowfetch")
    a("s_branch k_epi")
    a("k_goslow:")
    a(f"s_mov_b32 s{sSLOW}, 1")
    a(f"s_mov_b32 s{sSAFE}, 1")
    a(f"s_mov_b32 s{sB0}, 0")
    a("s_waitcnt lgkmcnt(0)")
    a("s_barrier")
    a("k_slowfetch:")
    a(f"s_lshl_b32 s{st[0]}, s{sB0}, 2")
    a(f"v_lshlrev_b32 v{vT1}, 4, v0")
    a(f"v_add_u32 v{vT1}, s{st[0]}, v{vT1}")
    a(f"buffer_load_dwordx4 {vr(A)}, v{vT1}, s[{S_DST}:{S_DST+3}], 0 offen")
    a(f"buffer_load_dwordx4 {vr(A+4)}, v{vT1}, s[{S_SRC}:{S_SRC+3}], 0 offen")
    a(f"v_lshlrev_b32 v{vT0}, 4, v0")
    init_lists(a,KT,KT+4)
    for i in range(4): a(f"v_mov_b32 v{PD+i}, 0")
    fill_region(a,HIST,256,PD)
    a(f"v_lshlrev_b32 v{EB}, 2, v0")
    a(f"v_add_u32 v{EB}, s{sB0}, v{EB}")
    a(f"s_mov_b32 s{st[0]}, {MAGIC}")
    a(f"s_mov_b32 s{st[1]}, {E}")
    a("s_waitcnt vmcnt(0)")
    for i in range(4):
        a(f"v_mul_hi_u32 v{A+8+i}, v{A+i}, s{st[0]}")
        a(f"v_subrev_u32 v{A+i}, s{sNB}, v{A+i}")
        a(f"v_lshlrev_b32 v{A+i}, 26, v{A+i}")
        a(f"v_or_b32 v{R+i}, v{A+i}, v{A+4+i}")
        if i: a(f"v_or_b32 v{R+i}, {i<<14}, v{R+i}")
    a(f"v_cmp_gt_u32 vcc, s{st[1]}, v{EB}")
    for i in range(4):
        a(f"v_cmp_eq_u32 s[{sMK+2*i}:{sMK+2*i+1}], s2, v{A+8+i}")
        a(f"s_and_b64 s[{sMK+2*i}:{sMK+2*i+1}], s[{sMK+2*i}:{sMK+2*i+1}], vcc")
    for e in range(4,16): a(f"s_mov_b64 s[{sMK+2*e}:{sMK+2*e+1}], 0")
    a("s_waitcnt lgkmcnt(0)")
    a("s_barrier")
    hist(a)
    a("s_waitcnt lgkmcnt(0)")
    a("s_barrier")
    a("s_branch k_scan")
    a("k_epi:")
    stamp(a,10)
    a(f"v_lshlrev_b32 v2, 3, v1")
    a(f"s_lshl_b32 s{st[3]}, s{sWV}, 9")
    a(f"s_add_u32 s{st[3]}, s{st[3]}, {QP}")
    a(f"v_add_u32 v2, s{st[3]}, v2")
    a(f"s_lshl_b32 s{st[3]}, s{sWV}, 2")
    a(f"v_mov_b32 v3, s{st[3]}")
    a(f"s_mul_i32 s{st[3]}, s{sWV}, 272")
    a(f"s_add_u32 s{st[3]}, s{st[3]}, {HH}")
    a(f"v_lshl_add_u32 v4, v1, 2, s{st[3]}")
    QR=EE; PC=EE+10; T=PD
    for r in range(5):
        a(f"ds_read_b64 {vr(QR+2*r,2)}, v2 offset:{r*8*512}")
        a(f"ds_read_b32 v{PC+r}, v3 offset:{PADC+r*32}")
    a(f"s_mov_b32 s{st[4]}, {f2u(-0.6931471805599453*2.0**-24):#x}")
    a(f"s_mov_b32 s{st[5]}, 0xffff0000")
    a(f"v_mov_b32 v5, 0x207")
    a(f"s_mov_b64 s[{st[6]}:{st[7]}], 0")
    a("s_waitcnt lgkmcnt(0)")
    HV=A; TA=A+10; TB=PN
    for r in range(5):
        a(f"v_cvt_f32_u32 v{PC+r}, v{PC+r}")
    for x in range(10):
        a(f"v_lshlrev_b32 v{TA+x if x<10 else 0}, 16, v{QR+x}")
        a(f"v_and_b32 v{TB+x}, s{st[5]}, v{QR+x}")
        a(f"v_add_f32 v{TA+x}, v{TA+x}, v{TB+x}")
    for x in range(10): a(f"v_exp_f32 v{TB+x}, v{TA+x}")
    for x in range(10): a(f"v_fma_f32 v{TB+x}, v{TB+x}, s{sSC}, s{sSC}")
    for x in range(10): a(f"v_rcp_f32 v{TB+x}, v{TB+x}")
    for x in range(10): a(f"v_mul_f32 v{TB+x}, v{TA+x}, v{TB+x}")
    for x in range(10):
        a(f"v_fma_f32 v{HV+x}, -v{TB+x}, v{PC+(x>>1)}, v{HR+x}")
        a(f"v_cmp_class_f32 vcc, v{HR+x}, v5")
        a(f"s_or_b64 s[{st[6]}:{st[7]}], s[{st[6]}:{st[7]}], vcc")
        a(f"v_mul_f32 v{HV+x}, s{st[4]}, v{HV+x}")
    for r in range(5):
        h0=HV+2*r
        a(f"v_cvt_pk_bf16_f32 v{T}, v{h0}, v{h0+1}")
        a(f"v_lshlrev_b32 v{T+1}, 16, v{T}")
        a(f"v_and_b32 v{T+2}, s{st[5]}, v{T}")
        a(f"v_sub_f32 v{T+1}, v{h0}, v{T+1}")
        a(f"v_sub_f32 v{T+2}, v{h0+1}, v{T+2}")
        a(f"ds_write_b32 v4, v{T} offset:{r*8*272}")
        a(f"v_cvt_pk_bf16_f32 v{T+3}, v{T+1}, v{T+2}")
        a(f"ds_write_b32 v4, v{T+3} offset:{r*8*272+HL-HH}")
    a(f"s_cmp_eq_u64 s[{st[6]}:{st[7]}], 0")
    a("s_cbranch_scc1 k_fin")
    a(f"v_mov_b32 v{vT0}, {FLAG+4}")
    a(f"v_mov_b32 v{vT1}, 1")
    a(f"ds_write_b32 v{vT0}, v{vT1}")
    a("k_fin:")
    a("s_waitcnt lgkmcnt(0)")
    a("s_barrier")
    a(f"v_mov_b32 v{vT0}, {FLAG+4}")
    a(f"ds_read_b32 v{vT1}, v{vT0}")
    a(f"s_lshr_b32 s{st[1]}, s{sWV}, 1")
    a("v_and_b32 v4, 31, v1")
    a("v_lshrrev_b32 v5, 5, v1")
    a(f"s_lshl_b32 s{st[2]}, s{st[1]}, 5")
    a(f"v_add_u32 v6, s{st[2]}, v4")
    a("s_waitcnt lgkmcnt(0)")
    a(f"v_readfirstlane_b32 s{st[0]}, v{vT1}")
    a(f"s_andn2_b32 s{st[0]}, s{st[0]}, s{sSAFE}")
    a(f"s_cmp_lg_u32 s{st[0]}, 0")
    a("s_cbranch_scc0 k_final")
    a(f"s_mov_b32 s{sSAFE}, 1")
    a("s_waitcnt vmcnt(0)")
    for i in range(10): a(f"v_mov_b32 v{HR+i}, 0")
    a("s_barrier")
    a("s_branch k_main")
    a("k_final:")
    if dbg=="stamp":
        a(f"s_cmp_ge_u32 s{sWV}, 4")
        a("s_cbranch_scc0 k_final2")
        stamp_out(a)
        a("s_endpgm")
        a("k_final2:")
    a(f"s_cmp_ge_u32 s{sWV}, 4")
    a("s_cbranch_scc1 k_end")
    a("v_mul_u32_u24 v7, 272, v6")
    a("v_lshl_add_u32 v7, v5, 4, v7")
    a(f"v_add_u32 v7, {HH}, v7")
    for ks in range(8):
        a(f"ds_read_b128 {vr(W+8*ks)}, v7 offset:{ks*32}")
        a(f"ds_read_b128 {vr(W+8*ks+4)}, v7 offset:{ks*32+HL-HH}")
    a("v_lshlrev_b32 v8, 2, v6")
    a(f"ds_read_b32 v9, v8 offset:{DEG}")
    a(f"s_mov_b32 s{st[5]}, 0xffff0000")
    BU=A
    a("s_waitcnt vmcnt(0)")
    for q in range(4):
        for c in range(2):
            a(f"v_lshlrev_b32 v{BU+4*q+2*c}, 16, v{B2R+2*q+c}")
            a(f"v_and_b32 v{BU+4*q+2*c+1}, s{st[5]}, v{B2R+2*q+c}")
    OD=EE
    for ks in range(8):
        a(f"s_waitcnt lgkmcnt({max(0,15-2*ks) if ks<8 else 0})") if False else None
    a("s_waitcnt lgkmcnt(0)")
    for ks in range(8):
        a(mfma(OD,W2F+4*ks,W+8*ks,None if ks==0 else OD))
        a(mfma(OD,W2F+4*ks,W+8*ks+4,OD))
    a("v_cvt_f32_u32 v9, v9")
    a(f"s_and_b32 s{st[0]}, s{sWV}, 1")
    a(f"s_lshl_b32 s{st[0]}, s{st[0]}, 6")
    a(f"v_add_u32 v10, s{sNB}, v6")
    a("v_lshlrev_b32 v10, 7, v10")
    a("v_lshl_add_u32 v10, v5, 3, v10")
    a(f"v_add_u32 v10, s{st[0]}, v10")
    a(f"v_cmp_gt_u32 vcc, s{sNN}, v6")
    a("s_nop 7")
    for r in range(16): a(f"v_fma_f32 v{OD+r}, v9, v{BU+r}, v{OD+r}")
    for q in range(4):
        a(f"v_cvt_pk_bf16_f32 v{PD+2*q}, v{OD+4*q}, v{OD+4*q+1}")
        a(f"v_cvt_pk_bf16_f32 v{PD+2*q+1}, v{OD+4*q+2}, v{OD+4*q+3}")
    a(f"s_and_saveexec_b64 s[{st[6]}:{st[7]}], vcc")
    a("s_cbranch_execz k_end")
    for q in range(4): a(f"buffer_store_dwordx2 {vr(PD+2*q,2)}, v10, s[{S_O}:{S_O+3}], 0 offen offset:{q*16}")
    if dbg=="stamp":
        a("s_mov_b64 exec, -1")
        a("s_waitcnt vmcnt(0)")
        stamp_out(a)
    if dbg=="dbgtime":
        a("s_mov_b64 exec, -1")
        a("s_waitcnt vmcnt(0)")
        dstamp(a,6)
    a("k_end:")
    a("s_endpgm")
    return a
```

```python
from common import *
KNAME="gather_scatter__edge_featured_mpnn_mpnn__graph_kernel"
FL_OFF=WF_OFF+65536
TB_OFF=4<<20
LCAP=3328
HIST=0; DEG=256; PADC=512; FLAG=768; BASE=832
XL=1088; EL=XL+LCAP*4; QT=EL+LCAP*4; QP=QT+LCAP; XS=QP+41*512; XS_W=4160
ES=86016; assert XS+8*XS_W<=ES
SEG=ES+8*2048; ZROW=57; LDS_BYTES=SEG+58*1024
HH=XS; HL=HH+40*272; assert HL+64*272<=SEG
WST=XS
CNT=SEG; IMG=SEG+1024; IMG_S=144; assert IMG+256*IMG_S<=SEG+ZROW*1024
SENT=0x7FFFFF00
XBIAS=3120
W=16; A=96; D=[116,132]; EE=148; PD=164; PN=172; ACC=180; FQ=188; ACF=196; ACS=200; QB=204; QA=208; KT=212
XO=220; EO=224; vXLa=225; vELa=226; vQTa=227; QTV=228
vXc=232; vEc=233; vAx01=234; vAx23=235; vAe=236; vQc=237; vSegB=238; vPN=239; vPA=240; vT0=241; vT1=242; vT2=243
HR=244
NVGPR=254
vS=254
S_X=4; S_E=8; S_T=12; S_W=16; S_O=20; S_B1=24; S_B2=28; S_SRC=32; S_DST=36
sSC=40; sWV=42; sNB=43; sNN=44; sNT=45; sTOT=46; sSLOW=47; sMK=48
S_WR=68; S_DBG=72; S_FL=76
sSAFE=80; sB0=81; sCNT=82; sXO=83; sXS=86; sES=87; sME=88; sNW=89
st=[90,91,92,93,94,95,96,97,98,99]
XBYTES=N*128; EBYTES=E*32
DBG=[None]
def Wf(j,k): return W+(j*5+k)*4
def mfma(d,a_,b_,c=None):
    cs = "0" if c is None else vr(c,16)
    return f"v_mfma_f32_32x32x16_bf16 {vr(d,16)}, {vr(a_)}, {vr(b_)}, {cs}"
def chain(Dn,j):
    L=[mfma(Dn,A+0,Wf(j,0),None)]
    for k in range(1,4): L.append(mfma(Dn,A+4*k,Wf(j,k),Dn))
    L.append(mfma(Dn,A+16,Wf(j,4),Dn))
    return L
def qmf(Dn,j,typ):
    return mfma(Dn,ACF,FQ+2*j,Dn) if typ=="F" else mfma(Dn,ACS,QB,Dn)
def dstamp(a,slot):
    a(f"s_cmp_eq_u32 s{sWV}, 0")
    a(f"s_cbranch_scc0 ds_skip_{slot}")
    a("s_mov_b32 s97, 0")
    a("s_cmp_eq_u32 s2, 0")
    a(f"s_cbranch_scc1 ds_go_{slot}")
    a("s_mov_b32 s97, 28")
    a("s_cmp_eq_u32 s2, 255")
    a(f"s_cbranch_scc0 ds_skip_{slot}")
    a(f"ds_go_{slot}:")
    a("s_memrealtime s[100:101]")
    a("s_load_dwordx2 s[98:99], s[0:1], 72")
    a("s_waitcnt lgkmcnt(0)")
    a("v_mov_b32 v254, s100")
    a("v_mov_b32 v255, s97")
    a(f"global_store_dword v255, v254, s[98:99] offset:{4+slot*4}")
    a(f"ds_skip_{slot}:")
def stamp(a,idx,extra=None):
    if DBG[0]=="dbgtime":
        m={0:0,3:1,4:2,8:3,9:4,10:5}
        if idx in m: dstamp(a,m[idx])
        return
    if DBG[0]!="stamp": return
    a("s_memrealtime s[100:101]")
    a("s_waitcnt lgkmcnt(0)")
    a(f"v_writelane_b32 v{vS}, s100, {idx}")
    if extra is not None:
        a("s_memtime s[100:101]")
        a("s_waitcnt lgkmcnt(0)")
        a(f"v_writelane_b32 v{vS}, s100, {extra}")
def stamp_out(a):
    if DBG[0]!="stamp": return
    a(f"v_writelane_b32 v{vS}, s{sNT}, 14")
    a("s_load_dwordx2 s[92:93], s[0:1], 80")
    a("s_waitcnt lgkmcnt(0)")
    a(f"s_add_u32 s92, s92, {(17<<20)}")
    a("s_addc_u32 s93, s93, 0")
    a("s_and_b32 s93, s93, 0xffff")
    a("s_mov_b32 s94, 0x100000")
    a("s_mov_b32 s95, 0x20000")
    a("v_lshrrev_b32 v2, 6, v0")
    a("s_lshl_b32 s96, s2, 4")
    a("v_add_u32 v2, s96, v2")
    a("v_lshlrev_b32 v2, 6, v2")
    a("v_and_b32 v3, 63, v0")
    a("v_lshl_add_u32 v2, v3, 2, v2")
    a("v_cmp_gt_u32 vcc, 32, v3")
    a("s_and_saveexec_b64 s[96:97], vcc")
    a("v_cmp_gt_u32 vcc, 16, v3")
    a("s_and_b64 exec, exec, vcc")
    a(f"buffer_store_dword v{vS}, v2, s[92:95], 0 offen")
    a("s_mov_b64 exec, s[96:97]")

def dma_x():
    L=[]
    for i in range(4):
        so = f"s{sXO+i}" if i<3 else "0"
        off = f" offset:{i*1040}" if i else ""
        L.append(f"buffer_load_dwordx4 v{XO+i}, s[{S_X}:{S_X+3}], {so} offen{off} lds")
    return L
def dma_e(slot=None, filler="s_nop 0"):
    m = f"s_mov_b32 m0, s{sME}" if slot is None else f"s_add_u32 m0, s{sES}, {slot*1024}"
    return [[m,filler,f"buffer_load_dwordx4 v{EO}, s[{S_E}:{S_E+3}], 0 offen nt lds", f"s_mov_b32 m0, s{sXS}"]]
def read_A():
    return [f"ds_read_b128 {vr(A+0)}, v{vAx01}", f"ds_read_b128 {vr(A+4)}, v{vAx01} offset:32",
            f"ds_read_b128 {vr(A+8)}, v{vAx23} offset:64", f"ds_read_b128 {vr(A+12)}, v{vAx23} offset:96",
            f"ds_read_b128 {vr(A+16)}, v{vAe}"]
def off_calc():
    return [f"v_add_u32 v{XO+i}, v{XO+i}, v{vXc}" for i in range(4)]+[f"v_add_u32 v{EO}, v{EO}, v{vEc}"]
def flat(L):
    out=[]
    for x in L: out+= x if isinstance(x,list) else [x]
    return out

def stage(j, typ, variant, last, side_exp=[], side_pk=[], head=[], side_late=[]):
    Dc=D[j&1]; Dn=D[(j+1)&1]; jn=(j+1)&3
    L=list(head)
    if typ=="S" and not last:
        L+=[f"ds_read_b32 v{QB+i}, v{QA+i} offset:{jn*128}" for i in range(4)]
    ex=[f"v_exp_f32 v{EE+i}, v{Dc+i}" for i in range(16)]
    ph1=interleave(ex,chain(Dn,jn),3)
    L+=weave(ph1,side_exp,1)
    pk1=[f"v_pk_fma_f32 {vr(EE+2*i,2)}, {vr(EE+2*i,2)}, s[{sSC}:{sSC+1}], s[{sSC}:{sSC+1}]" for i in range(8)]
    q=[] if last else [qmf(Dn,jn,typ)]
    wq=[f"s_waitcnt lgkmcnt({5 if j==2 else 0})"] if (typ=="S" and not last) else []
    if variant=="pair":
        pk1+=[f"v_pk_mul_f32 {vr(PD+2*k,2)}, {vr(EE+4*k,2)}, {vr(EE+4*k+2,2)}" for k in range(4)]
        pk1+=[f"v_pk_mul_f32 {vr(PN+2*k,2)}, {vr(Dc+4*k,2)}, {vr(EE+4*k+2,2)}" for k in range(4)]
        L+=weave(pk1,side_pk,1)
        rc=[f"v_rcp_f32 v{PD+i}, v{PD+i}" for i in range(8)]
        L+=[rc[0]]+wq+q+weave(rc[1:],side_late,1)
        L+=[f"v_pk_fma_f32 {vr(PN+2*k,2)}, {vr(Dc+4*k+2,2)}, {vr(EE+4*k,2)}, {vr(PN+2*k,2)}" for k in range(4)]
        if typ=="F":
            L+=[f"v_pk_fma_f32 {vr(ACC+2*j,2)}, {vr(PN+2*k,2)}, {vr(PD+2*k,2)}, {vr(ACC+2*j,2)}" for k in range(4)]
            return L
        L+=[f"v_pk_mul_f32 {vr(PN+2*k,2)}, {vr(PN+2*k,2)}, {vr(PD+2*k,2)}" for k in range(4)]
    else:
        L+=weave(pk1,side_pk,1)
        rc=[f"v_rcp_f32 v{EE+i}, v{EE+i}" for i in range(16)]
        L+=[rc[0]]+wq+q+weave(rc[1:],side_late,1)
        L+=[f"v_pk_mul_f32 {vr(PN+2*k,2)}, {vr(Dc+4*k,2)}, {vr(EE+4*k,2)}" for k in range(4)]
        L+=[f"v_pk_fma_f32 {vr(PN+2*k,2)}, {vr(Dc+4*k+2,2)}, {vr(EE+4*k+2,2)}, {vr(PN+2*k,2)}" for k in range(4)]
    for k in range(4):
        L.append(f"ds_write_b64 v{KT+2*k+1}, {vr(ACC+2*j,2)} offset:{j*256}")
        L.append(f"v_pk_fma_f32 {vr(ACC+2*j,2)}, {vr(ACC+2*j,2)}, {vr(KT+2*k,2)}, {vr(PN+2*k,2)} op_sel_hi:[1,0,1]")
    return L

def tile(typ, variant):
    L=[]
    lists=[f"ds_read_b128 {vr(XO)}, v{vXLa}", f"ds_read_b32 v{EO}, v{vELa}"]
    qtread=[f"ds_read_b128 {vr(QTV)}, v{vQTa}"]
    incs=[f"v_add_u32 v{vXLa}, 64, v{vXLa}", f"v_add_u32 v{vELa}, 64, v{vELa}", f"v_add_u32 v{vQTa}, 16, v{vQTa}"]
    srdsel=[f"s_cmp_gt_u32 s{sCNT}, 2", f"s_cselect_b32 s{S_E+2}, {EBYTES}, 0"]
    if typ=="F":
        L.append(qmf(D[0],0,"F"))
        L+=lists+qtread+incs+srdsel+["s_nop 3"]
    else:
        L+=[f"v_add_u32 v{QA+i}, v{QTV+i}, v{vQc}" for i in range(4)]
        L+=[f"ds_read_b32 v{QB+i}, v{QA+i}" for i in range(4)]
        L+=[f"ds_read_b32 v{FQ+2*j}, v{QA+3} offset:{j*128}" for j in range(4)]
        L+=[f"v_cmp_eq_u32 s[{st[0]}:{st[1]}], v{QTV}, v{vPN}"]
        L+=[f"v_cmp_eq_u32 s[{st[0]+2*k}:{st[1]+2*k}], v{QTV+k}, v{QTV+k-1}" for k in range(1,4)]
        L+=[f"v_mov_b32 v{KT+1}, v{vPA}"]
        L+=[f"v_lshl_add_u32 v{KT+2*k+1}, v{QTV+k-1}, 1, v{vSegB}" for k in range(1,4)]
        L+=[f"v_lshl_add_u32 v{vPA}, v{QTV+3}, 1, v{vSegB}", f"v_mov_b32 v{vPN}, v{QTV+3}"]
        L+=[f"v_cndmask_b32_e64 v{KT+2*k}, 0, 1.0, s[{st[0]+2*k}:{st[1]+2*k}]" for k in range(4)]
        L+=["s_waitcnt lgkmcnt(0)", qmf(D[0],0,"S")]
        L+=lists+qtread+incs+srdsel+["s_nop 3"]
    L+=stage(0,typ,variant,False)
    head1=["s_waitcnt lgkmcnt(0)"]
    side1=[f"v_cmp_ne_u32 vcc, v{QTV+3}, v{vPN}"]+off_calc()
    L+=stage(1,typ,variant,False,side_exp=side1,head=head1)
    rA=read_A()
    L+=stage(2,typ,variant,False,side_pk=[["s_waitcnt vmcnt(1)",rA[0]]]+rA[1:])
    dx=dma_x(); de=dma_e(None,f"s_xor_b32 s{sME}, s{sME}, 1024")
    L+=stage(3,typ,variant,True,head=["s_waitcnt lgkmcnt(0)"],side_exp=dx[:3],side_pk=[dx[3]]+de,
             side_late=[f"v_xor_b32 v{vAe}, 1024, v{vAe}"])
    return L

def main_loop(a,variant):
    tag=variant
    sPW=st[6]
    a(f"s_lshr_b32 s{st[0]}, s{sNT}, 3")
    a(f"s_and_b32 s{st[1]}, s{sNT}, 7")
    a(f"s_cmp_lt_u32 s{sWV}, s{st[1]}")
    a(f"s_cselect_b32 s{st[2]}, 1, 0")
    a(f"s_add_u32 s{sNW}, s{st[0]}, s{st[2]}")
    a(f"s_mul_i32 s{sPW}, s{sWV}, s{st[0]}")
    a(f"s_min_u32 s{st[2]}, s{sWV}, s{st[1]}")
    a(f"s_add_u32 s{sPW}, s{sPW}, s{st[2]}")
    a(f"s_cmp_eq_u32 s{sNW}, 0")
    a(f"s_cbranch_scc1 L_mdone_{tag}")
    a(f"s_sub_u32 s{sCNT}, s{sNW}, 1")
    a(f"s_lshl_b32 s{st[3]}, s{sPW}, 3")
    a(f"s_lshl_b32 s{st[4]}, s{sNW}, 2")
    a("v_lshrrev_b32 v2, 3, v1")
    a("v_lshrrev_b32 v3, 2, v2")
    a("v_and_b32 v4, 3, v2")
    a(f"v_mul_u32_u24 v3, s{st[4]}, v3")
    a(f"v_add3_u32 v3, v3, v4, s{st[3]}")
    a(f"v_lshlrev_b32 v3, 4, v3")
    a(f"v_add_u32 v{vXLa}, {XL}, v3")
    a("v_lshrrev_b32 v2, 5, v1")
    a(f"v_mul_u32_u24 v3, s{st[4]}, v2")
    a(f"v_add_u32 v3, s{st[3]}, v3")
    a("v_bfe_u32 v4, v1, 1, 4")
    a("v_lshlrev_b32 v4, 2, v4")
    a("v_lshl_add_u32 v4, v3, 4, v4")
    a(f"v_add_u32 v{vELa}, {EL}, v4")
    a("v_lshlrev_b32 v4, 2, v3")
    a(f"v_add_u32 v{vQTa}, {QT}, v4")
    a(f"ds_read_b128 {vr(XO)}, v{vXLa}")
    a(f"ds_read_b32 v{EO}, v{vELa}")
    a(f"ds_read_b128 {vr(QTV)}, v{vQTa}")
    a(f"s_lshl_b32 s{st[5]}, s{sWV}, 11")
    a(f"s_add_u32 s{st[5]}, s{st[5]}, {SEG}")
    a("v_and_b32 v4, 31, v1")
    a("v_lshlrev_b32 v4, 3, v4")
    a("v_lshl_add_u32 v4, v2, 10, v4")
    a(f"v_add_u32 v{vSegB}, s{st[5]}, v4")
    a(f"v_and_b32 v{vAe}, 0xfffffbff, v{vAe}")
    a(f"s_mov_b32 s{S_E+2}, {EBYTES}")
    for j in range(4): a(f"v_mov_b64 {vr(ACC+2*j,2)}, 0")
    a("s_waitcnt lgkmcnt(0)")
    for x in off_calc(): a(x)
    for x in flat(dma_e(0))+["s_nop 0"]+dma_x(): a(x)
    a(f"ds_read_b32 v{EO}, v{vELa} offset:64")
    a(f"ds_read_b128 {vr(XO)}, v{vXLa} offset:64")
    a(f"v_mov_b32 v{vPN}, v{QTV}")
    a(f"v_lshl_add_u32 v{vPA}, v{QTV}, 1, v{vSegB}")
    a(f"v_add_u32 v{QA}, v{QTV}, v{vQc}")
    for j in range(4): a(f"ds_read_b32 v{FQ+2*j}, v{QA} offset:{j*128}")
    a(f"v_cmp_ne_u32 vcc, v{QTV+3}, v{vPN}")
    a(f"s_cmp_gt_u32 s{sCNT}, 0")
    a(f"s_cselect_b32 s{S_E+2}, {EBYTES}, 0")
    a("s_waitcnt lgkmcnt(0)")
    for x in off_calc(): a(x)
    for x in flat(dma_e(1)): a(x)
    a("s_waitcnt vmcnt(1)")
    for x in read_A(): a(x)
    a(f"ds_read_b32 v{EO}, v{vELa} offset:128")
    a(f"s_cmp_gt_u32 s{sCNT}, 1")
    a(f"s_cselect_b32 s{S_E+2}, {EBYTES}, 0")
    a("s_waitcnt lgkmcnt(0)")
    a(f"v_add_u32 v{EO}, v{EO}, v{vEc}")
    for x in dma_x()+flat(dma_e(0)): a(x)
    for x in chain(D[0],0): a(x)
    a(f"v_add_u32 v{vXLa}, 128, v{vXLa}")
    a(f"v_add_u32 v{vELa}, 192, v{vELa}")
    a(f"v_add_u32 v{vQTa}, 16, v{vQTa}")
    a(f"v_xor_b32 v{vAe}, 1024, v{vAe}")
    a(f"s_add_u32 s{sME}, s{sES}, 1024")
    if DBG[0]=="stamp" and tag=="pair":
        a("s_memtime s[100:101]"); a("s_waitcnt lgkmcnt(0)"); a(f"v_writelane_b32 v{vS}, s100, 15")
    if variant=="pair":
        a(f"s_cbranch_vccnz L_S_{tag}")
        a(f"L_F_{tag}:")
        a.extend(tile("F",variant))
        a(f"s_sub_u32 s{sCNT}, s{sCNT}, 1")
        a(f"s_cbranch_scc1 L_fin_{tag}")
        a(f"s_cbranch_vccz L_F_{tag}")
    a(f"L_S_{tag}:")
    a.extend(tile("S",variant))
    a(f"s_sub_u32 s{sCNT}, s{sCNT}, 1")
    a(f"s_cbranch_scc1 L_fin_{tag}")
    if variant=="pair":
        a(f"s_cbranch_vccz L_F_{tag}")
    a(f"s_branch L_S_{tag}")
    a(f"L_fin_{tag}:")
    for j in range(4): a(f"ds_write_b64 v{vPA}, {vr(ACC+2*j,2)} offset:{j*256}")
    a(f"L_mdone_{tag}:")

def masked_fill(a, count, addr_v, data, offset):
    if count>=512:
        a(f"ds_write_b128 v{addr_v}, {vr(data)} offset:{offset}"); return
    a(f"v_cmp_gt_u32 vcc, {count}, v0")
    a(f"s_and_saveexec_b64 s[{st[8]}:{st[9]}], vcc")
    a(f"ds_write_b128 v{addr_v}, {vr(data)} offset:{offset}")
    a(f"s_mov_b64 exec, s[{st[8]}:{st[9]}]")
def fill_region(a, start, nbytes, data):
    n=nbytes//16; assert nbytes%16==0
    o=start
    big = start+nbytes>65535
    if big:
        a(f"v_lshlrev_b32 v{vT2}, 4, v0")
        a(f"v_add_u32 v{vT2}, {start}, v{vT2}")
        o=0
    while n>0:
        masked_fill(a,min(n,512),vT2 if big else vT0,data,o); o+=512*16; n-=512
def init_lists(a,r_sent,r_dummy):
    for i in range(4): a(f"v_mov_b32 v{r_sent+i}, {SENT:#x}")
    fill_region(a,XL,2*LCAP*4,r_sent)
    for i in range(4): a(f"v_mov_b32 v{r_dummy+i}, {40*512}")
    fill_region(a,QT,LCAP,r_dummy)

def phase_a(a):
    a(f"s_mul_i32 s{st[0]}, s2, 10000")
    a("v_lshlrev_b32 v6, 4, v0")
    a(f"v_add_u32 v6, s{st[0]}, v6")
    a(f"buffer_load_dwordx4 v[16:19], v6, s[{S_DST}:{S_DST+3}], 0 offen")
    a(f"buffer_load_dwordx4 v[20:23], v6, s[{S_SRC}:{S_SRC+3}], 0 offen")
    a("v_cmp_gt_u32 vcc, 113, v0")
    a(f"s_and_saveexec_b64 s[{st[6]}:{st[7]}], vcc")
    a(f"s_cbranch_execz pa_r1skip")
    a(f"s_movk_i32 s{st[1]}, 8192")
    a(f"buffer_load_dwordx4 v[24:27], v6, s[{S_DST}:{S_DST+3}], s{st[1]} offen")
    a(f"buffer_load_dwordx4 v[28:31], v6, s[{S_SRC}:{S_SRC+3}], s{st[1]} offen")
    a("pa_r1skip:")
    a(f"s_mov_b64 exec, s[{st[6]}:{st[7]}]")
def phase_w(a):
    a(f"s_cmp_eq_u32 s{sWV}, 7")
    a("s_cbranch_scc0 pa_now")
    a("s_cmp_lt_u32 s2, 144")
    a("s_cbranch_scc0 pa_now")
    a(f"s_and_b32 s{st[0]}, s2, 3")
    a(f"s_lshl_b32 s{st[0]}, s{st[0]}, 6")
    a(f"v_add_u32 v32, s{st[0]}, v1")
    a("v_lshrrev_b32 v33, 2, v32")
    a("v_and_b32 v34, 3, v32")
    a("v_and_b32 v35, 31, v33")
    a("v_lshrrev_b32 v36, 5, v33")
    a("v_lshlrev_b32 v37, 3, v36")
    a("v_lshl_add_u32 v37, v34, 1, v37")
    a("s_cmp_lt_u32 s2, 80")
    a("s_cbranch_scc1 pa_w_main")
    a(f"s_sub_u32 s{st[1]}, s2, 80")
    a(f"s_lshr_b32 s{st[1]}, s{st[1]}, 2")
    a(f"s_add_u32 s{st[2]}, s{st[1]}, 20")
    a(f"s_lshr_b32 s{st[3]}, s{st[1]}, 3")
    a(f"s_and_b32 s{st[4]}, s{st[1]}, 7")
    a(f"s_lshl_b32 s{st[4]}, s{st[4]}, 4")
    a(f"s_lshl_b32 s{st[3]}, s{st[3]}, 5")
    srd(a,S_WR,60,128*64*2)
    a(f"s_movk_i32 s{st[5]}, 128")
    a(f"s_mov_b32 s{sB0}, 0")
    a("s_branch pa_w_go")
    a("pa_w_main:")
    a(f"s_lshr_b32 s{st[2]}, s2, 2")
    a(f"s_mul_i32 s{st[3]}, s{st[2]}, 13")
    a(f"s_lshr_b32 s{st[3]}, s{st[3]}, 6")
    a(f"s_mul_i32 s{st[4]}, s{st[3]}, 5")
    a(f"s_sub_u32 s{st[4]}, s{st[2]}, s{st[4]}")
    a(f"s_cmp_eq_u32 s{st[4]}, 4")
    a(f"s_cselect_b32 s{st[4]}, 8, s{st[4]}")
    a(f"s_lshl_b32 s{st[4]}, s{st[4]}, 4")
    a(f"s_lshl_b32 s{st[3]}, s{st[3]}, 5")
    srd(a,S_WR,56,144*128*2)
    a(f"s_movk_i32 s{st[5]}, 256")
    a(f"s_mov_b32 s{sB0}, 1")
    a("pa_w_go:")
    a(f"v_add_u32 v37, s{st[4]}, v37")
    a(f"v_add_u32 v35, s{st[3]}, v35")
    a(f"v_mul_lo_u32 v37, v37, s{st[5]}")
    a("v_lshl_add_u32 v37, v35, 1, v37")
    a(f"v_add_u32 v38, s{st[5]}, v37")
    a(f"buffer_load_ushort v39, v37, s[{S_WR}:{S_WR+3}], 0 offen")
    a(f"buffer_load_ushort v40, v38, s[{S_WR}:{S_WR+3}], 0 offen")
    a(f"s_lshl_b32 s{st[2]}, s{st[2]}, 10")
    a(f"v_lshl_add_u32 v41, v32, 2, s{st[2]}")
    a("s_waitcnt vmcnt(0)")
    a("v_lshl_or_b32 v42, v40, 16, v39")
    a(f"s_cmp_eq_u32 s{sB0}, 0")
    a("s_cbranch_scc1 pa_w_st")
    a("v_lshlrev_b32 v39, 16, v39")
    a("v_lshlrev_b32 v40, 16, v40")
    a(f"s_mov_b32 s{st[1]}, {f2u(NEG_LOG2E):#x}")
    a(f"v_mul_f32 v39, s{st[1]}, v39")
    a(f"v_mul_f32 v40, s{st[1]}, v40")
    a("v_cvt_pk_bf16_f32 v42, v39, v40")
    a("pa_w_st:")
    a(f"buffer_store_dword v42, v41, s[{S_W}:{S_W+3}], 0 offen sc1")
    a("pa_now:")

def q_tile(a):
    WB=PN; QD=W+16
    a("v_bfe_u32 v11, v1, 2, 2")
    a("v_lshrrev_b32 v12, 5, v1")
    a("v_lshl_add_u32 v11, v12, 3, v11")
    a("v_lshlrev_b32 v11, 8, v11")
    a("v_bfe_u32 v12, v1, 4, 1")
    a("v_lshl_add_u32 v11, v12, 5, v11")
    a("v_and_b32 v12, 3, v1")
    a("v_lshl_add_u32 v11, v12, 3, v11")
    a(f"s_and_b32 s{st[2]}, s{sWV}, 3")
    a(f"s_lshl_b32 s{st[2]}, s{st[2]}, 6")
    a(f"s_add_u32 s{st[2]}, s{st[2]}, {WST}")
    a(f"v_add_u32 v11, s{st[2]}, v11")
    for ks in range(4):
        a(f"ds_read_b64_tr_b16 {vr(WB+4*ks,2)}, v11 offset:{ks*4096}")
        a(f"ds_read_b64_tr_b16 {vr(WB+4*ks+2,2)}, v11 offset:{ks*4096+1024}")
    a("s_waitcnt lgkmcnt(0)")
    a(mfma(QD,A,WB,None))
    for ks in range(1,4): a(mfma(QD,A+4*ks,WB+4*ks,QD))
    a(f"v_lshlrev_b32 v{PD+4}, 16, v{PD+4}")
    a(f"s_mov_b32 s{st[5]}, {f2u(NEG_LOG2E):#x}")
    a(f"s_lshr_b32 s{st[1]}, s{sWV}, 2")
    a(f"s_and_b32 s{st[2]}, s{sWV}, 3")
    a("v_lshrrev_b32 v5, 5, v1")
    a("v_and_b32 v4, 31, v1")
    a(f"s_lshl_b32 s{st[3]}, s{st[1]}, 14")
    a(f"s_lshl_b32 s{st[4]}, s{st[2]}, 7")
    a(f"s_add_u32 s{st[3]}, s{st[3]}, s{st[4]}")
    a(f"s_add_u32 s{st[3]}, s{st[3]}, {QP}")
    a("v_lshlrev_b32 v12, 11, v5")
    a("v_lshl_add_u32 v12, v4, 2, v12")
    a(f"v_add_u32 v12, s{st[3]}, v12")
    a("s_nop 1")
    for r in range(16):
        if r==4:
            a(f"s_cmp_eq_u32 s{st[1]}, 0")
            a("s_cbranch_scc0 k_qdone")
        t=KT+(r&3)
        a(f"v_add_f32 v{QD+r}, v{QD+r}, v{PD+4}")
        a(f"v_mul_f32 v{QD+r}, s{st[5]}, v{QD+r}")
        a(f"v_cvt_pk_bf16_f32 v{t}, v{QD+r}, v{QD+r}")
        a(f"v_lshlrev_b32 v{vT1}, 16, v{t}")
        a(f"v_sub_f32 v{vT1}, v{QD+r}, v{vT1}")
        a(f"v_cvt_pk_bf16_f32 v{t}, v{QD+r}, v{vT1}")
        a(f"ds_write_b32 v12, v{t} offset:{((r>>2)*8+(r&3))*512}")
    a("k_qdone:")
def phase_a2(a,dbg=None):
    a(f"s_mov_b32 s{st[0]}, {MAGIC}")
    a(f"s_movk_i32 s{st[1]}, 625")
    a(f"s_movk_i32 s{st[2]}, {IMG_S}")
    a(f"s_mov_b32 s{st[3]}, {CNT}")
    a(f"s_mov_b32 s{st[4]}, {IMG+4}")
    a("v_mov_b32 v5, 1")
    def rnd(r,dv,sv,tv):
        for i in range(4): a(f"v_mul_hi_u32 v{tv+i}, v{dv+i}, s{st[0]}")
        for i in range(4):
            a(f"v_lshl_add_u32 v{tv+4+i}, v{tv+i}, 2, s{st[3]}")
            a(f"ds_add_rtn_u32 v{tv+4+i}, v{tv+4+i}, v5")
        for i in range(4):
            a(f"v_mad_u32_u24 v{tv+8+i}, v{tv+i}, s{st[1]}, 15")
            a(f"v_lshrrev_b32 v{tv+8+i}, 4, v{tv+8+i}")
            a(f"v_sub_u32 v{tv+8+i}, v{dv+i}, v{tv+8+i}")
            a(f"v_lshlrev_b32 v{tv+8+i}, 26, v{tv+8+i}")
            a(f"v_mad_u32_u24 v{tv+12+i}, v{tv+i}, s{st[2]}, s{st[4]}") if False else a(f"v_mul_u32_u24 v{tv+12+i}, s{st[2]}, v{tv+i}")
            a(f"v_or3_b32 v{tv+8+i}, v{tv+8+i}, v7, v{sv+i}")
            if i: a(f"v_or_b32 v{tv+8+i}, {i<<14}, v{tv+8+i}")
            a(f"v_add_u32 v{tv+12+i}, s{st[4]}, v{tv+12+i}")
    def wr(tv):
        for i in range(4):
            a(f"v_min_u32 v{tv+4+i}, 31, v{tv+4+i}")
            a(f"v_lshl_add_u32 v{tv+4+i}, v{tv+4+i}, 2, v{tv+12+i}")
            a(f"ds_write_b32 v{tv+4+i}, v{tv+8+i}")
    a("v_lshlrev_b32 v7, 16, v0")
    rnd(0,16,20,32)
    a("v_cmp_gt_u32 vcc, 113, v0")
    a(f"s_and_saveexec_b64 s[{st[6]}:{st[7]}], vcc")
    a("s_cbranch_execz pa_r1done")
    a(f"v_add_u32 v7, {(4*512)<<14}, v7")
    rnd(1,24,28,48)
    a("s_waitcnt lgkmcnt(0)")
    wr(48)
    a("pa_r1done:")
    a(f"s_mov_b64 exec, s[{st[6]}:{st[7]}]")
    a("s_waitcnt lgkmcnt(0)")
    wr(32)
    a("v_lshrrev_b32 v4, 2, v0")
    a("v_and_b32 v5, 3, v0")
    a(f"v_mul_u32_u24 v6, {IMG_S}, v4")
    a("v_lshl_add_u32 v6, v5, 4, v6")
    a(f"v_add_u32 v6, {IMG}, v6")
    a("v_lshlrev_b32 v7, 2, v4")
    a(f"v_add_u32 v7, {CNT}, v7")
    a("v_lshlrev_b32 v8, 4, v0")
    a(f"s_lshl_b32 s{st[0]}, s2, 14")
    a(f"s_add_u32 s{st[1]}, s{st[0]}, 8192")
    a(f"s_add_u32 s{st[2]}, s{st[0]}, {TB_OFF}")
    a(f"s_add_u32 s{st[3]}, s{st[2]}, 8192")
    a("s_waitcnt vmcnt(0)")
    a(f"v_add_u32 v9, {WST}, v8")
    a("ds_write_b128 v9, v[64:67]")
    a("ds_write_b128 v9, v[68:71] offset:8192")
    a("s_waitcnt lgkmcnt(0)")
    a("s_barrier")
    for r in range(2):
        a(f"ds_read_b32 v{32+r}, v7 offset:{r*512}")
        a(f"ds_read_b128 v[{16+4*r}:{19+4*r}], v6 offset:{r*128*IMG_S}")
        a(f"ds_read_b128 v[{24+4*r}:{27+4*r}], v6 offset:{r*128*IMG_S+64}")
    a("v_mov_b32 v9, 0")
    a(f"buffer_load_dword v10, v9, s[{S_DBG}:{S_DBG+3}], 0 offen sc1")
    a("v_cmp_eq_u32 vcc, 0, v5")
    a("s_nop 0")
    a("s_waitcnt lgkmcnt(0)")
    for r in range(2): a(f"v_cndmask_b32 v{16+4*r}, v{16+4*r}, v{32+r}, vcc")
    stf = "" if 'plainst' in OPT else " sc1"
    if 'sc01' in OPT: stf=" sc0 sc1"
    if 'ntst' in OPT: stf=" sc1 nt"
    if 'nostore' not in OPT:
        for r in range(2): a(f"buffer_store_dwordx4 v[{16+4*r}:{19+4*r}], v8, s[{S_T}:{S_T+3}], s{st[r]} offen{stf}")
    for r in range(2):
        a(f"v_cmp_lt_u32 vcc, 15, v{32+r}")
        a(f"s_and_saveexec_b64 s[{st[6]}:{st[7]}], vcc")
        a(f"s_cbranch_execz pa_nob_{r}")
        a(f"buffer_store_dwordx4 v[{24+4*r}:{27+4*r}], v8, s[{S_T}:{S_T+3}], s{st[2+r]} offen sc1")
        a(f"pa_nob_{r}:")
        a(f"s_mov_b64 exec, s[{st[6]}:{st[7]}]")
    q_tile(a)
    a("s_waitcnt vmcnt(0) lgkmcnt(0)")
    a("s_barrier")

def gen(dbg=None):
    DBG[0]=dbg
    a=Asm()
    R=D[0]; HD=PD; RANK=EE; EB=QA; WB=PN; ND=D[1]
    a("s_cmp_ge_u32 s2, 256")
    a("s_cbranch_scc1 k_end")
    if dbg=="stamp": a(f"v_mov_b32 v{vS}, 0")
    if dbg!="dbgtime": stamp(a,0,11)
    a("s_load_dwordx16 s[48:63], s[0:1], 0")
    a("s_load_dwordx4 s[64:67], s[0:1], 64")
    a("s_load_dwordx2 s[46:47], s[0:1], 80")
    a("v_and_b32 v1, 63, v0")
    a("v_lshrrev_b32 v2, 6, v0")
    a("s_mul_i32 s43, s2, 625")
    a(f"v_readfirstlane_b32 s{sWV}, v2")
    if dbg=="dbgtime":
        a("s_nop 3"); stamp(a,0)
    a(f"v_lshlrev_b32 v{vT0}, 4, v0")
    for i in range(4): a(f"v_mov_b32 v{KT+i}, 0")
    fill_region(a,HIST,XL,KT)
    fill_region(a,CNT,1024,KT)
    a("s_add_u32 s44, s43, 640")
    a("s_add_u32 s43, s43, 15")
    a("s_lshr_b32 s43, s43, 4")
    a("s_lshr_b32 s44, s44, 4")
    a("s_sub_u32 s44, s44, s43")
    a("v_lshrrev_b32 v2, 3, v1")
    a("v_and_b32 v3, 7, v1")
    a("v_and_b32 v4, 31, v1")
    a("v_lshrrev_b32 v5, 5, v1")
    a("s_waitcnt lgkmcnt(0)")
    srd(a,S_DST,54,E*4); srd(a,S_SRC,52,E*4)
    phase_a(a)
    a("s_barrier")
    a(f"s_sub_u32 s{S_X}, s48, {XBIAS}")
    a(f"s_subb_u32 s{S_X+1}, s49, 0")
    a(f"s_and_b32 s{S_X+1}, s{S_X+1}, 0xffff")
    a(f"s_mov_b32 s{S_X+2}, {XBYTES+XBIAS}")
    a(f"s_mov_b32 s{S_X+3}, 0x20000")
    srd(a,S_DBG,66,256); srd(a,S_B1,58,256); srd(a,S_WR,56,144*128*2)
    a(f"s_movk_i32 s{sXO}, {XBIAS}")
    a(f"s_movk_i32 s{sXO+1}, {XBIAS-1040}")
    a(f"s_movk_i32 s{sXO+2}, {XBIAS-2080}")
    a("s_cmp_eq_u32 s2, 0")
    a("s_cbranch_scc0 k_notag")
    a(f"s_cmp_eq_u32 s{sWV}, 6")
    a("s_cbranch_scc0 k_notag")
    a(f"s_memrealtime s[{st[4]}:{st[5]}]")
    a("s_waitcnt lgkmcnt(0)")
    a(f"s_or_b32 s{st[4]}, s{st[4]}, 1")
    a(f"v_mov_b32 v6, s{st[4]}")
    a("v_mov_b32 v7, 0")
    a(f"buffer_store_dword v6, v7, s[{S_DBG}:{S_DBG+3}], 0 offen sc1")
    a("s_waitcnt vmcnt(0)")
    a("k_notag:")
    a(f"s_lshr_b32 s{st[1]}, s{sWV}, 2")
    a(f"s_and_b32 s{st[2]}, s{sWV}, 3")
    a(f"s_lshl_b32 s{st[3]}, s{st[1]}, 5")
    a(f"s_add_u32 s{st[3]}, s{st[3]}, s{sNB}")
    a(f"v_add_u32 v12, s{st[3]}, v4")
    a("v_lshlrev_b32 v12, 7, v12")
    a("v_lshl_add_u32 v12, v5, 4, v12")
    for ks in range(4): a(f"buffer_load_dwordx4 {vr(A+4*ks)}, v12, s[{S_X}:{S_X+3}], s{sXO} offen offset:{ks*32}")
    a(f"s_lshl_b32 s{st[5]}, s{st[2]}, 6")
    a(f"v_lshl_add_u32 v13, v4, 1, s{st[5]}")
    a(f"buffer_load_ushort v{PD+4}, v13, s[{S_B1}:{S_B1+3}], 0 offen")
    a("v_lshlrev_b32 v13, 4, v0")
    a(f"s_movk_i32 s{st[4]}, 16384")
    a(f"s_movk_i32 s{st[5]}, 24576")
    a(f"buffer_load_dwordx4 v[64:67], v13, s[{S_WR}:{S_WR+3}], s{st[4]} offen")
    a(f"buffer_load_dwordx4 v[68:71], v13, s[{S_WR}:{S_WR+3}], s{st[5]} offen")
    if 'nox' not in OPT:
        a(f"s_lshr_b32 s{st[0]}, s2, 3")
        a(f"s_mul_i32 s{st[0]}, s{st[0]}, 40000")
        a(f"s_mul_i32 s{st[1]}, s{sWV}, 5120")
        a(f"s_add_u32 s{st[0]}, s{st[0]}, s{st[1]}")
        a(f"s_add_u32 s{st[0]}, s{st[0]}, {XBIAS}")
        a(f"s_add_u32 s{st[1]}, s{st[0]}, 4096")
        a("v_lshlrev_b32 v6, 4, v1")
        for k in range(5):
            a(f"buffer_load_dwordx4 v[72:75], v6, s[{S_X}:{S_X+3}], s{st[k>>2]} offen offset:{(k&3)*1024}")
    srd(a,S_E,50,EBYTES); srd(a,S_T,46,TABLE_BYTES); srd(a,S_W,46,WF_BYTES,WF_OFF); srd(a,S_FL,46,8192,FL_OFF)
    srd(a,S_B2,62,128); srd(a,S_O,64,N*128)
    phase_w(a)
    stamp(a,1)
    a(f"s_mul_i32 s{sXS}, s{sWV}, {XS_W}")
    a(f"s_add_u32 s{sXS}, s{sXS}, {XS}")
    a(f"s_lshl_b32 s{sES}, s{sWV}, 11")
    a(f"s_add_u32 s{sES}, s{sES}, {ES}")
    a(f"s_mov_b32 s{sSC}, 0x33800000")
    a(f"s_mov_b32 s{sSC+1}, 0x33800000")
    a(f"s_mov_b32 s{sSLOW}, 0")
    a(f"s_mov_b32 s{sSAFE}, 0")
    a("v_lshlrev_b32 v7, 1, v2")
    a("v_and_b32 v7, 4, v7")
    a("v_xor_b32 v7, v3, v7")
    a(f"v_lshlrev_b32 v{vXc}, 4, v7")
    a("v_lshrrev_b32 v7, 4, v1")
    a("v_xor_b32 v7, v1, v7")
    a("v_and_b32 v7, 1, v7")
    a(f"v_lshlrev_b32 v{vEc}, 4, v7")
    a("v_and_b32 v7, 3, v4")
    a("v_bfe_u32 v8, v4, 2, 1")
    a("v_lshrrev_b32 v9, 3, v4")
    a("v_lshl_add_u32 v10, v8, 2, v9")
    a("v_mul_u32_u24 v11, 1040, v7")
    a("v_lshl_add_u32 v11, v10, 7, v11")
    a("v_lshl_add_u32 v11, v5, 4, v11")
    a(f"v_add_u32 v11, s{sXS}, v11")
    a("v_bfe_u32 v12, v10, 1, 1")
    a("v_lshlrev_b32 v12, 6, v12")
    a(f"v_add_u32 v{vAx01}, v11, v12")
    a(f"v_sub_u32 v{vAx23}, v11, v12")
    a("v_lshl_add_u32 v11, v10, 2, v7")
    a("v_bfe_u32 v12, v11, 3, 1")
    a("v_xor_b32 v12, v5, v12")
    a("v_lshlrev_b32 v12, 4, v12")
    a("v_lshl_add_u32 v12, v11, 5, v12")
    a(f"v_add_u32 v{vAe}, s{sES}, v12")
    a(f"v_lshlrev_b32 v{vQc}, 2, v4")
    a(f"v_add_u32 v{vQc}, {QP}, v{vQc}")
    a("v_lshlrev_b32 v12, 2, v5")
    a("v_sub_u32 v12, v10, v12")
    a("v_mov_b32 v13, 0x3f803f80")
    for r in range(4): a(f"v_cmp_eq_u32 s[{st[0]+2*r}:{st[1]+2*r}], {r}, v12")
    a("v_cmp_eq_u32 vcc, v8, v5")
    for r in range(4): a(f"v_cndmask_b32_e64 v{ACS+r}, 0, v13, s[{st[0]+2*r}:{st[1]+2*r}]")
    for i in range(12): a(f"v_mov_b32 v{FQ+i}, 0")
    a(f"v_cndmask_b32 v{ACF}, 0, v13, vcc")
    for i in range(10): a(f"v_mov_b32 v{HR+i}, 0")
    a(f"v_lshlrev_b32 v{vT0}, 4, v0")
    init_lists(a,KT,KT+4)
    for i in range(4): a(f"v_mov_b32 v{KT+i}, 0")
    fill_region(a,QP+40*512,512,KT)
    fill_region(a,SEG+ZROW*1024,1024,KT)
    a("v_lshrrev_b32 v2, 2, v1")
    a(f"s_lshl_b32 s{st[0]}, s{sWV}, 5")
    a(f"v_add_u32 v2, s{st[0]}, v2")
    a("v_mul_u32_u24 v2, 2500, v2")
    a(f"v_mov_b32 v{EB}, v2")
    a(f"v_add_u32 v{EB+1}, {16*2500}, v2")
    a("v_and_b32 v3, 3, v1")
    for i in range(4):
        a(f"v_lshlrev_b32 v{XO+i}, 2, v3")
        a(f"v_add_u32 v{XO+i}, {i-1}, v{XO+i}")
    stamp(a,2)
    a("s_waitcnt vmcnt(%d)"%(7 if 'nox' in OPT else 12))
    phase_a2(a,dbg)
    stamp(a,3)
    a(f"s_cmp_eq_u32 s{sWV}, 0")
    a("s_cbranch_scc0 k_nosig")
    a(f"v_readfirstlane_b32 s{sB0}, v10")
    a(f"s_mov_b32 s{st[1]}, 400000")
    a("k_tagpoll:")
    a(f"s_cmp_lg_u32 s{sB0}, 0")
    a("s_cbranch_scc1 k_tagdone")
    a("v_mov_b32 v6, 0")
    a(f"buffer_load_dword v7, v6, s[{S_DBG}:{S_DBG+3}], 0 offen sc1")
    a("s_waitcnt vmcnt(0)")
    a(f"v_readfirstlane_b32 s{sB0}, v7")
    a(f"s_sub_u32 s{st[1]}, s{st[1]}, 1")
    a("s_cbranch_scc0 k_tagpoll")
    a("k_tagdone:")
    if 'sigstamp' in OPT: stamp(a,1)
    if True:
        a(f"s_lshr_b32 s{st[2]}, s2, 2")
        a(f"s_lshl_b32 s{st[2]}, s{st[2]}, 7")
        a(f"s_and_b32 s{st[3]}, s2, 3")
        a(f"s_lshl_b32 s{st[3]}, s{st[3]}, 2")
        a(f"s_add_u32 s{st[2]}, s{st[2]}, s{st[3]}")
    else:
        a(f"s_lshl_b32 s{st[2]}, s2, 2")
    a(f"v_mov_b32 v6, s{st[2]}")
    a(f"v_mov_b32 v7, s{sB0}")
    a(f"s_mov_b64 s[{st[6]}:{st[7]}], exec")
    a("s_mov_b64 exec, 1")
    a(f"buffer_store_dword v7, v6, s[{S_FL}:{S_FL+3}], 0 offen sc1")
    a(f"s_mov_b64 exec, s[{st[6]}:{st[7]}]")
    if 'sigstamp' in OPT:
        a("s_waitcnt vmcnt(0)")
        stamp(a,5)
    a("k_nosig:")
    a(f"s_cmp_eq_u32 s{sWV}, 0")
    a("s_cbranch_scc0 k_wait_done")
    a("k_dopoll:")
    a("v_lshlrev_b32 v6, %d, v1"%7)
    a(f"s_mov_b32 s{st[1]}, 400000")
    a("s_sleep %d"%(16 if 'slowpoll' in OPT else 4))
    a("k_poll:")
    a(f"buffer_load_dwordx4 v[8:11], v6, s[{S_FL}:{S_FL+3}], 0 offen %s"%"sc0 sc1")
    a("s_waitcnt vmcnt(0)")
    a(f"v_cmp_ne_u32 vcc, s{sB0}, v8")
    a(f"v_cmp_ne_u32 s[{st[4]}:{st[5]}], s{sB0}, v9")
    a(f"s_or_b64 vcc, vcc, s[{st[4]}:{st[5]}]")
    a(f"v_cmp_ne_u32 s[{st[4]}:{st[5]}], s{sB0}, v10")
    a(f"s_or_b64 vcc, vcc, s[{st[4]}:{st[5]}]")
    a(f"v_cmp_ne_u32 s[{st[4]}:{st[5]}], s{sB0}, v11")
    a(f"s_or_b64 vcc, vcc, s[{st[4]}:{st[5]}]")
    a("s_cmp_eq_u64 vcc, 0")
    a("s_cbranch_scc1 k_wait_done")
    a(f"s_sub_u32 s{st[1]}, s{st[1]}, 1")
    a("s_cbranch_scc1 k_wait_done")
    a("s_sleep %d"%(16 if 'slowpoll' in OPT else 4))
    a("s_branch k_poll")
    a("k_wait_done:")
    if 'sigstamp' in OPT:
        stamp(a,2)
        a(f"v_writelane_b32 v{vS}, s{st[1]}, 6")
    a("v_lshrrev_b32 v15, 2, v1")
    a("v_lshlrev_b32 v15, 14, v15")
    a("v_and_b32 v14, 3, v1")
    a("v_lshl_add_u32 v13, v14, 4, v15")
    a(f"s_lshl_b32 s{st[0]}, s{sWV}, 19")
    a(f"s_lshl_b32 s{st[1]}, s2, 6")
    a(f"s_add_u32 s{st[0]}, s{st[0]}, s{st[1]}")
    a(f"s_add_u32 s{st[1]}, s{st[0]}, {16*16384}")
    a(f"s_add_u32 s{st[2]}, s{st[0]}, {TB_OFF}")
    a(f"s_add_u32 s{st[3]}, s{st[1]}, {TB_OFF}")
    a("v_lshlrev_b32 v14, 4, v1")
    a(f"s_lshl_b32 s{st[6]}, s{sWV}, 10")
    a(f"s_add_u32 s{st[5]}, s{st[6]}, 8192")
    a(f"s_add_u32 s{st[7]}, s{st[6]}, 16384")
    a("s_barrier")
    stamp(a,4)
    for k in range(2): a(f"buffer_load_dword v{HD+k}, v15, s[{S_T}:{S_T+3}], s{st[k]} offen sc1")
    for k in range(2): a(f"buffer_load_dwordx4 {vr(R+4*k)}, v13, s[{S_T}:{S_T+3}], s{st[k]} offen sc1")
    WT=W
    a(f"buffer_load_dwordx4 {vr(WT)}, v14, s[{S_W}:{S_W+3}], s{st[6]} offen sc1")
    a(f"buffer_load_dwordx4 {vr(WT+4)}, v14, s[{S_W}:{S_W+3}], s{st[5]} offen sc1")
    a(f"buffer_load_dwordx4 {vr(WT+8)}, v14, s[{S_W}:{S_W+3}], s{st[7]} offen sc1")
    for i in range(4): a(f"v_add_u32 v{KT+i}, 16, v{XO+i}")
    a("s_waitcnt vmcnt(5)")
    for k in range(2):
        a(f"v_cmp_lt_u32 vcc, 15, v{HD+k}")
        a(f"s_and_saveexec_b64 s[{st[8]}:{st[9]}], vcc")
        a(f"s_cbranch_execz k_nob_{k}")
        a(f"buffer_load_dwordx4 {vr(R+8+4*k)}, v13, s[{S_T}:{S_T+3}], s{st[2+k]} offen sc1")
        a(f"k_nob_{k}:")
        a(f"s_mov_b64 exec, s[{st[8]}:{st[9]}]")
    for k in range(2):
        for i in range(4):
            a(f"v_cmp_lt_u32 s[{sMK+2*(4*k+i)}:{sMK+2*(4*k+i)+1}], v{XO+i}, v{HD+k}")
    for k in range(2):
        for i in range(4):
            a(f"v_cmp_lt_u32 s[{sMK+2*(8+4*k+i)}:{sMK+2*(8+4*k+i)+1}], v{KT+i}, v{HD+k}")
    a(f"v_max_u32 v{vT0}, v{HD}, v{HD+1}")
    a(f"v_cmp_lt_u32 vcc, 31, v{vT0}")
    a("s_cbranch_vccz k_noovf")
    a(f"v_mov_b32 v{vT0}, {FLAG}")
    a(f"v_mov_b32 v{vT1}, 1")
    a(f"ds_write_b32 v{vT0}, v{vT1}")
    a("k_noovf:")
    a("s_waitcnt vmcnt(3)")
    if 'sigstamp' not in OPT: stamp(a,5)
    uid=[0]
    def hist(a):
        uid[0]+=1
        a(f"v_mov_b32 v{vT1}, 1")
        for e in range(8):
            a(f"v_lshrrev_b32 v{ND+e}, 26, v{R+e}")
            a(f"v_lshlrev_b32 v{RANK+e}, 2, v{ND+e}")
        for e in range(8):
            a(f"s_mov_b64 exec, s[{sMK+2*e}:{sMK+2*e+1}]")
            a(f"ds_add_rtn_u32 v{RANK+e}, v{RANK+e}, v{vT1}")
        a("s_waitcnt vmcnt(0)")
        for e in range(8,16):
            a(f"s_mov_b64 exec, s[{sMK+2*e}:{sMK+2*e+1}]")
            a(f"s_cbranch_execz k_hskip_{uid[0]}_{e}")
            a(f"v_lshrrev_b32 v{ND+e}, 26, v{R+e}")
            a(f"v_lshlrev_b32 v{RANK+e}, 2, v{ND+e}")
            a(f"ds_add_rtn_u32 v{RANK+e}, v{RANK+e}, v{vT1}")
            a(f"k_hskip_{uid[0]}_{e}:")
        a("s_mov_b64 exec, -1")
    hist(a)
    a("s_waitcnt vmcnt(0)")
    a(f"v_add_u32 v13, {WST}, v14")
    a(f"s_lshl_b32 s{st[6]}, s{sWV}, 10")
    a(f"v_add_u32 v13, s{st[6]}, v13")
    a(f"ds_write_b128 v13, {vr(WT)}")
    a(f"ds_write_b128 v13, {vr(WT+4)} offset:8192")
    a(f"s_cmp_lt_u32 s{sWV}, 4")
    a("s_cbranch_scc0 k_w3")
    a(f"ds_write_b128 v13, {vr(WT+8)} offset:16384")
    a("k_w3:")
    a("s_waitcnt lgkmcnt(0)")
    if 'sigstamp' not in OPT: stamp(a,6)
    a("s_barrier")
    a("k_scan:")
    a(f"v_lshlrev_b32 v{vT0}, 2, v1")
    a(f"ds_read_b32 v{PN}, v{vT0} offset:{HIST}")
    a(f"v_mov_b32 v{vT1}, {FLAG}")
    a(f"ds_read_b32 v{PN+1}, v{vT1}")
    a("s_waitcnt lgkmcnt(0)")
    a(f"v_add_u32 v{PN+2}, 3, v{PN}")
    a(f"v_and_b32 v{PN+2}, -4, v{PN+2}")
    a(f"v_mov_b32 v{PN+3}, v{PN+2}")
    for sh in ("row_shr:1 row_mask:0xf","row_shr:2 row_mask:0xf","row_shr:4 row_mask:0xf","row_shr:8 row_mask:0xf","row_bcast:15 row_mask:0xa","row_bcast:31 row_mask:0xc"):
        a("s_nop 1")
        a(f"v_add_u32_dpp v{PN+3}, v{PN+3}, v{PN+3} {sh} bank_mask:0xf")
    a("s_nop 0")
    a(f"v_readlane_b32 s{sTOT}, v{PN+3}, 63")
    a(f"v_readfirstlane_b32 s{st[0]}, v{PN+1}")
    a(f"v_sub_u32 v{PN+3}, v{PN+3}, v{PN+2}")
    a(f"s_bitcmp1_b32 s{sSLOW}, 0")
    a("s_cbranch_scc1 k_okcap")
    a(f"s_cmp_gt_u32 s{sTOT}, {LCAP}")
    a(f"s_cselect_b32 s{st[1]}, 1, 0")
    a(f"s_or_b32 s{st[0]}, s{st[0]}, s{st[1]}")
    a(f"s_cmp_lg_u32 s{st[0]}, 0")
    a("s_cbranch_scc1 k_goslow")
    a("k_okcap:")
    a(f"s_add_u32 s{sNT}, s{sTOT}, 31")
    a(f"s_lshr_b32 s{sNT}, s{sNT}, 5")
    BS=A
    for e in range(8):
        a(f"v_lshlrev_b32 v{vT1}, 2, v{ND+e}")
        a(f"ds_bpermute_b32 v{BS+e}, v{vT1}, v{PN+3}")
    for e in range(8,16):
        a(f"s_cmp_eq_u64 s[{sMK+2*e}:{sMK+2*e+1}], 0")
        a(f"s_cbranch_scc1 k_bskip_{e}")
        a(f"v_lshlrev_b32 v{vT1}, 2, v{ND+e}")
        a(f"ds_bpermute_b32 v{BS+e}, v{vT1}, v{PN+3}")
        a(f"k_bskip_{e}:")
    a(f"s_cmp_eq_u32 s{sWV}, 0")
    a("s_cbranch_scc0 k_nodeg")
    a(f"v_sub_u32 v{PN+2}, v{PN+2}, v{PN}")
    a(f"ds_add_u32 v{vT0}, v{PN} offset:{DEG}")
    a(f"ds_add_u32 v{vT0}, v{PN+2} offset:{PADC}")
    a(f"ds_write_b32 v{vT0}, v{PN+3} offset:{BASE}")
    a("k_nodeg:")
    a(f"s_movk_i32 s{st[0]}, 0x3fff")
    for e in range(8):
        k=(e>>2)&1
        a(f"v_lshlrev_b32 v{ND+e}, 9, v{ND+e}")
        a(f"v_bfe_u32 v{KT+e}, v{R+e}, 14, 12")
        a(f"v_and_b32 v{R+e}, s{st[0]}, v{R+e}")
        a(f"v_add_lshl_u32 v{KT+e}, v{KT+e}, v{EB+k}, 5")
        a(f"v_lshlrev_b32 v{R+e}, 7, v{R+e}")
    a("s_waitcnt lgkmcnt(0)")
    for e in range(16):
        k=(e>>2)&1
        if e>=8:
            a(f"s_mov_b64 exec, s[{sMK+2*e}:{sMK+2*e+1}]")
            a(f"s_cbranch_execz k_sskip_{e}")
            a(f"v_lshlrev_b32 v{ND+e}, 9, v{ND+e}")
            a(f"v_bfe_u32 v{vT2}, v{R+e}, 14, 12")
            a(f"v_and_b32 v{R+e}, s{st[0]}, v{R+e}")
            a(f"v_add_lshl_u32 v{vT2}, v{vT2}, v{EB+k}, 5")
            a(f"v_lshlrev_b32 v{R+e}, 7, v{R+e}")
        ev = KT+e if e<8 else vT2
        a(f"v_add_u32 v{BS+e}, v{BS+e}, v{RANK+e}")
        a(f"v_and_b32 v{vT1}, -4, v{BS+e}")
        a(f"v_lshlrev_b32 v{BS+e}, 2, v{BS+e}")
        if e<8: a(f"s_mov_b64 exec, s[{sMK+2*e}:{sMK+2*e+1}]")
        a(f"ds_write_b32 v{BS+e}, v{R+e} offset:{XL}")
        a(f"ds_write_b32 v{BS+e}, v{ev} offset:{EL}")
        a(f"ds_write_b32 v{vT1}, v{ND+e} offset:{QT}")
        if e<8: a("s_mov_b64 exec, -1")
        else: a(f"k_sskip_{e}:")
    a("s_mov_b64 exec, -1")
    a(f"s_bitcmp1_b32 s{sSLOW}, 1")
    a("s_cbranch_scc1 k_wdone")
    a(f"s_or_b32 s{sSLOW}, s{sSLOW}, 2")
    a("v_lshlrev_b32 v14, 4, v1")
    a(f"v_add_u32 v14, {WST}, v14")
    for f in range(20): a(f"ds_read_b128 {vr(W+4*f)}, v14 offset:{f*1024}")
    a("k_wdone:")
    a(f"s_mov_b32 m0, s{sXS}")
    a("s_waitcnt vmcnt(0) lgkmcnt(0)")
    stamp(a,7)
    a("s_barrier")
    stamp(a,8,12)
    a("k_main:")
    a(f"s_cmp_lg_u32 s{sSAFE}, 0")
    a("s_cbranch_scc1 k_main_safe")
    main_loop(a,"pair")
    a("s_branch k_mjoin")
    a("k_main_safe:")
    main_loop(a,"safe")
    a("k_mjoin:")
    a("s_waitcnt vmcnt(0) lgkmcnt(0)")
    stamp(a,9,13)
    a(f"s_and_b32 s{st[0]}, s{sWV}, 1")
    a(f"s_lshl_b32 s{st[1]}, s{st[0]}, 13")
    a(f"s_add_u32 s{st[1]}, s{st[1]}, {20*1024}")
    a(f"s_add_u32 s{st[2]}, s{st[1]}, 4096")
    a("v_lshlrev_b32 v14, 4, v1")
    W2F=D[0]
    for ks in range(8):
        a(f"buffer_load_dwordx4 {vr(W2F+4*ks)}, v14, s[{S_W}:{S_W+3}], s{st[1+(ks>>2)]} offen offset:{(ks&3)*1024} sc1")
    a("v_lshrrev_b32 v5, 5, v1")
    a(f"s_lshl_b32 s{st[3]}, s{st[0]}, 6")
    a(f"v_lshl_add_u32 v13, v5, 3, s{st[3]}")
    B2R=KT
    for q in range(4): a(f"buffer_load_dwordx2 {vr(B2R+2*q,2)}, v13, s[{S_B2}:{S_B2+3}], 0 offen offset:{q*16}")
    a(f"s_lshr_b32 s{st[0]}, s{sNT}, 3")
    a(f"s_and_b32 s{st[1]}, s{sNT}, 7")
    a("v_lshrrev_b32 v3, 1, v1")
    a("v_and_b32 v4, 1, v1")
    a(f"v_cmp_gt_u32 vcc, s{st[1]}, v3")
    a(f"v_mul_u32_u24 v6, s{st[0]}, v3")
    a(f"v_min_u32 v7, s{st[1]}, v3")
    a(f"v_cndmask_b32_e64 v5, 0, 1, vcc")
    a(f"v_add_u32 v5, s{st[0]}, v5")
    a("v_add_u32 v6, v6, v7")
    a("v_lshlrev_b32 v6, 3, v6")
    a("v_lshlrev_b32 v5, 2, v5")
    a("v_mul_u32_u24 v7, v5, v4")
    a("v_add_u32 v6, v6, v7")
    a("v_add_u32 v7, v6, v5")
    a("v_cmp_gt_u32 vcc, 16, v1")
    a("v_mov_b32 v8, 0x7fffffff")
    a(f"v_lshlrev_b32 v9, 4, v1")
    a("v_cndmask_b32 v6, v8, v6, vcc")
    a(f"v_add_u32 v9, {SEG}, v9")
    a(f"v_lshlrev_b32 v{vT0}, 2, v1")
    a(f"ds_read_b32 v2, v{vT0} offset:{BASE}")
    a("s_barrier")
    a("s_waitcnt lgkmcnt(0)")
    SR=EE
    for r in range(5):
        a(f"s_add_u32 s{st[2]}, s{sWV}, {8*r}")
        a(f"s_add_u32 s{st[3]}, s{st[2]}, 1")
        a(f"v_readlane_b32 s{st[4]}, v2, s{st[2]}")
        a(f"v_readlane_b32 s{st[5]}, v2, s{st[3]}")
        a("s_nop 1")
        a(f"s_lshr_b32 s{st[4]}, s{st[4]}, 2")
        a(f"s_lshr_b32 s{st[5]}, s{st[5]}, 2")
        a(f"v_cmp_gt_u32 vcc, s{st[5]}, v6")
        a(f"v_cmp_lt_u32 s[{st[6]}:{st[7]}], s{st[4]}, v7")
        a(f"s_and_b64 vcc, vcc, s[{st[6]}:{st[7]}]")
        a(f"s_cmp_lt_u32 s{st[4]}, s{st[5]}")
        a(f"s_cselect_b32 s{sMK+r}, vcc_lo, 0")
        for t in range(2):
            a(f"s_ff1_i32_b32 s{st[4]}, s{sMK+r}")
            a(f"s_add_u32 s{st[5]}, s{st[4]}, s{st[2]}")
            a(f"s_cmp_eq_u32 s{sMK+r}, 0")
            a(f"s_cselect_b32 s{st[5]}, {ZROW}, s{st[5]}")
            a(f"s_lshl_b32 s{st[5]}, s{st[5]}, 10")
            a(f"v_add_u32 v10, s{st[5]}, v9")
            a(f"ds_read_b128 {vr(SR+8*r+4*t)}, v10")
            a(f"s_add_u32 s{st[4]}, s{sMK+r}, -1")
            a(f"s_and_b32 s{sMK+r}, s{sMK+r}, s{st[4]}")
    a("s_waitcnt lgkmcnt(0)")
    for r in range(5):
        for c in range(2):
            a(f"v_add_f32 v{SR+8*r+2*c}, v{SR+8*r+2*c}, v{SR+8*r+2*c+1}")
            a(f"v_add_f32 v{SR+8*r+4+2*c}, v{SR+8*r+4+2*c}, v{SR+8*r+4+2*c+1}")
            a(f"v_add_f32 v{HR+2*r+c}, v{HR+2*r+c}, v{SR+8*r+2*c}")
            a(f"v_add_f32 v{HR+2*r+c}, v{HR+2*r+c}, v{SR+8*r+4+2*c}")
    for r in range(5):
        a(f"k_more_{r}:")
        a(f"s_cmp_eq_u32 s{sMK+r}, 0")
        a(f"s_cbranch_scc1 k_moredone_{r}")
        a(f"s_ff1_i32_b32 s{st[4]}, s{sMK+r}")
        a(f"s_add_u32 s{st[5]}, s{st[4]}, s{sWV}")
        a(f"s_add_u32 s{st[5]}, s{st[5]}, {8*r}")
        a(f"s_lshl_b32 s{st[5]}, s{st[5]}, 10")
        a(f"v_add_u32 v10, s{st[5]}, v9")
        a(f"ds_read_b128 {vr(SR)}, v10")
        a(f"s_add_u32 s{st[4]}, s{sMK+r}, -1")
        a(f"s_and_b32 s{sMK+r}, s{sMK+r}, s{st[4]}")
        a("s_waitcnt lgkmcnt(0)")
        for c in range(2):
            a(f"v_add_f32 v{SR+2*c}, v{SR+2*c}, v{SR+2*c+1}")
            a(f"v_add_f32 v{HR+2*r+c}, v{HR+2*r+c}, v{SR+2*c}")
        a(f"s_branch k_more_{r}")
        a(f"k_moredone_{r}:")
    a(f"s_bitcmp1_b32 s{sSLOW}, 0")
    a("s_cbranch_scc0 k_epi")
    a("s_waitcnt vmcnt(0)")
    a("s_barrier")
    a(f"s_add_u32 s{sB0}, s{sB0}, 2048")
    a(f"s_cmp_lt_u32 s{sB0}, {E}")
    a("s_cbranch_scc1 k_slowfetch")
    a("s_branch k_epi")
    a("k_goslow:")
    a(f"s_or_b32 s{sSLOW}, s{sSLOW}, 1")
    a(f"s_mov_b32 s{sSAFE}, 1")
    a(f"s_mov_b32 s{sB0}, 0")
    a("s_waitcnt lgkmcnt(0)")
    a("s_barrier")
    a("k_slowfetch:")
    a(f"s_lshl_b32 s{st[0]}, s{sB0}, 2")
    a(f"v_lshlrev_b32 v{vT1}, 4, v0")
    a(f"v_add_u32 v{vT1}, s{st[0]}, v{vT1}")
    a(f"buffer_load_dwordx4 {vr(A)}, v{vT1}, s[{S_DST}:{S_DST+3}], 0 offen")
    a(f"buffer_load_dwordx4 {vr(A+4)}, v{vT1}, s[{S_SRC}:{S_SRC+3}], 0 offen")
    a(f"v_lshlrev_b32 v{vT0}, 4, v0")
    init_lists(a,KT,KT+4)
    for i in range(4): a(f"v_mov_b32 v{PD+i}, 0")
    fill_region(a,HIST,256,PD)
    a(f"v_lshlrev_b32 v{EB}, 2, v0")
    a(f"v_add_u32 v{EB}, s{sB0}, v{EB}")
    a(f"s_mov_b32 s{st[0]}, {MAGIC}")
    a(f"s_mov_b32 s{st[1]}, {E}")
    a("s_waitcnt vmcnt(0)")
    for i in range(4):
        a(f"v_mul_hi_u32 v{A+8+i}, v{A+i}, s{st[0]}")
        a(f"v_subrev_u32 v{A+i}, s{sNB}, v{A+i}")
        a(f"v_lshlrev_b32 v{A+i}, 26, v{A+i}")
        a(f"v_or_b32 v{R+i}, v{A+i}, v{A+4+i}")
        if i: a(f"v_or_b32 v{R+i}, {i<<14}, v{R+i}")
    a(f"v_cmp_gt_u32 vcc, s{st[1]}, v{EB}")
    for i in range(4):
        a(f"v_cmp_eq_u32 s[{sMK+2*i}:{sMK+2*i+1}], s2, v{A+8+i}")
        a(f"s_and_b64 s[{sMK+2*i}:{sMK+2*i+1}], s[{sMK+2*i}:{sMK+2*i+1}], vcc")
    for e in range(4,16): a(f"s_mov_b64 s[{sMK+2*e}:{sMK+2*e+1}], 0")
    a("s_waitcnt lgkmcnt(0)")
    a("s_barrier")
    hist(a)
    a("s_waitcnt lgkmcnt(0)")
    a("s_barrier")
    a("s_branch k_scan")
    a("k_epi:")
    stamp(a,10)
    a(f"v_lshlrev_b32 v2, 3, v1")
    a(f"s_lshl_b32 s{st[3]}, s{sWV}, 9")
    a(f"s_add_u32 s{st[3]}, s{st[3]}, {QP}")
    a(f"v_add_u32 v2, s{st[3]}, v2")
    a(f"s_lshl_b32 s{st[3]}, s{sWV}, 2")
    a(f"v_mov_b32 v3, s{st[3]}")
    a(f"s_mul_i32 s{st[3]}, s{sWV}, 272")
    a(f"s_add_u32 s{st[3]}, s{st[3]}, {HH}")
    a(f"v_lshl_add_u32 v4, v1, 2, s{st[3]}")
    QR=EE; PC=EE+10; T=PD
    for r in range(5):
        a(f"ds_read_b64 {vr(QR+2*r,2)}, v2 offset:{r*8*512}")
        a(f"ds_read_b32 v{PC+r}, v3 offset:{PADC+r*32}")
    a(f"s_mov_b32 s{st[4]}, {f2u(-0.6931471805599453*2.0**-24):#x}")
    a(f"s_mov_b32 s{st[5]}, 0xffff0000")
    a(f"v_mov_b32 v5, 0x207")
    a(f"s_mov_b64 s[{st[6]}:{st[7]}], 0")
    a("s_waitcnt lgkmcnt(0)")
    HV=A; TA=A+10; TB=PN
    for r in range(5):
        a(f"v_cvt_f32_u32 v{PC+r}, v{PC+r}")
    for x in range(10):
        a(f"v_lshlrev_b32 v{TA+x if x<10 else 0}, 16, v{QR+x}")
        a(f"v_and_b32 v{TB+x}, s{st[5]}, v{QR+x}")
        a(f"v_add_f32 v{TA+x}, v{TA+x}, v{TB+x}")
    for x in range(10): a(f"v_exp_f32 v{TB+x}, v{TA+x}")
    for x in range(10): a(f"v_fma_f32 v{TB+x}, v{TB+x}, s{sSC}, s{sSC}")
    for x in range(10): a(f"v_rcp_f32 v{TB+x}, v{TB+x}")
    for x in range(10): a(f"v_mul_f32 v{TB+x}, v{TA+x}, v{TB+x}")
    for x in range(10):
        a(f"v_fma_f32 v{HV+x}, -v{TB+x}, v{PC+(x>>1)}, v{HR+x}")
        a(f"v_cmp_class_f32 vcc, v{HR+x}, v5")
        a(f"s_or_b64 s[{st[6]}:{st[7]}], s[{st[6]}:{st[7]}], vcc")
        a(f"v_mul_f32 v{HV+x}, s{st[4]}, v{HV+x}")
    for r in range(5):
        h0=HV+2*r
        a(f"v_cvt_pk_bf16_f32 v{T}, v{h0}, v{h0+1}")
        a(f"v_lshlrev_b32 v{T+1}, 16, v{T}")
        a(f"v_and_b32 v{T+2}, s{st[5]}, v{T}")
        a(f"v_sub_f32 v{T+1}, v{h0}, v{T+1}")
        a(f"v_sub_f32 v{T+2}, v{h0+1}, v{T+2}")
        a(f"ds_write_b32 v4, v{T} offset:{r*8*272}")
        a(f"v_cvt_pk_bf16_f32 v{T+3}, v{T+1}, v{T+2}")
        a(f"ds_write_b32 v4, v{T+3} offset:{r*8*272+HL-HH}")
    a(f"s_cmp_eq_u64 s[{st[6]}:{st[7]}], 0")
    a("s_cbranch_scc1 k_fin")
    a(f"v_mov_b32 v{vT0}, {FLAG+4}")
    a(f"v_mov_b32 v{vT1}, 1")
    a(f"ds_write_b32 v{vT0}, v{vT1}")
    a("k_fin:")
    a("s_waitcnt lgkmcnt(0)")
    a("s_barrier")
    a(f"v_mov_b32 v{vT0}, {FLAG+4}")
    a(f"ds_read_b32 v{vT1}, v{vT0}")
    a(f"s_lshr_b32 s{st[1]}, s{sWV}, 1")
    a("v_and_b32 v4, 31, v1")
    a("v_lshrrev_b32 v5, 5, v1")
    a(f"s_lshl_b32 s{st[2]}, s{st[1]}, 5")
    a(f"v_add_u32 v6, s{st[2]}, v4")
    a("s_waitcnt lgkmcnt(0)")
    a(f"v_readfirstlane_b32 s{st[0]}, v{vT1}")
    a(f"s_andn2_b32 s{st[0]}, s{st[0]}, s{sSAFE}")
    a(f"s_cmp_lg_u32 s{st[0]}, 0")
    a("s_cbranch_scc0 k_final")
    a(f"s_mov_b32 s{sSAFE}, 1")
    a("s_waitcnt vmcnt(0)")
    for i in range(10): a(f"v_mov_b32 v{HR+i}, 0")
    a("s_barrier")
    a("s_branch k_main")
    a("k_final:")
    if dbg=="stamp":
        a(f"s_cmp_ge_u32 s{sWV}, 4")
        a("s_cbranch_scc0 k_final2")
        stamp_out(a)
        a("s_endpgm")
        a("k_final2:")
    a(f"s_cmp_ge_u32 s{sWV}, 4")
    a("s_cbranch_scc1 k_end")
    a("v_mul_u32_u24 v7, 272, v6")
    a("v_lshl_add_u32 v7, v5, 4, v7")
    a(f"v_add_u32 v7, {HH}, v7")
    for ks in range(8):
        a(f"ds_read_b128 {vr(W+8*ks)}, v7 offset:{ks*32}")
        a(f"ds_read_b128 {vr(W+8*ks+4)}, v7 offset:{ks*32+HL-HH}")
    a("v_lshlrev_b32 v8, 2, v6")
    a(f"ds_read_b32 v9, v8 offset:{DEG}")
    a(f"s_mov_b32 s{st[5]}, 0xffff0000")
    BU=A
    a("s_waitcnt vmcnt(0)")
    for q in range(4):
        for c in range(2):
            a(f"v_lshlrev_b32 v{BU+4*q+2*c}, 16, v{B2R+2*q+c}")
            a(f"v_and_b32 v{BU+4*q+2*c+1}, s{st[5]}, v{B2R+2*q+c}")
    OD=EE
    for ks in range(8):
        a(f"s_waitcnt lgkmcnt({max(0,15-2*ks) if ks<8 else 0})") if False else None
    a("s_waitcnt lgkmcnt(0)")
    for ks in range(8):
        a(mfma(OD,W2F+4*ks,W+8*ks,None if ks==0 else OD))
        a(mfma(OD,W2F+4*ks,W+8*ks+4,OD))
    a("v_cvt_f32_u32 v9, v9")
    a(f"s_and_b32 s{st[0]}, s{sWV}, 1")
    a(f"s_lshl_b32 s{st[0]}, s{st[0]}, 6")
    a(f"v_add_u32 v10, s{sNB}, v6")
    a("v_lshlrev_b32 v10, 7, v10")
    a("v_lshl_add_u32 v10, v5, 3, v10")
    a(f"v_add_u32 v10, s{st[0]}, v10")
    a(f"v_cmp_gt_u32 vcc, s{sNN}, v6")
    a("s_nop 7")
    for r in range(16): a(f"v_fma_f32 v{OD+r}, v9, v{BU+r}, v{OD+r}")
    for q in range(4):
        a(f"v_cvt_pk_bf16_f32 v{PD+2*q}, v{OD+4*q}, v{OD+4*q+1}")
        a(f"v_cvt_pk_bf16_f32 v{PD+2*q+1}, v{OD+4*q+2}, v{OD+4*q+3}")
    a(f"s_and_saveexec_b64 s[{st[6]}:{st[7]}], vcc")
    a("s_cbranch_execz k_end")
    for q in range(4): a(f"buffer_store_dwordx2 {vr(PD+2*q,2)}, v10, s[{S_O}:{S_O+3}], 0 offen offset:{q*16}")
    if dbg=="stamp":
        a("s_mov_b64 exec, -1")
        a("s_waitcnt vmcnt(0)")
        stamp_out(a)
    if dbg=="dbgtime":
        a("s_mov_b64 exec, -1")
        a("s_waitcnt vmcnt(0)")
        dstamp(a,6)
    a("k_end:")
    a("s_endpgm")
    return a
```

```python
import sys, os
from common import *
import k4
HEADER=open(os.path.join(os.path.dirname(os.path.abspath(__file__)),"header.txt")).read()
def build(path, dbg=None):
    kk=k4.gen(dbg)
    errs=check(kk.lines,"k4")
    for tag in ("pair","safe"):
        for t1 in ("F","S"):
            for t2 in ("F","S"):
                if tag=="safe" and (t1=="F" or t2=="F"): continue
                errs+=check(k4.tile(t1,tag)[-40:]+k4.tile(t2,tag)[:60],f"{tag}{t1}{t2}")
    for e in errs: print("HAZARD",e)
    vg=256 if dbg else k4.NVGPR
    s=HEADER
    s+=f"; @launch grid=(256,1,1) block=(512,1,1) lds={k4.LDS_BYTES}\n"
    s+='.amdgcn_target "amdgcn-amd-amdhsa--gfx950"\n.text\n'
    s+=kernel_text(k4.KNAME,kk)
    s+='.section .rodata,"a"\n'
    s+=desc(k4.KNAME,vg,102)
    open(path,"w").write(s)
    print("wrote",path,len(s),"bytes; LDS",k4.LDS_BYTES,"hazards",len(errs))
if __name__=="__main__":
    out=sys.argv[1] if len(sys.argv)>1 else f"cdna_kernels/{NAME}.s"
    build(out, sys.argv[2] if len(sys.argv)>2 else None)
```

```python
from common import *
KNAME="gather_scatter__edge_featured_mpnn_mpnn__graph_kernel"
WF_OFF=9<<20
FL_OFF=WF_OFF+65536
CST=16640
TB_OFF=256*CST
LCAP=3328
HIST=0; DEG=256; PADC=512; FLAG=768; BASE=832
XL=1088; EL=XL+LCAP*4; QT=EL+LCAP*4; QP=QT+LCAP; XS=QP+41*512; XS_W=4160
ES=86016; assert XS+8*XS_W<=ES
SEG=ES+8*2048; ZROW=57; LDS_BYTES=SEG+58*1024
HH=XS; HL=HH+40*272; assert HL+64*272<=SEG
WST=XS
WMS=SEG+1024
CNT=SEG; IMG=SEG+1024; IMG_S=144; assert IMG+256*IMG_S<=SEG+ZROW*1024
SENT=0x7FFFFF00
XBIAS=3120
W=16; A=96; D=[116,132]; EE=148; PD=164; PN=172; ACC=180; FQ=188; ACF=196; ACS=200; QB=204; QA=208; KT=212
XO=220; EO=224; vXLa=225; vELa=226; vQTa=227; QTV=228
vXc=232; vEc=233; vAx01=234; vAx23=235; vAe=236; vQc=237; vSegB=238; vPN=239; vPA=240; vT0=241; vT1=242; vT2=243
HR=244
ADY=8
NVGPR=254
vS=254
S_X=4; S_E=8; S_T=12; S_W=16; S_O=20; S_B1=24; S_B2=28; S_SRC=32; S_DST=36
sSC=40; sWV=42; sNB=43; sNN=44; sNT=45; sTOT=46; sSLOW=47; sMK=48
S_WR=68; S_DBG=72; S_FL=76; S_W1=28
sSAFE=80; sB0=81; sCNT=82; sXO=83; sXS=86; sES=87; sME=88; sNW=89
st=[90,91,92,93,94,95,96,97,98,99]
XBYTES=N*128; EBYTES=E*32
DBG=[None]
def Wf(j,k): return W+(j*5+k)*4
def mfma(d,a_,b_,c=None):
    cs = "0" if c is None else vr(c,16)
    return f"v_mfma_f32_32x32x16_bf16 {vr(d,16)}, {vr(a_)}, {vr(b_)}, {cs}"
def chain(Dn,j):
    L=[mfma(Dn,A+0,Wf(j,0),None)]
    for k in range(1,4): L.append(mfma(Dn,A+4*k,Wf(j,k),Dn))
    L.append(mfma(Dn,A+16,Wf(j,4),Dn))
    return L
def qmf(Dn,j,typ):
    if typ=="F": return mfma(Dn,ACF,FQ+2*j,Dn)
    if typ[0]=="T": return mfma(Dn,ADY,FQ+2*j,Dn)
    return mfma(Dn,ACS,QB,Dn)
def dstamp(a,slot):
    a(f"s_cmp_eq_u32 s{sWV}, 0")
    a(f"s_cbranch_scc0 ds_skip_{slot}")
    a("s_mov_b32 s97, 0")
    a("s_cmp_eq_u32 s2, 0")
    a(f"s_cbranch_scc1 ds_go_{slot}")
    a("s_mov_b32 s97, 28")
    a("s_cmp_eq_u32 s2, 255")
    a(f"s_cbranch_scc0 ds_skip_{slot}")
    a(f"ds_go_{slot}:")
    a("s_memrealtime s[100:101]")
    a("s_load_dwordx2 s[98:99], s[0:1], 72")
    a("s_waitcnt lgkmcnt(0)")
    a("v_mov_b32 v254, s100")
    a("v_mov_b32 v255, s97")
    a(f"global_store_dword v255, v254, s[98:99] offset:{4+slot*4}")
    a(f"ds_skip_{slot}:")
def stamp(a,idx,extra=None):
    if DBG[0]=="dbgtime":
        m={0:0,3:1,4:2,8:3,9:4,10:5}
        if idx in m: dstamp(a,m[idx])
        return
    if DBG[0]!="stamp": return
    a("s_memrealtime s[100:101]")
    a("s_waitcnt lgkmcnt(0)")
    a(f"v_writelane_b32 v{vS}, s100, {idx}")
    if extra is not None:
        a("s_memtime s[100:101]")
        a("s_waitcnt lgkmcnt(0)")
        a(f"v_writelane_b32 v{vS}, s100, {extra}")
def stamp_out(a):
    if DBG[0]!="stamp": return
    a(f"v_writelane_b32 v{vS}, s{sNT}, 14")
    a("s_load_dwordx2 s[92:93], s[0:1], 80")
    a("s_waitcnt lgkmcnt(0)")
    a(f"s_add_u32 s92, s92, {(17<<20)}")
    a("s_addc_u32 s93, s93, 0")
    a("s_and_b32 s93, s93, 0xffff")
    a("s_mov_b32 s94, 0x100000")
    a("s_mov_b32 s95, 0x20000")
    a("v_lshrrev_b32 v2, 6, v0")
    a("s_lshl_b32 s96, s2, 4")
    a("v_add_u32 v2, s96, v2")
    a("v_lshlrev_b32 v2, 6, v2")
    a("v_and_b32 v3, 63, v0")
    a("v_lshl_add_u32 v2, v3, 2, v2")
    a("v_cmp_gt_u32 vcc, 32, v3")
    a("s_and_saveexec_b64 s[96:97], vcc")
    a("v_cmp_gt_u32 vcc, 16, v3")
    a("s_and_b64 exec, exec, vcc")
    a(f"buffer_store_dword v{vS}, v2, s[92:95], 0 offen")
    a("s_mov_b64 exec, s[96:97]")

def dma_x():
    L=[]
    for i in range(4):
        so = f"s{sXO+i}" if i<3 else "0"
        off = f" offset:{i*1040}" if i else ""
        L.append(f"buffer_load_dwordx4 v{XO+i}, s[{S_X}:{S_X+3}], {so} offen{off} lds")
    return L
def dma_e(slot=None, filler="s_nop 0"):
    m = f"s_mov_b32 m0, s{sME}" if slot is None else f"s_add_u32 m0, s{sES}, {slot*1024}"
    return [[m,filler,f"buffer_load_dwordx4 v{EO}, s[{S_E}:{S_E+3}], 0 offen nt lds", f"s_mov_b32 m0, s{sXS}"]]
def read_A():
    return [f"ds_read_b128 {vr(A+0)}, v{vAx01}", f"ds_read_b128 {vr(A+4)}, v{vAx01} offset:32",
            f"ds_read_b128 {vr(A+8)}, v{vAx23} offset:64", f"ds_read_b128 {vr(A+12)}, v{vAx23} offset:96",
            f"ds_read_b128 {vr(A+16)}, v{vAe}"]
def off_calc():
    return [f"v_add_u32 v{XO+i}, v{XO+i}, v{vXc}" for i in range(4)]+[f"v_add_u32 v{EO}, v{EO}, v{vEc}"]
def flat(L):
    out=[]
    for x in L: out+= x if isinstance(x,list) else [x]
    return out

def stage(j, typ, variant, last, side_exp=[], side_pk=[], head=[], side_late=[]):
    Dc=D[j&1]; Dn=D[(j+1)&1]; jn=(j+1)&3
    L=list(head)
    if typ=="S" and not last:
        L+=[f"ds_read_b32 v{QB+i}, v{QA+i} offset:{jn*128}" for i in range(4)]
    ex=[f"v_exp_f32 v{EE+i}, v{Dc+i}" for i in range(16)]
    ph1=interleave(ex,chain(Dn,jn),3)
    L+=weave(ph1,side_exp,1)
    pk1=[f"v_pk_fma_f32 {vr(EE+2*i,2)}, {vr(EE+2*i,2)}, s[{sSC}:{sSC+1}], s[{sSC}:{sSC+1}]" for i in range(8)]
    q=[] if last else [qmf(Dn,jn,typ)]
    wq=[f"s_waitcnt lgkmcnt({5 if j==2 else 0})"] if (typ=="S" and not last) else []
    if variant=="pair":
        pk1+=[f"v_pk_mul_f32 {vr(PD+2*k,2)}, {vr(EE+4*k,2)}, {vr(EE+4*k+2,2)}" for k in range(4)]
        pk1+=[f"v_pk_mul_f32 {vr(PN+2*k,2)}, {vr(Dc+4*k,2)}, {vr(EE+4*k+2,2)}" for k in range(4)]
        L+=weave(pk1,side_pk,1)
        rc=[f"v_rcp_f32 v{PD+i}, v{PD+i}" for i in range(8)]
        L+=[rc[0]]+wq+q+weave(rc[1:],side_late,1)
        L+=[f"v_pk_fma_f32 {vr(PN+2*k,2)}, {vr(Dc+4*k+2,2)}, {vr(EE+4*k,2)}, {vr(PN+2*k,2)}" for k in range(4)]
        if typ=="F":
            L+=[f"v_pk_fma_f32 {vr(ACC+2*j,2)}, {vr(PN+2*k,2)}, {vr(PD+2*k,2)}, {vr(ACC+2*j,2)}" for k in range(4)]
            return L
        if typ[0]=="T":
            kb=int(typ[1])
            L.append(f"v_pk_mul_f32 {vr(PN+2*kb,2)}, {vr(PN+2*kb,2)}, {vr(PD+2*kb,2)}")
            for k in range(4):
                if k==kb:
                    L.append(f"ds_write_b64 v{KT+1}, {vr(ACC+2*j,2)} offset:{j*256}")
                    L.append(f"v_pk_fma_f32 {vr(ACC+2*j,2)}, {vr(ACC+2*j,2)}, {vr(KT,2)}, {vr(PN+2*k,2)} op_sel_hi:[1,0,1]")
                else:
                    L.append(f"v_pk_fma_f32 {vr(ACC+2*j,2)}, {vr(PN+2*k,2)}, {vr(PD+2*k,2)}, {vr(ACC+2*j,2)}")
            return L
        L+=[f"v_pk_mul_f32 {vr(PN+2*k,2)}, {vr(PN+2*k,2)}, {vr(PD+2*k,2)}" for k in range(4)]
    else:
        L+=weave(pk1,side_pk,1)
        rc=[f"v_rcp_f32 v{EE+i}, v{EE+i}" for i in range(16)]
        L+=[rc[0]]+wq+q+weave(rc[1:],side_late,1)
        L+=[f"v_pk_mul_f32 {vr(PN+2*k,2)}, {vr(Dc+4*k,2)}, {vr(EE+4*k,2)}" for k in range(4)]
        L+=[f"v_pk_fma_f32 {vr(PN+2*k,2)}, {vr(Dc+4*k+2,2)}, {vr(EE+4*k+2,2)}, {vr(PN+2*k,2)}" for k in range(4)]
    for k in range(4):
        L.append(f"ds_write_b64 v{KT+2*k+1}, {vr(ACC+2*j,2)} offset:{j*256}")
        L.append(f"v_pk_fma_f32 {vr(ACC+2*j,2)}, {vr(ACC+2*j,2)}, {vr(KT+2*k,2)}, {vr(PN+2*k,2)} op_sel_hi:[1,0,1]")
    return L

def tile(typ, variant):
    L=[]
    lists=[f"ds_read_b128 {vr(XO)}, v{vXLa}", f"ds_read_b32 v{EO}, v{vELa}"]
    qtread=[f"ds_read_b128 {vr(QTV)}, v{vQTa}"]
    incs=[f"v_add_u32 v{vXLa}, 64, v{vXLa}", f"v_add_u32 v{vELa}, 64, v{vELa}", f"v_add_u32 v{vQTa}, 16, v{vQTa}"]
    srdsel=[f"s_cmp_gt_u32 s{sCNT}, 2", f"s_cselect_b32 s{S_E+2}, {EBYTES}, 0"]
    if typ=="F":
        L.append(qmf(D[0],0,"F"))
        L+=lists+qtread+incs+srdsel+["s_nop 3"]
    elif typ[0]=="T":
        kb=int(typ[1]); M=st[2*kb]
        lit={1:0xFFFFFF00,2:0xFFFF0000,3:0xFF000000}[kb]
        L+=[f"v_add_u32 v{QA}, v{QTV+3}, v{vQc}"]
        L+=[f"ds_read_b32 v{FQ+2*j+1}, v{QA} offset:{j*128}" for j in range(4)]
        L+=[f"s_and_b32 s{st[8]}, s{M}, {lit:#x}", f"s_and_b32 s{st[9]}, s{M+1}, {lit:#x}"]
        L+=[f"v_cndmask_b32_e64 v{KT}, 1.0, 0, s[{M}:{M+1}]", f"v_mov_b32 v{KT+1}, v{vPA}",
            f"v_cndmask_b32_e64 v{ADY}, v{ACF}, 0, s[{st[8]}:{st[9]}]", f"v_cndmask_b32_e64 v{ADY+1}, 0, v{ACF}, s[{st[8]}:{st[9]}]",
            f"v_lshl_add_u32 v{vPA}, v{QTV+3}, 1, v{vSegB}", f"v_mov_b32 v{vPN}, v{QTV+3}"]
        L+=lists+["s_waitcnt lgkmcnt(2)", qmf(D[0],0,typ)]
        L+=qtread+incs+srdsel+["s_nop 5"]
    else:
        L+=[f"v_add_u32 v{QA+i}, v{QTV+i}, v{vQc}" for i in range(4)]
        L+=[f"ds_read_b32 v{QB+i}, v{QA+i}" for i in range(4)]
        L+=[f"ds_read_b32 v{FQ+2*j}, v{QA+3} offset:{j*128}" for j in range(4)]
        L+=[f"v_cmp_eq_u32 s[{st[0]}:{st[1]}], v{QTV}, v{vPN}"]
        L+=[f"v_cmp_eq_u32 s[{st[0]+2*k}:{st[1]+2*k}], v{QTV+k}, v{QTV+k-1}" for k in range(1,4)]
        L+=[f"v_mov_b32 v{KT+1}, v{vPA}"]
        L+=[f"v_lshl_add_u32 v{KT+2*k+1}, v{QTV+k-1}, 1, v{vSegB}" for k in range(1,4)]
        L+=[f"v_lshl_add_u32 v{vPA}, v{QTV+3}, 1, v{vSegB}", f"v_mov_b32 v{vPN}, v{QTV+3}"]
        L+=[f"v_cndmask_b32_e64 v{KT+2*k}, 0, 1.0, s[{st[0]+2*k}:{st[1]+2*k}]" for k in range(4)]
        L+=["s_waitcnt lgkmcnt(0)", qmf(D[0],0,"S")]
        L+=lists+qtread+incs+srdsel+["s_nop 3"]
    L+=stage(0,typ,variant,False)
    head1=["s_waitcnt lgkmcnt(0)"]
    side1=[f"v_cmp_ne_u32 vcc, v{QTV+3}, v{vPN}"]+off_calc()
    L+=stage(1,typ,variant,False,side_exp=side1,head=head1)
    rA=read_A()
    L+=stage(2,typ,variant,False,side_pk=[["s_waitcnt vmcnt(1)",rA[0]]]+rA[1:])
    dx=dma_x(); de=dma_e(None,f"s_xor_b32 s{sME}, s{sME}, 1024")
    L+=stage(3,typ,variant,True,head=["s_waitcnt lgkmcnt(0)"],side_exp=dx[:3],side_pk=[dx[3]]+de,
             side_late=[f"v_xor_b32 v{vAe}, 1024, v{vAe}"]+([f"v_mov_b32 v{FQ+2*j}, v{FQ+2*j+1}" for j in range(4)] if typ[0]=="T" else []))
    return L

def wread(a,tag):
    a(f"s_bitcmp1_b32 s{sSLOW}, 1")
    a(f"s_cbranch_scc1 k_wdone_{tag}")
    a(f"s_or_b32 s{sSLOW}, s{sSLOW}, 2")
    a("v_lshlrev_b32 v14, 4, v1")
    a(f"v_add_u32 v14, {WMS}, v14")
    for f in range(20): a(f"ds_read_b128 {vr(W+4*f)}, v14 offset:{f*1024}")
    a("s_waitcnt lgkmcnt(0)")
    a("s_barrier")
    a(f"k_wdone_{tag}:")
sRA=48; sRB=53; sRM=58
def seg_prep(a,tag):
    a(f"v_lshlrev_b32 v{vT0}, 2, v1")
    a(f"ds_read_b32 v2, v{vT0} offset:{BASE}")
    a(f"ds_read_b32 v12, v{vT0} offset:{BASE+4}")
    a(f"ds_read_b32 v13, v{vT0} offset:{HIST}")
    a(f"v_lshlrev_b32 v14, 3, v1")
    a(f"s_lshl_b32 s{st[3]}, s{sWV}, 9")
    a(f"s_add_u32 s{st[3]}, s{st[3]}, {QP}")
    a(f"v_add_u32 v14, s{st[3]}, v14")
    QR=EE
    for r in range(5): a(f"ds_read_b64 {vr(QR+2*r,2)}, v14 offset:{r*8*512}")
    a(f"s_lshr_b32 s{st[0]}, s{sNT}, 3")
    a(f"s_and_b32 s{st[1]}, s{sNT}, 7")
    a("v_lshrrev_b32 v3, 1, v1")
    a("v_and_b32 v4, 1, v1")
    a(f"v_cmp_gt_u32 vcc, s{st[1]}, v3")
    a(f"v_mul_u32_u24 v6, s{st[0]}, v3")
    a(f"v_min_u32 v7, s{st[1]}, v3")
    a(f"v_cndmask_b32_e64 v5, 0, 1, vcc")
    a(f"v_add_u32 v5, s{st[0]}, v5")
    a("v_add_u32 v6, v6, v7")
    a("v_lshlrev_b32 v6, 3, v6")
    a("v_lshlrev_b32 v5, 2, v5")
    a("v_mul_u32_u24 v7, v5, v4")
    a("v_add_u32 v6, v6, v7")
    a("v_add_u32 v7, v6, v5")
    a("v_cmp_gt_u32 vcc, 16, v1")
    a("v_mov_b32 v15, 0x7fffffff")
    a(f"s_mov_b32 s{st[9]}, 0xffff0000")
    a("v_cndmask_b32 v6, v15, v6, vcc")
    a("s_waitcnt lgkmcnt(0)")
    a("v_sub_u32 v12, v12, v2")
    a("v_sub_u32 v12, v12, v13")
    a("v_cvt_f32_u32 v12, v12")
    TA=PD; TB=PN
    for x in range(10):
        ta=(PD+x if x<8 else QB+x-8);
        a(f"v_lshlrev_b32 v{ta}, 16, v{QR+x}")
        a(f"v_and_b32 v{TB+x}, s{st[9]}, v{QR+x}")
        a(f"v_add_f32 v{ta}, v{ta}, v{TB+x}")
    for x in range(10): a(f"v_exp_f32 v{TB+x}, v{(PD+x if x<8 else QB+x-8)}")
    for r in range(5):
        a(f"s_add_u32 s{st[2]}, s{sWV}, {8*r}")
        a(f"s_add_u32 s{st[3]}, s{st[2]}, 1")
        a(f"v_readlane_b32 s{st[4]}, v2, s{st[2]}")
        a(f"v_readlane_b32 s{st[5]}, v2, s{st[3]}")
        a(f"v_readlane_b32 s{sRA+r}, v12, s{st[2]}")
        for x in (2*r,2*r+1): a(f"v_fma_f32 v{TB+x}, v{TB+x}, s{sSC}, s{sSC}")
        a(f"s_lshr_b32 s{st[4]}, s{st[4]}, 2")
        a(f"s_lshr_b32 s{st[5]}, s{st[5]}, 2")
        for x in (2*r,2*r+1): a(f"v_rcp_f32 v{TB+x}, v{TB+x}")
        a(f"v_cmp_gt_u32 vcc, s{st[5]}, v6")
        a(f"v_cmp_lt_u32 s[{st[6]}:{st[7]}], s{st[4]}, v7")
        for x in (2*r,2*r+1): a(f"v_mul_f32 v{TB+x}, v{(PD+x if x<8 else QB+x-8)}, v{TB+x}")
        a(f"s_and_b64 vcc, vcc, s[{st[6]}:{st[7]}]")
        for x in (2*r,2*r+1): a(f"v_fma_f32 v{HR+x}, -v{TB+x}, s{sRA+r}, v{HR+x}")
        a(f"s_cmp_lt_u32 s{st[4]}, s{st[5]}")
        a(f"s_cselect_b32 s{sRM+r}, vcc_lo, 0")
        for t,dst in ((0,sRA+r),(1,sRB+r)):
            a(f"s_ff1_i32_b32 s{st[4]}, s{sRM+r}")
            a(f"s_add_u32 s{st[5]}, s{st[4]}, s{st[2]}")
            a(f"s_cmp_eq_u32 s{sRM+r}, 0")
            a(f"s_cselect_b32 s{st[5]}, {ZROW}, s{st[5]}")
            a(f"s_lshl_b32 s{dst}, s{st[5]}, 10")
            a(f"s_add_u32 s{st[4]}, s{sRM+r}, -1")
            a(f"s_and_b32 s{sRM+r}, s{sRM+r}, s{st[4]}")
def main_loop(a,variant):
    tag=variant
    sPW=st[6]
    a(f"s_lshr_b32 s{st[0]}, s{sNT}, 3")
    a(f"s_and_b32 s{st[1]}, s{sNT}, 7")
    a(f"s_cmp_lt_u32 s{sWV}, s{st[1]}")
    a(f"s_cselect_b32 s{st[2]}, 1, 0")
    a(f"s_add_u32 s{sNW}, s{st[0]}, s{st[2]}")
    a(f"s_mul_i32 s{sPW}, s{sWV}, s{st[0]}")
    a(f"s_min_u32 s{st[2]}, s{sWV}, s{st[1]}")
    a(f"s_add_u32 s{sPW}, s{sPW}, s{st[2]}")
    a(f"s_cmp_eq_u32 s{sNW}, 0")
    a(f"s_cbranch_scc1 L_mnone_{tag}")
    a(f"s_sub_u32 s{sCNT}, s{sNW}, 1")
    a(f"s_lshl_b32 s{st[3]}, s{sPW}, 3")
    a(f"s_lshl_b32 s{st[4]}, s{sNW}, 2")
    a("v_lshrrev_b32 v2, 3, v1")
    a("v_lshrrev_b32 v3, 2, v2")
    a("v_and_b32 v4, 3, v2")
    a(f"v_mul_u32_u24 v3, s{st[4]}, v3")
    a(f"v_add3_u32 v3, v3, v4, s{st[3]}")
    a(f"v_lshlrev_b32 v3, 4, v3")
    a(f"v_add_u32 v{vXLa}, {XL}, v3")
    a("v_lshrrev_b32 v2, 5, v1")
    a(f"v_mul_u32_u24 v3, s{st[4]}, v2")
    a(f"v_add_u32 v3, s{st[3]}, v3")
    a("v_bfe_u32 v4, v1, 1, 4")
    a("v_lshlrev_b32 v4, 2, v4")
    a("v_lshl_add_u32 v4, v3, 4, v4")
    a(f"v_add_u32 v{vELa}, {EL}, v4")
    a("v_lshlrev_b32 v4, 2, v3")
    a(f"v_add_u32 v{vQTa}, {QT}, v4")
    a(f"ds_read_b128 {vr(XO)}, v{vXLa}")
    a(f"ds_read_b32 v{EO}, v{vELa}")
    a(f"ds_read_b128 {vr(QTV)}, v{vQTa}")
    a(f"s_lshl_b32 s{st[5]}, s{sWV}, 11")
    a(f"s_add_u32 s{st[5]}, s{st[5]}, {SEG}")
    a("v_and_b32 v4, 31, v1")
    a("v_lshlrev_b32 v4, 3, v4")
    a("v_lshl_add_u32 v4, v2, 10, v4")
    a(f"v_add_u32 v{vSegB}, s{st[5]}, v4")
    a(f"v_and_b32 v{vAe}, 0xfffffbff, v{vAe}")
    a(f"s_mov_b32 s{S_E+2}, {EBYTES}")
    a("s_waitcnt lgkmcnt(0)")
    for x in off_calc(): a(x)
    for x in flat(dma_e(0))+["s_nop 0"]+dma_x(): a(x)
    a(f"ds_read_b32 v{EO}, v{vELa} offset:64")
    a(f"ds_read_b128 {vr(XO)}, v{vXLa} offset:64")
    wread(a,tag)
    seg_prep(a,tag)
    for j in range(4): a(f"v_mov_b64 {vr(ACC+2*j,2)}, 0")
    a(f"v_mov_b32 v{vPN}, v{QTV}")
    a(f"v_lshl_add_u32 v{vPA}, v{QTV}, 1, v{vSegB}")
    a(f"v_add_u32 v{QA}, v{QTV}, v{vQc}")
    for j in range(4): a(f"ds_read_b32 v{FQ+2*j}, v{QA} offset:{j*128}")
    a(f"v_cmp_ne_u32 vcc, v{QTV+3}, v{vPN}")
    a("s_waitcnt lgkmcnt(0)")
    for x in off_calc(): a(x)
    a("s_waitcnt vmcnt(0)")
    for x in read_A(): a(x)
    a(f"s_cmp_gt_u32 s{sCNT}, 0")
    a(f"s_cselect_b32 s{S_E+2}, {EBYTES}, 0")
    for x in flat(dma_e(1)): a(x)
    a(f"ds_read_b32 v{EO}, v{vELa} offset:128")
    a(f"s_cmp_gt_u32 s{sCNT}, 1")
    a(f"s_cselect_b32 s{S_E+2}, {EBYTES}, 0")
    a("s_waitcnt lgkmcnt(0)")
    a(f"v_add_u32 v{EO}, v{EO}, v{vEc}")
    for x in dma_x()+flat(dma_e(0)): a(x)
    for x in chain(D[0],0): a(x)
    a(f"v_add_u32 v{vXLa}, 128, v{vXLa}")
    a(f"v_add_u32 v{vELa}, 192, v{vELa}")
    a(f"v_add_u32 v{vQTa}, 16, v{vQTa}")
    a(f"v_xor_b32 v{vAe}, 1024, v{vAe}")
    a(f"s_add_u32 s{sME}, s{sES}, 1024")
    a(f"v_mov_b32 v{ADY+2}, 0")
    a(f"v_mov_b32 v{ADY+3}, 0")
    if DBG[0]=="stamp" and tag=="pair":
        a("s_memtime s[100:101]"); a("s_waitcnt lgkmcnt(0)"); a(f"v_writelane_b32 v{vS}, s100, 15")
    def tail(fall):
        a(f"s_sub_u32 s{sCNT}, s{sCNT}, 1")
        a(f"s_cbranch_scc1 L_fin_{tag}")
        if variant=="pair":
            a(f"s_cbranch_vccz L_F_{tag}")
            if not fall: a(f"s_branch L_D_{tag}")
        else:
            a(f"s_branch L_S_{tag}")
    if variant=="pair":
        a(f"s_cbranch_vccnz L_D_{tag}")
        a(f"L_F_{tag}:")
        a.extend(tile("F",variant))
        tail(True)
        a(f"L_D_{tag}:")
        a(f"v_cmp_ne_u32 s[{st[0]}:{st[1]}], v{QTV}, v{vPN}")
        for k in range(1,4): a(f"v_cmp_ne_u32 s[{st[2*k]}:{st[2*k+1]}], v{QTV+k}, v{QTV+k-1}")
        a(f"s_mov_b32 s{st[8]}, 0")
        for k in (3,2,1,0):
            a(f"s_cmp_lg_u64 s[{st[2*k]}:{st[2*k+1]}], 0")
            a(f"s_addc_u32 s{st[8]}, s{st[8]}, s{st[8]}")
        for k in (1,2,3):
            a(f"s_cmp_eq_u32 s{st[8]}, {1<<k}")
            a(f"s_cbranch_scc1 L_T{k}_{tag}")
        a(f"s_cmp_eq_u32 s{st[8]}, 1")
        a(f"s_cbranch_scc0 L_S_{tag}")
        a(f"v_add_u32 v{QA}, v{QTV+3}, v{vQc}")
        for j in range(4): a(f"ds_write_b64 v{vPA}, {vr(ACC+2*j,2)} offset:{j*256}")
        for j in range(4): a(f"ds_read_b32 v{FQ+2*j}, v{QA} offset:{j*128}")
        a(f"v_cndmask_b32_e64 v{KT}, 1.0, 0, s[{st[0]}:{st[1]}]")
        a(f"v_lshl_add_u32 v{vPA}, v{QTV+3}, 1, v{vSegB}")
        a(f"v_mov_b32 v{vPN}, v{QTV+3}")
        for j in range(4): a(f"v_pk_mul_f32 {vr(ACC+2*j,2)}, {vr(ACC+2*j,2)}, {vr(KT,2)} op_sel_hi:[1,0]")
        a("s_waitcnt lgkmcnt(0)")
        a(f"s_branch L_F_{tag}")
        for k in (1,2,3):
            a(f"L_T{k}_{tag}:")
            a.extend(tile(f"T{k}",variant))
            tail(False)
    a(f"L_S_{tag}:")
    a.extend(tile("S",variant))
    tail(False)
    a(f"L_fin_{tag}:")
    for j in range(4): a(f"ds_write_b64 v{vPA}, {vr(ACC+2*j,2)} offset:{j*256}")
    a(f"s_branch L_mdone_{tag}")
    a(f"L_mnone_{tag}:")
    wread(a,tag+"n")
    seg_prep(a,tag+"n")
    a(f"L_mdone_{tag}:")

def masked_fill(a, count, addr_v, data, offset):
    if count>=512:
        a(f"ds_write_b128 v{addr_v}, {vr(data)} offset:{offset}"); return
    a(f"v_cmp_gt_u32 vcc, {count}, v0")
    a(f"s_and_saveexec_b64 s[{st[8]}:{st[9]}], vcc")
    a(f"ds_write_b128 v{addr_v}, {vr(data)} offset:{offset}")
    a(f"s_mov_b64 exec, s[{st[8]}:{st[9]}]")
def fill_region(a, start, nbytes, data):
    n=nbytes//16; assert nbytes%16==0
    o=start
    big = start+nbytes>65535
    if big:
        a(f"v_lshlrev_b32 v{vT2}, 4, v0")
        a(f"v_add_u32 v{vT2}, {start}, v{vT2}")
        o=0
    while n>0:
        masked_fill(a,min(n,512),vT2 if big else vT0,data,o); o+=512*16; n-=512
def init_lists(a,r_sent,r_dummy):
    for i in range(4): a(f"v_mov_b32 v{r_sent+i}, {SENT:#x}")
    fill_region(a,XL,2*LCAP*4,r_sent)
    for i in range(4): a(f"v_mov_b32 v{r_dummy+i}, {40*512}")
    fill_region(a,QT,LCAP,r_dummy)

def phase_a(a):
    a(f"s_mul_i32 s{st[0]}, s2, 10000")
    a("v_lshlrev_b32 v6, 4, v0")
    a(f"v_add_u32 v6, s{st[0]}, v6")
    a(f"buffer_load_dwordx4 v[16:19], v6, s[{S_DST}:{S_DST+3}], 0 offen")
    a(f"buffer_load_dwordx4 v[20:23], v6, s[{S_SRC}:{S_SRC+3}], 0 offen")
    a("v_cmp_gt_u32 vcc, 113, v0")
    a(f"s_and_saveexec_b64 s[{st[6]}:{st[7]}], vcc")
    a(f"s_cbranch_execz pa_r1skip")
    a(f"s_movk_i32 s{st[1]}, 8192")
    a(f"buffer_load_dwordx4 v[24:27], v6, s[{S_DST}:{S_DST+3}], s{st[1]} offen")
    a(f"buffer_load_dwordx4 v[28:31], v6, s[{S_SRC}:{S_SRC+3}], s{st[1]} offen")
    a("pa_r1skip:")
    a(f"s_mov_b64 exec, s[{st[6]}:{st[7]}]")
def phase_w(a):
    a("v_mov_b32 v85, 0x7fffff00")
    a(f"s_cmp_eq_u32 s{sWV}, 7")
    a("s_cbranch_scc0 pa_now")
    a("s_cmp_lt_u32 s2, 144")
    a("s_cbranch_scc0 pa_now")
    a(f"s_and_b32 s{st[0]}, s2, 3")
    a(f"s_lshl_b32 s{st[0]}, s{st[0]}, 6")
    a(f"v_add_u32 v76, s{st[0]}, v1")
    a("v_lshrrev_b32 v77, 2, v76")
    a("v_and_b32 v78, 3, v76")
    a("v_and_b32 v79, 31, v77")
    a("v_lshrrev_b32 v80, 5, v77")
    a("v_lshlrev_b32 v81, 3, v80")
    a("v_lshl_add_u32 v81, v78, 1, v81")
    a("s_cmp_lt_u32 s2, 80")
    a("s_cbranch_scc1 pa_w_main")
    a(f"s_sub_u32 s{st[1]}, s2, 80")
    a(f"s_lshr_b32 s{st[1]}, s{st[1]}, 2")
    a(f"s_add_u32 s{st[2]}, s{st[1]}, 20")
    a(f"s_lshr_b32 s{st[3]}, s{st[1]}, 3")
    a(f"s_and_b32 s{st[4]}, s{st[1]}, 7")
    a(f"s_lshl_b32 s{st[4]}, s{st[4]}, 4")
    a(f"s_lshl_b32 s{st[3]}, s{st[3]}, 5")
    srd(a,S_WR,60,128*64*2)
    a(f"s_movk_i32 s{st[5]}, 128")
    a(f"s_mov_b32 s{sNW}, 0")
    a("s_branch pa_w_go")
    a("pa_w_main:")
    a(f"s_lshr_b32 s{st[2]}, s2, 2")
    a(f"s_mul_i32 s{st[3]}, s{st[2]}, 13")
    a(f"s_lshr_b32 s{st[3]}, s{st[3]}, 6")
    a(f"s_mul_i32 s{st[4]}, s{st[3]}, 5")
    a(f"s_sub_u32 s{st[4]}, s{st[2]}, s{st[4]}")
    a(f"s_cmp_eq_u32 s{st[4]}, 4")
    a(f"s_cselect_b32 s{st[4]}, 8, s{st[4]}")
    a(f"s_lshl_b32 s{st[4]}, s{st[4]}, 4")
    a(f"s_lshl_b32 s{st[3]}, s{st[3]}, 5")
    srd(a,S_WR,56,144*128*2)
    a(f"s_movk_i32 s{st[5]}, 256")
    a(f"s_mov_b32 s{sNW}, 1")
    a("pa_w_go:")
    a(f"v_add_u32 v81, s{st[4]}, v81")
    a(f"v_add_u32 v79, s{st[3]}, v79")
    a(f"v_mul_lo_u32 v81, v81, s{st[5]}")
    a("v_lshl_add_u32 v81, v79, 1, v81")
    a(f"v_add_u32 v82, s{st[5]}, v81")
    a(f"buffer_load_ushort v83, v81, s[{S_WR}:{S_WR+3}], 0 offen")
    a(f"buffer_load_ushort v84, v82, s[{S_WR}:{S_WR+3}], 0 offen")
    a(f"s_lshl_b32 s{st[2]}, s{st[2]}, 10")
    a(f"v_lshl_add_u32 v85, v76, 2, s{st[2]}")
    a("pa_now:")
def phase_w2(a):
    a(f"s_cmp_eq_u32 s{sWV}, 7")
    a("s_cbranch_scc0 pa_now2")
    a("s_cmp_lt_u32 s2, 144")
    a("s_cbranch_scc0 pa_now2")
    a("v_lshl_or_b32 v86, v84, 16, v83")
    a(f"s_cmp_eq_u32 s{sNW}, 0")
    a("s_cbranch_scc1 pa_w_st")
    a("v_lshlrev_b32 v83, 16, v83")
    a("v_lshlrev_b32 v84, 16, v84")
    a(f"s_mov_b32 s{st[8]}, {f2u(NEG_LOG2E):#x}")
    a(f"v_mul_f32 v83, s{st[8]}, v83")
    a(f"v_mul_f32 v84, s{st[8]}, v84")
    a("v_cvt_pk_bf16_f32 v86, v83, v84")
    a("pa_w_st:")
    a(f"buffer_store_dword v86, v85, s[{S_W}:{S_W+3}], 0 offen sc1")
    a("pa_now2:")

def q_tile(a):
    WB=PN; QD=W+16
    a("v_bfe_u32 v11, v1, 2, 2")
    a("v_lshrrev_b32 v12, 5, v1")
    a("v_lshl_add_u32 v11, v12, 3, v11")
    a("v_lshlrev_b32 v11, 8, v11")
    a("v_bfe_u32 v12, v1, 4, 1")
    a("v_lshl_add_u32 v11, v12, 5, v11")
    a("v_and_b32 v12, 3, v1")
    a("v_lshl_add_u32 v11, v12, 3, v11")
    a(f"s_and_b32 s{st[2]}, s{sWV}, 3")
    a(f"s_lshl_b32 s{st[2]}, s{st[2]}, 6")
    a(f"s_add_u32 s{st[2]}, s{st[2]}, {WST}")
    a(f"v_add_u32 v11, s{st[2]}, v11")
    for ks in range(4):
        a(f"ds_read_b64_tr_b16 {vr(WB+4*ks,2)}, v11 offset:{ks*4096}")
        a(f"ds_read_b64_tr_b16 {vr(WB+4*ks+2,2)}, v11 offset:{ks*4096+1024}")
    a("s_waitcnt lgkmcnt(0)")
    a(mfma(QD,A,WB,None))
    for ks in range(1,4): a(mfma(QD,A+4*ks,WB+4*ks,QD))
    a(f"v_lshlrev_b32 v{PD+4}, 16, v{PD+4}")
    a(f"s_mov_b32 s{st[5]}, {f2u(NEG_LOG2E):#x}")
    a(f"s_lshr_b32 s{st[1]}, s{sWV}, 2")
    a(f"s_and_b32 s{st[2]}, s{sWV}, 3")
    a("v_lshrrev_b32 v5, 5, v1")
    a("v_and_b32 v4, 31, v1")
    a(f"s_lshl_b32 s{st[3]}, s{st[1]}, 14")
    a(f"s_lshl_b32 s{st[4]}, s{st[2]}, 7")
    a(f"s_add_u32 s{st[3]}, s{st[3]}, s{st[4]}")
    a(f"s_add_u32 s{st[3]}, s{st[3]}, {QP}")
    a("v_lshlrev_b32 v12, 11, v5")
    a("v_lshl_add_u32 v12, v4, 2, v12")
    a(f"v_add_u32 v12, s{st[3]}, v12")
    a("s_nop 1")
    for r in range(16):
        if r==4:
            a(f"s_cmp_eq_u32 s{st[1]}, 0")
            a("s_cbranch_scc0 k_qdone")
        t=KT+(r&3)
        a(f"v_add_f32 v{QD+r}, v{QD+r}, v{PD+4}")
        a(f"v_mul_f32 v{QD+r}, s{st[5]}, v{QD+r}")
        a(f"v_cvt_pk_bf16_f32 v{t}, v{QD+r}, v{QD+r}")
        a(f"v_lshlrev_b32 v{vT1}, 16, v{t}")
        a(f"v_sub_f32 v{vT1}, v{QD+r}, v{vT1}")
        a(f"v_cvt_pk_bf16_f32 v{t}, v{QD+r}, v{vT1}")
        a(f"ds_write_b32 v12, v{t} offset:{((r>>2)*8+(r&3))*512}")
    a("k_qdone:")
def phase_a2(a,dbg=None):
    a(f"s_mov_b32 s{st[0]}, {MAGIC}")
    a(f"s_movk_i32 s{st[1]}, 625")
    a(f"s_movk_i32 s{st[2]}, {IMG_S}")
    a(f"s_mov_b32 s{st[3]}, {CNT}")
    a(f"s_mov_b32 s{st[4]}, {IMG+4}")
    a("v_mov_b32 v5, 1")
    def rnd(r,dv,sv,tv):
        for i in range(4): a(f"v_mul_hi_u32 v{tv+i}, v{dv+i}, s{st[0]}")
        for i in range(4):
            a(f"v_lshl_add_u32 v{tv+4+i}, v{tv+i}, 2, s{st[3]}")
            a(f"ds_add_rtn_u32 v{tv+4+i}, v{tv+4+i}, v5")
        for i in range(4):
            a(f"v_mad_u32_u24 v{tv+8+i}, v{tv+i}, s{st[1]}, 15")
            a(f"v_lshrrev_b32 v{tv+8+i}, 4, v{tv+8+i}")
            a(f"v_sub_u32 v{tv+8+i}, v{dv+i}, v{tv+8+i}")
            a(f"v_lshlrev_b32 v{tv+8+i}, 26, v{tv+8+i}")
            a(f"v_mad_u32_u24 v{tv+12+i}, v{tv+i}, s{st[2]}, s{st[4]}") if False else a(f"v_mul_u32_u24 v{tv+12+i}, s{st[2]}, v{tv+i}")
            a(f"v_or3_b32 v{tv+8+i}, v{tv+8+i}, v7, v{sv+i}")
            if i: a(f"v_or_b32 v{tv+8+i}, {i<<14}, v{tv+8+i}")
            a(f"v_add_u32 v{tv+12+i}, s{st[4]}, v{tv+12+i}")
    def wr(tv):
        for i in range(4):
            a(f"v_min_u32 v{tv+4+i}, 31, v{tv+4+i}")
            a(f"v_lshl_add_u32 v{tv+4+i}, v{tv+4+i}, 2, v{tv+12+i}")
            a(f"ds_write_b32 v{tv+4+i}, v{tv+8+i}")
    a("v_lshlrev_b32 v7, 16, v0")
    rnd(0,16,20,32)
    a("v_cmp_gt_u32 vcc, 113, v0")
    a(f"s_and_saveexec_b64 s[{st[6]}:{st[7]}], vcc")
    a("s_cbranch_execz pa_r1done")
    a(f"v_add_u32 v7, {(4*512)<<14}, v7")
    rnd(1,24,28,48)
    a("s_waitcnt lgkmcnt(0)")
    wr(48)
    a("pa_r1done:")
    a(f"s_mov_b64 exec, s[{st[6]}:{st[7]}]")
    a("s_waitcnt lgkmcnt(0)")
    wr(32)
    a("v_lshrrev_b32 v4, 2, v0")
    a("v_and_b32 v5, 3, v0")
    a(f"v_mul_u32_u24 v6, {IMG_S}, v4")
    a("v_lshl_add_u32 v6, v5, 4, v6")
    a(f"v_add_u32 v6, {IMG}, v6")
    a("v_lshlrev_b32 v7, 2, v4")
    a(f"v_add_u32 v7, {CNT}, v7")
    a("v_lshlrev_b32 v8, 4, v0")
    a(f"s_mul_i32 s{st[0]}, s2, {CST}")
    a(f"s_add_u32 s{st[1]}, s{st[0]}, 8192")
    a(f"s_add_u32 s{st[2]}, s{st[0]}, {TB_OFF}")
    a(f"s_add_u32 s{st[3]}, s{st[2]}, 8192")
    q_inputs(a)
    a("s_waitcnt lgkmcnt(0)")
    a("s_barrier")
    for r in range(2):
        a(f"ds_read_b32 v{32+r}, v7 offset:{r*512}")
        a(f"ds_read_b128 v[{16+4*r}:{19+4*r}], v6 offset:{r*128*IMG_S}")
        a(f"ds_read_b128 v[{24+4*r}:{27+4*r}], v6 offset:{r*128*IMG_S+64}")
    a("v_mov_b32 v9, 0")
    a(f"buffer_load_dword v10, v9, s[{S_DBG}:{S_DBG+3}], 0 offen sc1")
    a("v_cmp_eq_u32 vcc, 0, v5")
    a("s_nop 0")
    a("s_waitcnt lgkmcnt(0)")
    for r in range(2): a(f"v_cndmask_b32 v{16+4*r}, v{16+4*r}, v{32+r}, vcc")
    stf = "" if 'plainst' in OPT else " sc1"
    if 'sc01' in OPT: stf=" sc0 sc1"
    if 'ntst' in OPT: stf=" sc1 nt"
    if 'nostore' not in OPT:
        for r in range(2): a(f"buffer_store_dwordx4 v[{16+4*r}:{19+4*r}], v8, s[{S_T}:{S_T+3}], s{st[r]} offen{stf}")
    for r in range(2):
        a(f"v_cmp_lt_u32 vcc, 15, v{32+r}")
        a(f"s_and_saveexec_b64 s[{st[6]}:{st[7]}], vcc")
        a(f"s_cbranch_execz pa_nob_{r}")
        a(f"buffer_store_dwordx4 v[{24+4*r}:{27+4*r}], v8, s[{S_T}:{S_T+3}], s{st[2+r]} offen sc1")
        a(f"pa_nob_{r}:")
        a(f"s_mov_b64 exec, s[{st[6]}:{st[7]}]")
    phase_w2(a)
    a("s_waitcnt vmcnt(0)")
    a(f"v_add_u32 v9, {WST}, v8")
    a("ds_write_b128 v9, v[64:67]")
    a("ds_write_b128 v9, v[68:71] offset:8192")
    a("s_waitcnt lgkmcnt(0)")
    a("s_barrier")

def q_inputs(a):
    t=[st[4],st[5],st[6],st[7],st[8]]
    a("v_and_b32 v10, 31, v1")
    a("v_lshrrev_b32 v11, 5, v1")
    a(f"s_lshr_b32 s{t[0]}, s{sWV}, 2")
    a(f"s_and_b32 s{t[1]}, s{sWV}, 3")
    a(f"s_lshl_b32 s{t[2]}, s{t[0]}, 5")
    a(f"s_add_u32 s{t[2]}, s{t[2]}, s{sNB}")
    a(f"v_add_u32 v12, s{t[2]}, v10")
    a("v_lshlrev_b32 v12, 7, v12")
    a("v_lshl_add_u32 v12, v11, 4, v12")
    for ks in range(4): a(f"buffer_load_dwordx4 {vr(A+4*ks)}, v12, s[{S_X}:{S_X+3}], s{sXO} offen offset:{ks*32}")
    a(f"s_lshl_b32 s{t[3]}, s{t[1]}, 6")
    a(f"v_lshl_add_u32 v13, v10, 1, s{t[3]}")
    a(f"buffer_load_ushort v{PD+4}, v13, s[{S_B1}:{S_B1+3}], 0 offen")
    a("v_lshlrev_b32 v13, 4, v0")
    a(f"s_movk_i32 s{t[0]}, 16384")
    a(f"s_movk_i32 s{t[1]}, 24576")
    a(f"buffer_load_dwordx4 v[64:67], v13, s[{S_W1}:{S_W1+3}], s{t[0]} offen")
    a(f"buffer_load_dwordx4 v[68:71], v13, s[{S_W1}:{S_W1+3}], s{t[1]} offen")
def x_prefetch(a):
    if 'nox' not in OPT:
        a(f"s_lshr_b32 s{st[0]}, s2, 3")
        a(f"s_mul_i32 s{st[0]}, s{st[0]}, 40000")
        a(f"s_mul_i32 s{st[1]}, s{sWV}, 5120")
        a(f"s_add_u32 s{st[0]}, s{st[0]}, s{st[1]}")
        a(f"s_add_u32 s{st[0]}, s{st[0]}, {XBIAS}")
        a(f"s_add_u32 s{st[1]}, s{st[0]}, 4096")
        a("v_lshlrev_b32 v6, 4, v1")
        for k in range(5):
            a(f"buffer_load_dwordx4 v[16:19], v6, s[{S_X}:{S_X+3}], s{st[k>>2]} offen offset:{(k&3)*1024}")

def consts(a):
    EB=QA
    a("v_lshrrev_b32 v2, 3, v1")
    a("v_and_b32 v3, 7, v1")
    a("v_and_b32 v4, 31, v1")
    a("v_lshrrev_b32 v5, 5, v1")
    a(f"s_mul_i32 s{sXS}, s{sWV}, {XS_W}")
    a(f"s_add_u32 s{sXS}, s{sXS}, {XS}")
    a(f"s_lshl_b32 s{sES}, s{sWV}, 11")
    a(f"s_add_u32 s{sES}, s{sES}, {ES}")
    a(f"s_mov_b32 s{sSC}, 0x33800000")
    a(f"s_mov_b32 s{sSC+1}, 0x33800000")
    a(f"s_mov_b32 s{sSLOW}, 0")
    a(f"s_mov_b32 s{sSAFE}, 0")
    a("v_lshlrev_b32 v7, 1, v2")
    a("v_and_b32 v7, 4, v7")
    a("v_xor_b32 v7, v3, v7")
    a(f"v_lshlrev_b32 v{vXc}, 4, v7")
    a("v_lshrrev_b32 v7, 4, v1")
    a("v_xor_b32 v7, v1, v7")
    a("v_and_b32 v7, 1, v7")
    a(f"v_lshlrev_b32 v{vEc}, 4, v7")
    a("v_and_b32 v7, 3, v4")
    a("v_bfe_u32 v8, v4, 2, 1")
    a("v_lshrrev_b32 v9, 3, v4")
    a("v_lshl_add_u32 v10, v8, 2, v9")
    a("v_mul_u32_u24 v11, 1040, v7")
    a("v_lshl_add_u32 v11, v10, 7, v11")
    a("v_lshl_add_u32 v11, v5, 4, v11")
    a(f"v_add_u32 v11, s{sXS}, v11")
    a("v_bfe_u32 v12, v10, 1, 1")
    a("v_lshlrev_b32 v12, 6, v12")
    a(f"v_add_u32 v{vAx01}, v11, v12")
    a(f"v_sub_u32 v{vAx23}, v11, v12")
    a("v_lshl_add_u32 v11, v10, 2, v7")
    a("v_bfe_u32 v12, v11, 3, 1")
    a("v_xor_b32 v12, v5, v12")
    a("v_lshlrev_b32 v12, 4, v12")
    a("v_lshl_add_u32 v12, v11, 5, v12")
    a(f"v_add_u32 v{vAe}, s{sES}, v12")
    a(f"v_lshlrev_b32 v{vQc}, 2, v4")
    a(f"v_add_u32 v{vQc}, {QP}, v{vQc}")
    a("v_lshlrev_b32 v12, 2, v5")
    a("v_sub_u32 v12, v10, v12")
    a("v_mov_b32 v13, 0x3f803f80")
    for r in range(4): a(f"v_cmp_eq_u32 s[{st[0]+2*r}:{st[1]+2*r}], {r}, v12")
    a("v_cmp_eq_u32 vcc, v8, v5")
    for r in range(4): a(f"v_cndmask_b32_e64 v{ACS+r}, 0, v13, s[{st[0]+2*r}:{st[1]+2*r}]")
    for i in range(12): a(f"v_mov_b32 v{FQ+i}, 0")
    a(f"v_cndmask_b32 v{ACF}, 0, v13, vcc")
    for i in range(10): a(f"v_mov_b32 v{HR+i}, 0")
    a(f"v_lshlrev_b32 v{vT0}, 4, v0")
    init_lists(a,KT,KT+4)
    for i in range(4): a(f"v_mov_b32 v{KT+i}, 0")
    fill_region(a,QP+40*512,512,KT)
    fill_region(a,SEG+ZROW*1024,1024,KT)
    a("v_lshrrev_b32 v2, 2, v1")
    a(f"s_lshl_b32 s{st[0]}, s{sWV}, 5")
    a(f"v_add_u32 v2, s{st[0]}, v2")
    a("v_mul_u32_u24 v2, 2500, v2")
    a(f"v_mov_b32 v{EB}, v2")
    a(f"v_add_u32 v{EB+1}, {16*2500}, v2")
    a("v_and_b32 v3, 3, v1")
    for i in range(4):
        a(f"v_lshlrev_b32 v{XO+i}, 2, v3")
        a(f"v_add_u32 v{XO+i}, {i-1}, v{XO+i}")

def gen(dbg=None):
    DBG[0]=dbg
    a=Asm()
    R=D[0]; HD=PD; RANK=EE; EB=QA; WB=PN; ND=D[1]
    a("s_cmp_ge_u32 s2, 256")
    a("s_cbranch_scc1 k_end")
    if dbg=="stamp": a(f"v_mov_b32 v{vS}, 0")
    if dbg!="dbgtime": stamp(a,0,11)
    a("s_load_dwordx16 s[48:63], s[0:1], 0")
    a("s_load_dwordx4 s[64:67], s[0:1], 64")
    a("s_load_dwordx2 s[46:47], s[0:1], 80")
    a("v_and_b32 v1, 63, v0")
    a("v_lshrrev_b32 v2, 6, v0")
    a("s_mul_i32 s43, s2, 625")
    a(f"v_readfirstlane_b32 s{sWV}, v2")
    if dbg=="dbgtime":
        a("s_nop 3"); stamp(a,0)
    a(f"v_lshlrev_b32 v{vT0}, 4, v0")
    for i in range(4): a(f"v_mov_b32 v{KT+i}, 0")
    fill_region(a,HIST,XL,KT)
    fill_region(a,CNT,1024,KT)
    a("s_add_u32 s44, s43, 640")
    a("s_add_u32 s43, s43, 15")
    a("s_lshr_b32 s43, s43, 4")
    a("s_lshr_b32 s44, s44, 4")
    a("s_sub_u32 s44, s44, s43")
    a("v_lshrrev_b32 v2, 3, v1")
    a("v_and_b32 v3, 7, v1")
    a("v_and_b32 v4, 31, v1")
    a("v_lshrrev_b32 v5, 5, v1")
    a("s_waitcnt lgkmcnt(0)")
    srd(a,S_DST,54,E*4); srd(a,S_SRC,52,E*4)
    phase_a(a)
    phase_w(a)
    a("s_barrier")
    a(f"s_sub_u32 s{S_X}, s48, {XBIAS}")
    a(f"s_subb_u32 s{S_X+1}, s49, 0")
    a(f"s_and_b32 s{S_X+1}, s{S_X+1}, 0xffff")
    a(f"s_mov_b32 s{S_X+2}, {XBYTES+XBIAS}")
    a(f"s_mov_b32 s{S_X+3}, 0x20000")
    srd(a,S_DBG,66,256); srd(a,S_B1,58,256); srd(a,S_W1,56,144*128*2)
    a(f"s_movk_i32 s{sXO}, {XBIAS}")
    a(f"s_movk_i32 s{sXO+1}, {XBIAS-1040}")
    a(f"s_movk_i32 s{sXO+2}, {XBIAS-2080}")
    a("s_cmp_eq_u32 s2, 0")
    a("s_cbranch_scc0 k_notag")
    a(f"s_cmp_eq_u32 s{sWV}, 6")
    a("s_cbranch_scc0 k_notag")
    a(f"s_memrealtime s[{st[4]}:{st[5]}]")
    a("s_waitcnt lgkmcnt(0)")
    a(f"s_or_b32 s{st[4]}, s{st[4]}, 1")
    a(f"v_mov_b32 v6, s{st[4]}")
    a("v_mov_b32 v7, 0")
    a(f"buffer_store_dword v6, v7, s[{S_DBG}:{S_DBG+3}], 0 offen sc1")
    a("k_notag:")
    srd(a,S_E,50,EBYTES); srd(a,S_T,46,2*256*CST); srd(a,S_W,46,WF_BYTES,WF_OFF); srd(a,S_FL,46,8192,FL_OFF)
    srd(a,S_O,64,N*128)
    a("s_waitcnt vmcnt(0)")
    phase_a2(a,dbg)
    stamp(a,3)
    a(f"s_cmp_eq_u32 s{sWV}, 0")
    a("s_cbranch_scc0 k_nosig")
    a(f"v_readfirstlane_b32 s{sB0}, v10")
    a(f"s_mov_b32 s{st[1]}, 400000")
    a("k_tagpoll:")
    a(f"s_cmp_lg_u32 s{sB0}, 0")
    a("s_cbranch_scc1 k_tagdone")
    a("v_mov_b32 v6, 0")
    a(f"buffer_load_dword v7, v6, s[{S_DBG}:{S_DBG+3}], 0 offen sc1")
    a("s_waitcnt vmcnt(0)")
    a(f"v_readfirstlane_b32 s{sB0}, v7")
    a(f"s_sub_u32 s{st[1]}, s{st[1]}, 1")
    a("s_cbranch_scc0 k_tagpoll")
    a("k_tagdone:")
    if 'sigstamp' in OPT: stamp(a,1)
    if True:
        a(f"s_lshr_b32 s{st[2]}, s2, 2")
        a(f"s_lshl_b32 s{st[2]}, s{st[2]}, 7")
        a(f"s_and_b32 s{st[3]}, s2, 3")
        a(f"s_lshl_b32 s{st[3]}, s{st[3]}, 2")
        a(f"s_add_u32 s{st[2]}, s{st[2]}, s{st[3]}")
    else:
        a(f"s_lshl_b32 s{st[2]}, s2, 2")
    a(f"v_mov_b32 v6, s{st[2]}")
    a(f"v_mov_b32 v7, s{sB0}")
    a(f"s_mov_b64 s[{st[6]}:{st[7]}], exec")
    a("s_mov_b64 exec, 1")
    a(f"buffer_store_dword v7, v6, s[{S_FL}:{S_FL+3}], 0 offen sc1")
    a(f"s_mov_b64 exec, s[{st[6]}:{st[7]}]")
    if 'sigstamp' in OPT:
        a("s_waitcnt vmcnt(0)")
        stamp(a,5)
    a("k_nosig:")
    x_prefetch(a)
    q_tile(a)
    consts(a)
    a(f"s_cmp_eq_u32 s{sWV}, 0")
    a("s_cbranch_scc0 k_wait_done")
    a("k_dopoll:")
    a("v_lshlrev_b32 v6, %d, v1"%7)
    a(f"s_mov_b32 s{st[1]}, 400000")
    a("s_sleep %d"%(16 if 'slowpoll' in OPT else 4))
    a("k_poll:")
    a(f"buffer_load_dwordx4 v[8:11], v6, s[{S_FL}:{S_FL+3}], 0 offen %s"%"sc0 sc1")
    a("s_waitcnt vmcnt(0)")
    a(f"v_cmp_ne_u32 vcc, s{sB0}, v8")
    a(f"v_cmp_ne_u32 s[{st[4]}:{st[5]}], s{sB0}, v9")
    a(f"s_or_b64 vcc, vcc, s[{st[4]}:{st[5]}]")
    a(f"v_cmp_ne_u32 s[{st[4]}:{st[5]}], s{sB0}, v10")
    a(f"s_or_b64 vcc, vcc, s[{st[4]}:{st[5]}]")
    a(f"v_cmp_ne_u32 s[{st[4]}:{st[5]}], s{sB0}, v11")
    a(f"s_or_b64 vcc, vcc, s[{st[4]}:{st[5]}]")
    a("s_cmp_eq_u64 vcc, 0")
    a("s_cbranch_scc1 k_wait_done")
    a(f"s_sub_u32 s{st[1]}, s{st[1]}, 1")
    a("s_cbranch_scc1 k_wait_done")
    a("s_sleep %d"%(16 if 'slowpoll' in OPT else 4))
    a("s_branch k_poll")
    a("k_wait_done:")
    srd(a,S_B2,62,128)
    if 'sigstamp' in OPT:
        stamp(a,2)
        a(f"v_writelane_b32 v{vS}, s{st[1]}, 6")
    a("v_lshrrev_b32 v15, 2, v1")
    a(f"v_mul_u32_u24 v15, {CST}, v15")
    a("v_and_b32 v14, 3, v1")
    a("v_lshl_add_u32 v13, v14, 4, v15")
    a(f"s_mul_i32 s{st[0]}, s{sWV}, {32*CST}")
    a(f"s_lshl_b32 s{st[1]}, s2, 6")
    a(f"s_add_u32 s{st[0]}, s{st[0]}, s{st[1]}")
    a(f"s_add_u32 s{st[1]}, s{st[0]}, {16*CST}")
    a(f"s_add_u32 s{st[2]}, s{st[0]}, {TB_OFF}")
    a(f"s_add_u32 s{st[3]}, s{st[1]}, {TB_OFF}")
    a("v_lshlrev_b32 v14, 4, v1")
    a(f"s_lshl_b32 s{st[6]}, s{sWV}, 10")
    a(f"s_add_u32 s{st[5]}, s{st[6]}, 8192")
    a(f"s_add_u32 s{st[7]}, s{st[6]}, 16384")
    a("s_barrier")
    stamp(a,4)
    for k in range(2): a(f"buffer_load_dword v{HD+k}, v15, s[{S_T}:{S_T+3}], s{st[k]} offen sc1")
    for k in range(2): a(f"buffer_load_dwordx4 {vr(R+4*k)}, v13, s[{S_T}:{S_T+3}], s{st[k]} offen sc1")
    WT=W
    a(f"buffer_load_dwordx4 {vr(WT)}, v14, s[{S_W}:{S_W+3}], s{st[6]} offen sc1")
    a(f"buffer_load_dwordx4 {vr(WT+4)}, v14, s[{S_W}:{S_W+3}], s{st[5]} offen sc1")
    a(f"buffer_load_dwordx4 {vr(WT+8)}, v14, s[{S_W}:{S_W+3}], s{st[7]} offen sc1")
    for i in range(4): a(f"v_add_u32 v{KT+i}, 16, v{XO+i}")
    a("s_waitcnt vmcnt(5)")
    for k in range(2):
        a(f"v_cmp_lt_u32 vcc, 15, v{HD+k}")
        a(f"s_and_saveexec_b64 s[{st[8]}:{st[9]}], vcc")
        a(f"s_cbranch_execz k_nob_{k}")
        a(f"buffer_load_dwordx4 {vr(R+8+4*k)}, v13, s[{S_T}:{S_T+3}], s{st[2+k]} offen sc1")
        a(f"k_nob_{k}:")
        a(f"s_mov_b64 exec, s[{st[8]}:{st[9]}]")
    for k in range(2):
        for i in range(4):
            a(f"v_cmp_lt_u32 s[{sMK+2*(4*k+i)}:{sMK+2*(4*k+i)+1}], v{XO+i}, v{HD+k}")
    for k in range(2):
        for i in range(4):
            a(f"v_cmp_lt_u32 s[{sMK+2*(8+4*k+i)}:{sMK+2*(8+4*k+i)+1}], v{KT+i}, v{HD+k}")
    a(f"v_max_u32 v{vT0}, v{HD}, v{HD+1}")
    a(f"v_cmp_lt_u32 vcc, 31, v{vT0}")
    a("s_cbranch_vccz k_noovf")
    a(f"v_mov_b32 v{vT0}, {FLAG}")
    a(f"v_mov_b32 v{vT1}, 1")
    a(f"ds_write_b32 v{vT0}, v{vT1}")
    a("k_noovf:")
    a("s_waitcnt vmcnt(3)")
    if 'sigstamp' not in OPT: stamp(a,5)
    uid=[0]
    def hist(a):
        uid[0]+=1
        a(f"v_mov_b32 v{vT1}, 1")
        for e in range(8):
            a(f"v_lshrrev_b32 v{ND+e}, 26, v{R+e}")
            a(f"v_lshlrev_b32 v{RANK+e}, 2, v{ND+e}")
        for e in range(8):
            a(f"s_mov_b64 exec, s[{sMK+2*e}:{sMK+2*e+1}]")
            a(f"ds_add_rtn_u32 v{RANK+e}, v{RANK+e}, v{vT1}")
        a("s_waitcnt vmcnt(0)")
        for e in range(8,16):
            a(f"s_mov_b64 exec, s[{sMK+2*e}:{sMK+2*e+1}]")
            a(f"s_cbranch_execz k_hskip_{uid[0]}_{e}")
            a(f"v_lshrrev_b32 v{ND+e}, 26, v{R+e}")
            a(f"v_lshlrev_b32 v{RANK+e}, 2, v{ND+e}")
            a(f"ds_add_rtn_u32 v{RANK+e}, v{RANK+e}, v{vT1}")
            a(f"k_hskip_{uid[0]}_{e}:")
        a("s_mov_b64 exec, -1")
    hist(a)
    a("s_waitcnt vmcnt(0)")
    a(f"v_add_u32 v13, {WMS}, v14")
    a(f"s_lshl_b32 s{st[6]}, s{sWV}, 10")
    a(f"v_add_u32 v13, s{st[6]}, v13")
    a(f"ds_write_b128 v13, {vr(WT)}")
    a(f"ds_write_b128 v13, {vr(WT+4)} offset:8192")
    a(f"s_cmp_lt_u32 s{sWV}, 4")
    a("s_cbranch_scc0 k_w3")
    a(f"ds_write_b128 v13, {vr(WT+8)} offset:16384")
    a("k_w3:")
    a("s_waitcnt lgkmcnt(0)")
    if 'sigstamp' not in OPT: stamp(a,6)
    a("s_barrier")
    a("k_scan:")
    a(f"v_lshlrev_b32 v{vT0}, 2, v1")
    a(f"ds_read_b32 v{PN}, v{vT0} offset:{HIST}")
    a(f"v_mov_b32 v{vT1}, {FLAG}")
    a(f"ds_read_b32 v{PN+1}, v{vT1}")
    a("s_waitcnt lgkmcnt(0)")
    a(f"v_add_u32 v{PN+2}, 3, v{PN}")
    a(f"v_and_b32 v{PN+2}, -4, v{PN+2}")
    a(f"v_mov_b32 v{PN+3}, v{PN+2}")
    for sh in ("row_shr:1 row_mask:0xf","row_shr:2 row_mask:0xf","row_shr:4 row_mask:0xf","row_shr:8 row_mask:0xf","row_bcast:15 row_mask:0xa","row_bcast:31 row_mask:0xc"):
        a("s_nop 1")
        a(f"v_add_u32_dpp v{PN+3}, v{PN+3}, v{PN+3} {sh} bank_mask:0xf")
    a("s_nop 0")
    a(f"v_readlane_b32 s{sTOT}, v{PN+3}, 63")
    a(f"v_readfirstlane_b32 s{st[0]}, v{PN+1}")
    a(f"v_sub_u32 v{PN+3}, v{PN+3}, v{PN+2}")
    a(f"s_bitcmp1_b32 s{sSLOW}, 0")
    a("s_cbranch_scc1 k_okcap")
    a(f"s_cmp_gt_u32 s{sTOT}, {LCAP}")
    a(f"s_cselect_b32 s{st[1]}, 1, 0")
    a(f"s_or_b32 s{st[0]}, s{st[0]}, s{st[1]}")
    a(f"s_cmp_lg_u32 s{st[0]}, 0")
    a("s_cbranch_scc1 k_goslow")
    a("k_okcap:")
    a(f"s_add_u32 s{sNT}, s{sTOT}, 31")
    a(f"s_lshr_b32 s{sNT}, s{sNT}, 5")
    BS=A
    for e in range(8):
        a(f"v_lshlrev_b32 v{vT1}, 2, v{ND+e}")
        a(f"ds_bpermute_b32 v{BS+e}, v{vT1}, v{PN+3}")
    for e in range(8,16):
        a(f"s_cmp_eq_u64 s[{sMK+2*e}:{sMK+2*e+1}], 0")
        a(f"s_cbranch_scc1 k_bskip_{e}")
        a(f"v_lshlrev_b32 v{vT1}, 2, v{ND+e}")
        a(f"ds_bpermute_b32 v{BS+e}, v{vT1}, v{PN+3}")
        a(f"k_bskip_{e}:")
    a(f"s_cmp_eq_u32 s{sWV}, 0")
    a("s_cbranch_scc0 k_nodeg")
    a(f"ds_add_u32 v{vT0}, v{PN} offset:{DEG}")
    a(f"ds_write_b32 v{vT0}, v{PN+3} offset:{BASE}")
    a("k_nodeg:")
    a(f"s_movk_i32 s{st[0]}, 0x3fff")
    for e in range(8):
        k=(e>>2)&1
        a(f"v_lshlrev_b32 v{ND+e}, 9, v{ND+e}")
        a(f"v_bfe_u32 v{KT+e}, v{R+e}, 14, 12")
        a(f"v_and_b32 v{R+e}, s{st[0]}, v{R+e}")
        a(f"v_add_lshl_u32 v{KT+e}, v{KT+e}, v{EB+k}, 5")
        a(f"v_lshlrev_b32 v{R+e}, 7, v{R+e}")
    a("s_waitcnt lgkmcnt(0)")
    for e in range(16):
        k=(e>>2)&1
        if e>=8:
            a(f"s_mov_b64 exec, s[{sMK+2*e}:{sMK+2*e+1}]")
            a(f"s_cbranch_execz k_sskip_{e}")
            a(f"v_lshlrev_b32 v{ND+e}, 9, v{ND+e}")
            a(f"v_bfe_u32 v{vT2}, v{R+e}, 14, 12")
            a(f"v_and_b32 v{R+e}, s{st[0]}, v{R+e}")
            a(f"v_add_lshl_u32 v{vT2}, v{vT2}, v{EB+k}, 5")
            a(f"v_lshlrev_b32 v{R+e}, 7, v{R+e}")
        ev = KT+e if e<8 else vT2
        a(f"v_add_u32 v{BS+e}, v{BS+e}, v{RANK+e}")
        a(f"v_and_b32 v{vT1}, -4, v{BS+e}")
        a(f"v_lshlrev_b32 v{BS+e}, 2, v{BS+e}")
        if e<8: a(f"s_mov_b64 exec, s[{sMK+2*e}:{sMK+2*e+1}]")
        a(f"ds_write_b32 v{BS+e}, v{R+e} offset:{XL}")
        a(f"ds_write_b32 v{BS+e}, v{ev} offset:{EL}")
        a(f"ds_write_b32 v{vT1}, v{ND+e} offset:{QT}")
        if e<8: a("s_mov_b64 exec, -1")
        else: a(f"k_sskip_{e}:")
    a("s_mov_b64 exec, -1")
    a(f"s_mov_b32 m0, s{sXS}")
    a("s_waitcnt vmcnt(0) lgkmcnt(0)")
    stamp(a,7)
    a("s_barrier")
    stamp(a,8,12)
    a("k_main:")
    a(f"s_cmp_lg_u32 s{sSAFE}, 0")
    a("s_cbranch_scc1 k_main_safe")
    main_loop(a,"pair")
    a("s_branch k_mjoin")
    a("k_main_safe:")
    main_loop(a,"safe")
    a("k_mjoin:")
    a("s_waitcnt vmcnt(0) lgkmcnt(0)")
    stamp(a,9,13)
    W2F=D[0]; B2R=KT
    a(f"s_cmp_ge_u32 s{sWV}, 4")
    a("s_cbranch_scc1 k_now2")
    a(f"s_and_b32 s{st[0]}, s{sWV}, 1")
    a(f"s_lshl_b32 s{st[1]}, s{st[0]}, 13")
    a(f"s_add_u32 s{st[1]}, s{st[1]}, {20*1024}")
    a(f"s_add_u32 s{st[2]}, s{st[1]}, 4096")
    a("v_lshlrev_b32 v14, 4, v1")
    for ks in range(8):
        a(f"buffer_load_dwordx4 {vr(W2F+4*ks)}, v14, s[{S_W}:{S_W+3}], s{st[1+(ks>>2)]} offen offset:{(ks&3)*1024} sc1")
    a("v_lshrrev_b32 v5, 5, v1")
    a(f"s_lshl_b32 s{st[3]}, s{st[0]}, 6")
    a(f"v_lshl_add_u32 v13, v5, 3, s{st[3]}")
    for q in range(4): a(f"buffer_load_dwordx2 {vr(B2R+2*q,2)}, v13, s[{S_B2}:{S_B2+3}], 0 offen offset:{q*16}")
    a("k_now2:")
    SR=EE
    a(f"v_lshlrev_b32 v9, 4, v1")
    a(f"v_add_u32 v9, {SEG}, v9")
    for r in range(5):
        a(f"v_add_u32 v{A+2*r}, s{sRA+r}, v9")
        a(f"v_add_u32 v{A+2*r+1}, s{sRB+r}, v9")
    a("s_barrier")
    for r in range(5):
        for t in range(2): a(f"ds_read_b128 {vr(SR+8*r+4*t)}, v{A+2*r+t}")
    for r in range(5):
        a(f"s_waitcnt lgkmcnt({8-2*r})")
        for c in range(2):
            a(f"v_add_f32 v{SR+8*r+2*c}, v{SR+8*r+2*c}, v{SR+8*r+2*c+1}")
            a(f"v_add_f32 v{SR+8*r+4+2*c}, v{SR+8*r+4+2*c}, v{SR+8*r+4+2*c+1}")
            a(f"v_add_f32 v{HR+2*r+c}, v{HR+2*r+c}, v{SR+8*r+2*c}")
            a(f"v_add_f32 v{HR+2*r+c}, v{HR+2*r+c}, v{SR+8*r+4+2*c}")
    for r in range(5):
        a(f"k_more_{r}:")
        a(f"s_cmp_eq_u32 s{sRM+r}, 0")
        a(f"s_cbranch_scc1 k_moredone_{r}")
        a(f"s_ff1_i32_b32 s{st[4]}, s{sRM+r}")
        a(f"s_add_u32 s{st[5]}, s{st[4]}, s{sWV}")
        a(f"s_add_u32 s{st[5]}, s{st[5]}, {8*r}")
        a(f"s_lshl_b32 s{st[5]}, s{st[5]}, 10")
        a(f"v_add_u32 v10, s{st[5]}, v9")
        a(f"ds_read_b128 {vr(SR)}, v10")
        a(f"s_add_u32 s{st[4]}, s{sRM+r}, -1")
        a(f"s_and_b32 s{sRM+r}, s{sRM+r}, s{st[4]}")
        a("s_waitcnt lgkmcnt(0)")
        for c in range(2):
            a(f"v_add_f32 v{SR+2*c}, v{SR+2*c}, v{SR+2*c+1}")
            a(f"v_add_f32 v{HR+2*r+c}, v{HR+2*r+c}, v{SR+2*c}")
        a(f"s_branch k_more_{r}")
        a(f"k_moredone_{r}:")
    a(f"s_bitcmp1_b32 s{sSLOW}, 0")
    a("s_cbranch_scc0 k_epi")
    a("s_waitcnt vmcnt(0)")
    a("s_barrier")
    a(f"s_add_u32 s{sB0}, s{sB0}, 2048")
    a(f"s_cmp_lt_u32 s{sB0}, {E}")
    a("s_cbranch_scc1 k_slowfetch")
    a("s_branch k_epi")
    a("k_goslow:")
    a(f"s_or_b32 s{sSLOW}, s{sSLOW}, 1")
    a(f"s_mov_b32 s{sSAFE}, 1")
    a(f"s_mov_b32 s{sB0}, 0")
    a("s_waitcnt lgkmcnt(0)")
    a("s_barrier")
    a("k_slowfetch:")
    a(f"s_lshl_b32 s{st[0]}, s{sB0}, 2")
    a(f"v_lshlrev_b32 v{vT1}, 4, v0")
    a(f"v_add_u32 v{vT1}, s{st[0]}, v{vT1}")
    a(f"buffer_load_dwordx4 {vr(A)}, v{vT1}, s[{S_DST}:{S_DST+3}], 0 offen")
    a(f"buffer_load_dwordx4 {vr(A+4)}, v{vT1}, s[{S_SRC}:{S_SRC+3}], 0 offen")
    a(f"v_lshlrev_b32 v{vT0}, 4, v0")
    init_lists(a,KT,KT+4)
    for i in range(4): a(f"v_mov_b32 v{PD+i}, 0")
    fill_region(a,HIST,256,PD)
    a(f"v_lshlrev_b32 v{EB}, 2, v0")
    a(f"v_add_u32 v{EB}, s{sB0}, v{EB}")
    a(f"s_mov_b32 s{st[0]}, {MAGIC}")
    a(f"s_mov_b32 s{st[1]}, {E}")
    a("s_waitcnt vmcnt(0)")
    for i in range(4):
        a(f"v_mul_hi_u32 v{A+8+i}, v{A+i}, s{st[0]}")
        a(f"v_subrev_u32 v{A+i}, s{sNB}, v{A+i}")
        a(f"v_lshlrev_b32 v{A+i}, 26, v{A+i}")
        a(f"v_or_b32 v{R+i}, v{A+i}, v{A+4+i}")
        if i: a(f"v_or_b32 v{R+i}, {i<<14}, v{R+i}")
    a(f"v_cmp_gt_u32 vcc, s{st[1]}, v{EB}")
    for i in range(4):
        a(f"v_cmp_eq_u32 s[{sMK+2*i}:{sMK+2*i+1}], s2, v{A+8+i}")
        a(f"s_and_b64 s[{sMK+2*i}:{sMK+2*i+1}], s[{sMK+2*i}:{sMK+2*i+1}], vcc")
    for e in range(4,16): a(f"s_mov_b64 s[{sMK+2*e}:{sMK+2*e+1}], 0")
    a("s_waitcnt lgkmcnt(0)")
    a("s_barrier")
    hist(a)
    a("s_waitcnt lgkmcnt(0)")
    a("s_barrier")
    a("s_branch k_scan")
    a("k_epi:")
    stamp(a,10)
    a(f"s_mul_i32 s{st[3]}, s{sWV}, 272")
    a(f"s_add_u32 s{st[3]}, s{st[3]}, {HH}")
    a(f"v_lshl_add_u32 v4, v1, 2, s{st[3]}")
    a(f"s_mov_b32 s{st[4]}, {f2u(-0.6931471805599453*2.0**-24):#x}")
    a(f"s_mov_b32 s{st[5]}, 0xffff0000")
    a(f"v_mov_b32 v5, 0x207")
    a(f"s_mov_b64 s[{st[6]}:{st[7]}], 0")
    HV=A; T=PD
    for x in range(10):
        a(f"v_cmp_class_f32 vcc, v{HR+x}, v5")
        a(f"v_mul_f32 v{HV+x}, s{st[4]}, v{HR+x}")
        a(f"s_or_b64 s[{st[6]}:{st[7]}], s[{st[6]}:{st[7]}], vcc")
    for r in range(5):
        h0=HV+2*r; t=EE+4*r
        a(f"v_cvt_pk_bf16_f32 v{t}, v{h0}, v{h0+1}")
        a(f"v_lshlrev_b32 v{t+1}, 16, v{t}")
        a(f"v_and_b32 v{t+2}, s{st[5]}, v{t}")
        a(f"ds_write_b32 v4, v{t} offset:{r*8*272}")
        a(f"v_sub_f32 v{t+1}, v{h0}, v{t+1}")
        a(f"v_sub_f32 v{t+2}, v{h0+1}, v{t+2}")
        a(f"v_cvt_pk_bf16_f32 v{t+3}, v{t+1}, v{t+2}")
        a(f"ds_write_b32 v4, v{t+3} offset:{r*8*272+HL-HH}")
    a(f"s_cmp_eq_u64 s[{st[6]}:{st[7]}], 0")
    a("s_cbranch_scc1 k_fin")
    a(f"v_mov_b32 v{vT0}, {FLAG+4}")
    a(f"v_mov_b32 v{vT1}, 1")
    a(f"ds_write_b32 v{vT0}, v{vT1}")
    a("k_fin:")
    a("s_waitcnt lgkmcnt(0)")
    stamp(a,1)
    a("s_barrier")
    a(f"v_mov_b32 v{vT0}, {FLAG+4}")
    a(f"ds_read_b32 v{vT1}, v{vT0}")
    a(f"s_lshr_b32 s{st[1]}, s{sWV}, 1")
    a("v_and_b32 v4, 31, v1")
    a("v_lshrrev_b32 v5, 5, v1")
    a(f"s_lshl_b32 s{st[2]}, s{st[1]}, 5")
    a(f"v_add_u32 v6, s{st[2]}, v4")
    a("s_waitcnt lgkmcnt(0)")
    a(f"v_readfirstlane_b32 s{st[0]}, v{vT1}")
    a(f"s_andn2_b32 s{st[0]}, s{st[0]}, s{sSAFE}")
    a(f"s_cmp_lg_u32 s{st[0]}, 0")
    a("s_cbranch_scc0 k_final")
    a(f"s_mov_b32 s{sSAFE}, 1")
    a("s_waitcnt vmcnt(0)")
    for i in range(10): a(f"v_mov_b32 v{HR+i}, 0")
    a("s_barrier")
    a("s_branch k_main")
    a("k_final:")
    if dbg=="stamp":
        a(f"s_cmp_ge_u32 s{sWV}, 4")
        a("s_cbranch_scc0 k_final2")
        stamp_out(a)
        a("s_endpgm")
        a("k_final2:")
    a(f"s_cmp_ge_u32 s{sWV}, 4")
    a("s_cbranch_scc1 k_end")
    a("v_mul_u32_u24 v7, 272, v6")
    a("v_lshl_add_u32 v7, v5, 4, v7")
    a(f"v_add_u32 v7, {HH}, v7")
    a("v_lshlrev_b32 v8, 2, v6")
    a(f"ds_read_b32 v9, v8 offset:{DEG}")
    rd=[]
    for ks in range(8):
        rd.append(f"ds_read_b128 {vr(W+8*ks)}, v7 offset:{ks*32}")
        rd.append(f"ds_read_b128 {vr(W+8*ks+4)}, v7 offset:{ks*32+HL-HH}")
    for x in rd[:14]: a(x)
    a(f"s_mov_b32 s{st[5]}, 0xffff0000")
    BU=A; OD=EE
    a("s_waitcnt vmcnt(0)")
    waits=[13,13,13,12,11,10,9,8,7,6,5,4,3,2,1,0]
    for n in range(16):
        ks=n>>1
        a(f"s_waitcnt lgkmcnt({waits[n]})")
        a(mfma(OD,W2F+4*ks,W+8*ks+4*(n&1),None if n==0 else OD))
        if n<2: a(rd[14+n])
        if n&1:
            q,c=ks>>1,ks&1
            a(f"v_lshlrev_b32 v{BU+4*q+2*c}, 16, v{B2R+2*q+c}")
            a(f"v_and_b32 v{BU+4*q+2*c+1}, s{st[5]}, v{B2R+2*q+c}")
    a("v_cvt_f32_u32 v9, v9")
    a(f"s_and_b32 s{st[0]}, s{sWV}, 1")
    a(f"s_lshl_b32 s{st[0]}, s{st[0]}, 6")
    a(f"v_add_u32 v10, s{sNB}, v6")
    a("v_lshlrev_b32 v10, 7, v10")
    a("v_lshl_add_u32 v10, v5, 3, v10")
    a(f"v_add_u32 v10, s{st[0]}, v10")
    a(f"v_cmp_gt_u32 vcc, s{sNN}, v6")
    a("s_nop 7")
    for r in range(16): a(f"v_fma_f32 v{OD+r}, v9, v{BU+r}, v{OD+r}")
    for q in range(4):
        a(f"v_cvt_pk_bf16_f32 v{PD+2*q}, v{OD+4*q}, v{OD+4*q+1}")
        a(f"v_cvt_pk_bf16_f32 v{PD+2*q+1}, v{OD+4*q+2}, v{OD+4*q+3}")
    a(f"s_and_saveexec_b64 s[{st[6]}:{st[7]}], vcc")
    a("s_cbranch_execz k_end")
    for q in range(4): a(f"buffer_store_dwordx2 {vr(PD+2*q,2)}, v10, s[{S_O}:{S_O+3}], 0 offen offset:{q*16}")
    if dbg=="stamp":
        a("s_mov_b64 exec, -1")
        a("s_waitcnt vmcnt(0)")
        stamp(a,2)
        stamp_out(a)
    if dbg=="dbgtime":
        a("s_mov_b64 exec, -1")
        a("s_waitcnt vmcnt(0)")
        dstamp(a,6)
    a("k_end:")
    a("s_endpgm")
    return a
```

```python
import sys, os
from common import *
import k7
HEADER=open(os.path.join(os.path.dirname(os.path.abspath(__file__)),"header.txt")).read()
def build(path, dbg=None):
    kk=k7.gen(dbg)
    L=kk.lines
    i0=L.index('L_F_pair:'); i1=L.index('L_fin_pair:')
    def filt(pred): kk.lines=[l for i,l in enumerate(kk.lines) if not (i0<i<i1 and pred(l))]
    import re
    if 'sim4' in OPT: filt(lambda l: l.startswith(f'v_pk_mul_f32 v[{k7.PN}') or l.startswith(f'v_pk_mul_f32 v[{k7.PN+2}') or l.startswith(f'v_pk_mul_f32 v[{k7.PN+4}') or l.startswith(f'v_pk_mul_f32 v[{k7.PN+6}'))
    if 'noq' in OPT: filt(lambda l: l.startswith('v_mfma') and (f'v[{k7.ACF}:' in l or f'v[{k7.ADY}:' in l or f'v[{k7.ACS}:' in l))
    if 'nox2' in OPT: filt(lambda l: l.startswith('v_mfma') and (f', v[{k7.A+4}:' in l or f', v[{k7.A+8}:' in l))
    if 'norcp' in OPT: filt(lambda l: l.startswith('v_rcp'))
    if 'noexp' in OPT: filt(lambda l: l.startswith('v_exp'))
    errs=check(kk.lines,"k7") if not (OPT-{''}) else []
    for tag in ("pair","safe"):
        for t1 in ("F","S","T1","T2","T3"):
            for t2 in ("F","S","T1","T2","T3"):
                if tag=="safe" and (t1!="S" or t2!="S"): continue
                errs+=check(k7.tile(t1,tag)[-40:]+k7.tile(t2,tag)[:60],f"{tag}{t1}{t2}")
    for e in errs: print("HAZARD",e)
    vg=256 if dbg else k7.NVGPR
    s=HEADER
    s+=f"; @launch grid=(256,1,1) block=(512,1,1) lds={k7.LDS_BYTES}\n"
    s+='.amdgcn_target "amdgcn-amd-amdhsa--gfx950"\n.text\n'
    s+=kernel_text(k7.KNAME,kk)
    s+='.section .rodata,"a"\n'
    s+=desc(k7.KNAME,vg,102)
    open(path,"w").write(s)
    print("wrote",path,len(s),"bytes; LDS",k7.LDS_BYTES,"hazards",len(errs))
if __name__=="__main__":
    out=sys.argv[1] if len(sys.argv)>1 else f"cdna_kernels/{NAME}.s"
    build(out, sys.argv[2] if len(sys.argv)>2 else None)
```

```python
from common import *
KNAME="gather_scatter__edge_featured_mpnn_mpnn__graph_kernel"
WF_OFF=9<<20
FL_OFF=WF_OFF+65536
CST=16640
TB_OFF=256*CST
LCAP=3328
HIST=0; DEG=256; PADC=512; FLAG=768; BASE=832
XL=1088; EL=XL+LCAP*4; QT=EL+LCAP*4; QP=QT+LCAP; XS=QP+41*512; XS_W=4160
ES=86016; assert XS+8*XS_W<=ES
SEG=ES+8*2048; ZROW=57; LDS_BYTES=SEG+58*1024
HH=XS; HL=HH+40*272; assert HL+64*272<=SEG
WST=XS
WMS=SEG+1024
CNT=SEG; IMG=SEG+1024; IMG_S=144; assert IMG+256*IMG_S<=SEG+ZROW*1024
SENT=0x7FFFFF00
XBIAS=3120
W=16; A=96; D=[116,132]; EE=148; PD=164; PN=172; ACC=180; FQ=188; ACF=196; ACS=200; QB=204; QA=208; KT=212
XO=220; EO=224; vXLa=225; vELa=226; vQTa=227; QTV=228
vXc=232; vEc=233; vAx01=234; vAx23=235; vAe=236; vQc=237; vSegB=238; vPN=239; vPA=240; vT0=241; vT1=242; vT2=243
HR=244
ADY=8
NVGPR=254
vS=254
S_X=4; S_E=8; S_T=12; S_W=16; S_O=20; S_B1=24; S_B2=28; S_SRC=32; S_DST=36
sSC=40; sWV=42; sNB=43; sNN=44; sNT=45; sTOT=46; sSLOW=47; sMK=48
S_WR=68; S_DBG=72; S_FL=76; S_W1=28
sSAFE=80; sB0=81; sCNT=82; sXO=83; sXS=86; sES=87; sME=88; sNW=89
st=[90,91,92,93,94,95,96,97,98,99]
XBYTES=N*128; EBYTES=E*32
DBG=[None]
def Wf(j,k): return W+(j*5+k)*4
def mfma(d,a_,b_,c=None):
    cs = "0" if c is None else vr(c,16)
    return f"v_mfma_f32_32x32x16_bf16 {vr(d,16)}, {vr(a_)}, {vr(b_)}, {cs}"
def chain(Dn,j):
    L=[mfma(Dn,A+0,Wf(j,0),None)]
    for k in range(1,4): L.append(mfma(Dn,A+4*k,Wf(j,k),Dn))
    L.append(mfma(Dn,A+16,Wf(j,4),Dn))
    return L
def qmf(Dn,j,typ):
    if typ=="F": return mfma(Dn,ACF,FQ+2*j,Dn)
    if typ[0]=="T": return mfma(Dn,ADY,FQ+2*j,Dn)
    return mfma(Dn,ACS,QB,Dn)
def dstamp(a,slot):
    a(f"s_cmp_eq_u32 s{sWV}, 0")
    a(f"s_cbranch_scc0 ds_skip_{slot}")
    a("s_mov_b32 s97, 0")
    a("s_cmp_eq_u32 s2, 0")
    a(f"s_cbranch_scc1 ds_go_{slot}")
    a("s_mov_b32 s97, 28")
    a("s_cmp_eq_u32 s2, 255")
    a(f"s_cbranch_scc0 ds_skip_{slot}")
    a(f"ds_go_{slot}:")
    a("s_memrealtime s[100:101]")
    a("s_load_dwordx2 s[98:99], s[0:1], 72")
    a("s_waitcnt lgkmcnt(0)")
    a("v_mov_b32 v254, s100")
    a("v_mov_b32 v255, s97")
    a(f"global_store_dword v255, v254, s[98:99] offset:{4+slot*4}")
    a(f"ds_skip_{slot}:")
def stamp(a,idx,extra=None):
    if DBG[0]=="dbgtime":
        m={0:0,3:1,4:2,8:3,9:4,10:5}
        if idx in m: dstamp(a,m[idx])
        return
    if DBG[0]!="stamp": return
    a("s_memrealtime s[100:101]")
    a("s_waitcnt lgkmcnt(0)")
    a(f"v_writelane_b32 v{vS}, s100, {idx}")
    if extra is not None:
        a("s_memtime s[100:101]")
        a("s_waitcnt lgkmcnt(0)")
        a(f"v_writelane_b32 v{vS}, s100, {extra}")
def stamp_out(a):
    if DBG[0]!="stamp": return
    a(f"v_writelane_b32 v{vS}, s{sNT}, 14")
    a("s_load_dwordx2 s[92:93], s[0:1], 80")
    a("s_waitcnt lgkmcnt(0)")
    a(f"s_add_u32 s92, s92, {(17<<20)}")
    a("s_addc_u32 s93, s93, 0")
    a("s_and_b32 s93, s93, 0xffff")
    a("s_mov_b32 s94, 0x100000")
    a("s_mov_b32 s95, 0x20000")
    a("v_lshrrev_b32 v2, 6, v0")
    a("s_lshl_b32 s96, s2, 4")
    a("v_add_u32 v2, s96, v2")
    a("v_lshlrev_b32 v2, 6, v2")
    a("v_and_b32 v3, 63, v0")
    a("v_lshl_add_u32 v2, v3, 2, v2")
    a("v_cmp_gt_u32 vcc, 32, v3")
    a("s_and_saveexec_b64 s[96:97], vcc")
    a("v_cmp_gt_u32 vcc, 16, v3")
    a("s_and_b64 exec, exec, vcc")
    a(f"buffer_store_dword v{vS}, v2, s[92:95], 0 offen")
    a("s_mov_b64 exec, s[96:97]")

def dma_x():
    L=[]
    for i in range(4):
        so = f"s{sXO+i}" if i<3 else "0"
        off = f" offset:{i*1040}" if i else ""
        L.append(f"buffer_load_dwordx4 v{XO+i}, s[{S_X}:{S_X+3}], {so} offen{off} lds")
    return L
def dma_e(slot=None, filler="s_nop 0"):
    m = f"s_mov_b32 m0, s{sME}" if slot is None else f"s_add_u32 m0, s{sES}, {slot*1024}"
    return [[m,filler,f"buffer_load_dwordx4 v{EO}, s[{S_E}:{S_E+3}], 0 offen nt lds", f"s_mov_b32 m0, s{sXS}"]]
def read_A():
    return [f"ds_read_b128 {vr(A+0)}, v{vAx01}", f"ds_read_b128 {vr(A+4)}, v{vAx01} offset:32",
            f"ds_read_b128 {vr(A+8)}, v{vAx23} offset:64", f"ds_read_b128 {vr(A+12)}, v{vAx23} offset:96",
            f"ds_read_b128 {vr(A+16)}, v{vAe}"]
def off_calc():
    return [f"v_add_u32 v{XO+i}, v{XO+i}, v{vXc}" for i in range(4)]+[f"v_add_u32 v{EO}, v{EO}, v{vEc}"]
def flat(L):
    out=[]
    for x in L: out+= x if isinstance(x,list) else [x]
    return out

def stage(j, typ, variant, last, side_exp=[], side_pk=[], head=[], side_late=[]):
    Dc=D[j&1]; Dn=D[(j+1)&1]; jn=(j+1)&3
    L=list(head)
    if typ=="S" and not last:
        L+=[f"ds_read_b32 v{QB+i}, v{QA+i} offset:{jn*128}" for i in range(4)]
    ex=[f"v_exp_f32 v{EE+i}, v{Dc+i}" for i in range(16)]
    ph1=interleave(ex,chain(Dn,jn),3)
    if 'prioB' in OPT: L.append("s_setprio 1")
    if 'prioC' in OPT: L.append("s_setprio 0")
    L+=weave(ph1,side_exp,1)
    if 'prioB' in OPT: L.append("s_setprio 0")
    if 'prioC' in OPT: L.append("s_setprio 1")
    pk1=[f"v_pk_fma_f32 {vr(EE+2*i,2)}, {vr(EE+2*i,2)}, s[{sSC}:{sSC+1}], s[{sSC}:{sSC+1}]" for i in range(8)]
    q=[] if last else [qmf(Dn,jn,typ)]
    wq=[f"s_waitcnt lgkmcnt({5 if j==2 else 0})"] if (typ=="S" and not last) else []
    if variant=="pair":
        pk1+=[f"v_pk_mul_f32 {vr(PD+2*k,2)}, {vr(EE+4*k,2)}, {vr(EE+4*k+2,2)}" for k in range(4)]
        pk1+=[f"v_pk_mul_f32 {vr(PN+2*k,2)}, {vr(Dc+4*k,2)}, {vr(EE+4*k+2,2)}" for k in range(4)]
        L+=weave(pk1,side_pk,1)
        rc=[f"v_rcp_f32 v{PD+i}, v{PD+i}" for i in range(8)]
        L+=[rc[0]]+wq+q+weave(rc[1:],side_late,1)
        L+=[f"v_pk_fma_f32 {vr(PN+2*k,2)}, {vr(Dc+4*k+2,2)}, {vr(EE+4*k,2)}, {vr(PN+2*k,2)}" for k in range(4)]
        if typ=="F":
            L+=[f"v_pk_fma_f32 {vr(ACC+2*j,2)}, {vr(PN+2*k,2)}, {vr(PD+2*k,2)}, {vr(ACC+2*j,2)}" for k in range(4)]
            return L
        if typ[0]=="T":
            kb=int(typ[1])
            L.append(f"v_pk_mul_f32 {vr(PN+2*kb,2)}, {vr(PN+2*kb,2)}, {vr(PD+2*kb,2)}")
            for k in range(4):
                if k==kb:
                    L.append(f"ds_write_b64 v{KT+1}, {vr(ACC+2*j,2)} offset:{j*256}")
                    L.append(f"v_pk_fma_f32 {vr(ACC+2*j,2)}, {vr(ACC+2*j,2)}, {vr(KT,2)}, {vr(PN+2*k,2)} op_sel_hi:[1,0,1]")
                else:
                    L.append(f"v_pk_fma_f32 {vr(ACC+2*j,2)}, {vr(PN+2*k,2)}, {vr(PD+2*k,2)}, {vr(ACC+2*j,2)}")
            return L
        L+=[f"v_pk_mul_f32 {vr(PN+2*k,2)}, {vr(PN+2*k,2)}, {vr(PD+2*k,2)}" for k in range(4)]
    else:
        L+=weave(pk1,side_pk,1)
        rc=[f"v_rcp_f32 v{EE+i}, v{EE+i}" for i in range(16)]
        L+=[rc[0]]+wq+q+weave(rc[1:],side_late,1)
        L+=[f"v_pk_mul_f32 {vr(PN+2*k,2)}, {vr(Dc+4*k,2)}, {vr(EE+4*k,2)}" for k in range(4)]
        L+=[f"v_pk_fma_f32 {vr(PN+2*k,2)}, {vr(Dc+4*k+2,2)}, {vr(EE+4*k+2,2)}, {vr(PN+2*k,2)}" for k in range(4)]
    for k in range(4):
        L.append(f"ds_write_b64 v{KT+2*k+1}, {vr(ACC+2*j,2)} offset:{j*256}")
        L.append(f"v_pk_fma_f32 {vr(ACC+2*j,2)}, {vr(ACC+2*j,2)}, {vr(KT+2*k,2)}, {vr(PN+2*k,2)} op_sel_hi:[1,0,1]")
    return L

def tile(typ, variant):
    L=[]
    lists=[f"ds_read_b128 {vr(XO)}, v{vXLa}", f"ds_read_b32 v{EO}, v{vELa}"]
    qtread=[f"ds_read_b128 {vr(QTV)}, v{vQTa}"]
    incs=[f"v_add_u32 v{vXLa}, 64, v{vXLa}", f"v_add_u32 v{vELa}, 64, v{vELa}", f"v_add_u32 v{vQTa}, 16, v{vQTa}"]
    srdsel=[f"s_cmp_gt_u32 s{sCNT}, 2", f"s_cselect_b32 s{S_E+2}, {EBYTES}, 0"]
    if typ=="F":
        L.append(qmf(D[0],0,"F"))
        L+=lists+qtread+incs+srdsel+["s_nop 3"]
    elif typ[0]=="T":
        kb=int(typ[1]); M=st[2*kb]
        lit={1:0xFFFFFF00,2:0xFFFF0000,3:0xFF000000}[kb]
        L+=[f"v_add_u32 v{QA}, v{QTV+3}, v{vQc}"]
        L+=[f"ds_read_b32 v{FQ+2*j+1}, v{QA} offset:{j*128}" for j in range(4)]
        L+=[f"s_and_b32 s{st[8]}, s{M}, {lit:#x}", f"s_and_b32 s{st[9]}, s{M+1}, {lit:#x}"]
        L+=[f"v_cndmask_b32_e64 v{KT}, 1.0, 0, s[{M}:{M+1}]", f"v_mov_b32 v{KT+1}, v{vPA}",
            f"v_cndmask_b32_e64 v{ADY}, v{ACF}, 0, s[{st[8]}:{st[9]}]", f"v_cndmask_b32_e64 v{ADY+1}, 0, v{ACF}, s[{st[8]}:{st[9]}]",
            f"v_lshl_add_u32 v{vPA}, v{QTV+3}, 1, v{vSegB}", f"v_mov_b32 v{vPN}, v{QTV+3}"]
        L+=lists+["s_waitcnt lgkmcnt(2)", qmf(D[0],0,typ)]
        L+=qtread+incs+srdsel+["s_nop 5"]
    else:
        L+=[f"v_add_u32 v{QA+i}, v{QTV+i}, v{vQc}" for i in range(4)]
        L+=[f"ds_read_b32 v{QB+i}, v{QA+i}" for i in range(4)]
        L+=[f"ds_read_b32 v{FQ+2*j}, v{QA+3} offset:{j*128}" for j in range(4)]
        L+=[f"v_cmp_eq_u32 s[{st[0]}:{st[1]}], v{QTV}, v{vPN}"]
        L+=[f"v_cmp_eq_u32 s[{st[0]+2*k}:{st[1]+2*k}], v{QTV+k}, v{QTV+k-1}" for k in range(1,4)]
        L+=[f"v_mov_b32 v{KT+1}, v{vPA}"]
        L+=[f"v_lshl_add_u32 v{KT+2*k+1}, v{QTV+k-1}, 1, v{vSegB}" for k in range(1,4)]
        L+=[f"v_lshl_add_u32 v{vPA}, v{QTV+3}, 1, v{vSegB}", f"v_mov_b32 v{vPN}, v{QTV+3}"]
        L+=[f"v_cndmask_b32_e64 v{KT+2*k}, 0, 1.0, s[{st[0]+2*k}:{st[1]+2*k}]" for k in range(4)]
        L+=["s_waitcnt lgkmcnt(0)", qmf(D[0],0,"S")]
        L+=lists+qtread+incs+srdsel+["s_nop 3"]
    PR=os.environ.get("PR","1110")
    L=[f"s_setprio {PR[0]}"]+L
    L+=stage(0,typ,variant,False)
    if PR[1]!=PR[0]: L.append(f"s_setprio {PR[1]}")
    head1=["s_waitcnt lgkmcnt(0)"]
    side1=[f"v_cmp_ne_u32 vcc, v{QTV+3}, v{vPN}"]+off_calc()
    L+=stage(1,typ,variant,False,side_exp=side1,head=head1)
    rA=read_A()
    if PR[2]!=PR[1]: L.append(f"s_setprio {PR[2]}")
    L+=stage(2,typ,variant,False,side_pk=[["s_waitcnt vmcnt(1)",rA[0]]]+rA[1:])
    if PR[3]!=PR[2]: L.append(f"s_setprio {PR[3]}")
    dx=dma_x(); de=dma_e(None,f"s_xor_b32 s{sME}, s{sME}, 1024")
    L+=stage(3,typ,variant,True,head=["s_waitcnt lgkmcnt(0)"],side_exp=dx[:3],side_pk=[dx[3]]+de,
             side_late=[f"v_xor_b32 v{vAe}, 1024, v{vAe}"]+([f"v_mov_b32 v{FQ+2*j}, v{FQ+2*j+1}" for j in range(4)] if typ[0]=="T" else []))
    return L

def wread(a,tag):
    a(f"s_bitcmp1_b32 s{sSLOW}, 1")
    a(f"s_cbranch_scc1 k_wdone_{tag}")
    a(f"s_or_b32 s{sSLOW}, s{sSLOW}, 2")
    a("v_lshlrev_b32 v14, 4, v1")
    a(f"v_add_u32 v14, {WMS}, v14")
    for f in range(20): a(f"ds_read_b128 {vr(W+4*f)}, v14 offset:{f*1024}")
    a("s_waitcnt lgkmcnt(0)")
    a("s_barrier")
    a(f"k_wdone_{tag}:")
sRA=48; sRB=53; sRM=58
def seg_prep(a,tag):
    a(f"v_lshlrev_b32 v{vT0}, 2, v1")
    a(f"ds_read_b32 v2, v{vT0} offset:{BASE}")
    a(f"ds_read_b32 v12, v{vT0} offset:{BASE+4}")
    a(f"ds_read_b32 v13, v{vT0} offset:{HIST}")
    a(f"v_lshlrev_b32 v14, 3, v1")
    a(f"s_lshl_b32 s{st[3]}, s{sWV}, 9")
    a(f"s_add_u32 s{st[3]}, s{st[3]}, {QP}")
    a(f"v_add_u32 v14, s{st[3]}, v14")
    QR=EE
    for r in range(5): a(f"ds_read_b64 {vr(QR+2*r,2)}, v14 offset:{r*8*512}")
    a(f"s_lshr_b32 s{st[0]}, s{sNT}, 3")
    a(f"s_and_b32 s{st[1]}, s{sNT}, 7")
    a("v_lshrrev_b32 v3, 1, v1")
    a("v_and_b32 v4, 1, v1")
    a(f"v_cmp_gt_u32 vcc, s{st[1]}, v3")
    a(f"v_mul_u32_u24 v6, s{st[0]}, v3")
    a(f"v_min_u32 v7, s{st[1]}, v3")
    a(f"v_cndmask_b32_e64 v5, 0, 1, vcc")
    a(f"v_add_u32 v5, s{st[0]}, v5")
    a("v_add_u32 v6, v6, v7")
    a("v_lshlrev_b32 v6, 3, v6")
    a("v_lshlrev_b32 v5, 2, v5")
    a("v_mul_u32_u24 v7, v5, v4")
    a("v_add_u32 v6, v6, v7")
    a("v_add_u32 v7, v6, v5")
    a("v_cmp_gt_u32 vcc, 16, v1")
    a("v_mov_b32 v15, 0x7fffffff")
    a(f"s_mov_b32 s{st[9]}, 0xffff0000")
    a("v_cndmask_b32 v6, v15, v6, vcc")
    a("s_waitcnt lgkmcnt(0)")
    a("v_sub_u32 v12, v12, v2")
    a("v_sub_u32 v12, v12, v13")
    a("v_cvt_f32_u32 v12, v12")
    TA=PD; TB=PN
    for x in range(10):
        ta=(PD+x if x<8 else QB+x-8);
        a(f"v_lshlrev_b32 v{ta}, 16, v{QR+x}")
        a(f"v_and_b32 v{TB+x}, s{st[9]}, v{QR+x}")
        a(f"v_add_f32 v{ta}, v{ta}, v{TB+x}")
    for x in range(10): a(f"v_exp_f32 v{TB+x}, v{(PD+x if x<8 else QB+x-8)}")
    for r in range(5):
        a(f"s_add_u32 s{st[2]}, s{sWV}, {8*r}")
        a(f"s_add_u32 s{st[3]}, s{st[2]}, 1")
        a(f"v_readlane_b32 s{st[4]}, v2, s{st[2]}")
        a(f"v_readlane_b32 s{st[5]}, v2, s{st[3]}")
        a(f"v_readlane_b32 s{sRA+r}, v12, s{st[2]}")
        for x in (2*r,2*r+1): a(f"v_fma_f32 v{TB+x}, v{TB+x}, s{sSC}, s{sSC}")
        a(f"s_lshr_b32 s{st[4]}, s{st[4]}, 2")
        a(f"s_lshr_b32 s{st[5]}, s{st[5]}, 2")
        for x in (2*r,2*r+1): a(f"v_rcp_f32 v{TB+x}, v{TB+x}")
        a(f"v_cmp_gt_u32 vcc, s{st[5]}, v6")
        a(f"v_cmp_lt_u32 s[{st[6]}:{st[7]}], s{st[4]}, v7")
        for x in (2*r,2*r+1): a(f"v_mul_f32 v{TB+x}, v{(PD+x if x<8 else QB+x-8)}, v{TB+x}")
        a(f"s_and_b64 vcc, vcc, s[{st[6]}:{st[7]}]")
        for x in (2*r,2*r+1): a(f"v_fma_f32 v{HR+x}, -v{TB+x}, s{sRA+r}, v{HR+x}")
        a(f"s_cmp_lt_u32 s{st[4]}, s{st[5]}")
        a(f"s_cselect_b32 s{sRM+r}, vcc_lo, 0")
        for t,dst in ((0,sRA+r),(1,sRB+r)):
            a(f"s_ff1_i32_b32 s{st[4]}, s{sRM+r}")
            a(f"s_add_u32 s{st[5]}, s{st[4]}, s{st[2]}")
            a(f"s_cmp_eq_u32 s{sRM+r}, 0")
            a(f"s_cselect_b32 s{st[5]}, {ZROW}, s{st[5]}")
            a(f"s_lshl_b32 s{dst}, s{st[5]}, 10")
            a(f"s_add_u32 s{st[4]}, s{sRM+r}, -1")
            a(f"s_and_b32 s{sRM+r}, s{sRM+r}, s{st[4]}")
def main_pro(a):
    tag='c'
    sPW=st[6]
    a(f"s_lshr_b32 s{st[0]}, s{sNT}, 3")
    a(f"s_and_b32 s{st[1]}, s{sNT}, 7")
    a(f"s_cmp_lt_u32 s{sWV}, s{st[1]}")
    a(f"s_cselect_b32 s{st[2]}, 1, 0")
    a(f"s_add_u32 s{sNW}, s{st[0]}, s{st[2]}")
    a(f"s_mul_i32 s{sPW}, s{sWV}, s{st[0]}")
    a(f"s_min_u32 s{st[2]}, s{sWV}, s{st[1]}")
    a(f"s_add_u32 s{sPW}, s{sPW}, s{st[2]}")
    a(f"s_cmp_eq_u32 s{sNW}, 0")
    a(f"s_cbranch_scc1 L_mnone_c")
    a(f"s_sub_u32 s{sCNT}, s{sNW}, 1")
    a(f"s_lshl_b32 s{st[3]}, s{sPW}, 3")
    a(f"s_lshl_b32 s{st[4]}, s{sNW}, 2")
    a("v_lshrrev_b32 v2, 3, v1")
    a("v_lshrrev_b32 v3, 2, v2")
    a("v_and_b32 v4, 3, v2")
    a(f"v_mul_u32_u24 v3, s{st[4]}, v3")
    a(f"v_add3_u32 v3, v3, v4, s{st[3]}")
    a(f"v_lshlrev_b32 v3, 4, v3")
    a(f"v_add_u32 v{vXLa}, {XL}, v3")
    a("v_lshrrev_b32 v2, 5, v1")
    a(f"v_mul_u32_u24 v3, s{st[4]}, v2")
    a(f"v_add_u32 v3, s{st[3]}, v3")
    a("v_bfe_u32 v4, v1, 1, 4")
    a("v_lshlrev_b32 v4, 2, v4")
    a("v_lshl_add_u32 v4, v3, 4, v4")
    a(f"v_add_u32 v{vELa}, {EL}, v4")
    a("v_lshlrev_b32 v4, 2, v3")
    a(f"v_add_u32 v{vQTa}, {QT}, v4")
    a(f"ds_read_b128 {vr(XO)}, v{vXLa}")
    a(f"ds_read_b32 v{EO}, v{vELa}")
    a(f"ds_read_b128 {vr(QTV)}, v{vQTa}")
    a(f"s_lshl_b32 s{st[5]}, s{sWV}, 11")
    a(f"s_add_u32 s{st[5]}, s{st[5]}, {SEG}")
    a("v_and_b32 v4, 31, v1")
    a("v_lshlrev_b32 v4, 3, v4")
    a("v_lshl_add_u32 v4, v2, 10, v4")
    a(f"v_add_u32 v{vSegB}, s{st[5]}, v4")
    a(f"v_and_b32 v{vAe}, 0xfffffbff, v{vAe}")
    a(f"s_mov_b32 s{S_E+2}, {EBYTES}")
    a("s_waitcnt lgkmcnt(0)")
    for x in off_calc(): a(x)
    for x in flat(dma_e(0))+["s_nop 0"]+dma_x(): a(x)
    a(f"ds_read_b32 v{EO}, v{vELa} offset:64")
    a(f"ds_read_b128 {vr(XO)}, v{vXLa} offset:64")
    wread(a,tag)
    a(f"s_cmp_lt_u32 s{sWV}, 4")
    a("s_cbranch_scc1 k_prep_later")
    seg_prep(a,tag)
    a("k_prep_later:")
    for j in range(4): a(f"v_mov_b64 {vr(ACC+2*j,2)}, 0")
    a(f"v_mov_b32 v{vPN}, v{QTV}")
    a(f"v_lshl_add_u32 v{vPA}, v{QTV}, 1, v{vSegB}")
    a(f"v_add_u32 v{QA}, v{QTV}, v{vQc}")
    for j in range(4): a(f"ds_read_b32 v{FQ+2*j}, v{QA} offset:{j*128}")
    a(f"v_cmp_ne_u32 vcc, v{QTV+3}, v{vPN}")
    a("s_waitcnt lgkmcnt(0)")
    for x in off_calc(): a(x)
    a("s_waitcnt vmcnt(0)")
    for x in read_A(): a(x)
    a(f"s_cmp_gt_u32 s{sCNT}, 0")
    a(f"s_cselect_b32 s{S_E+2}, {EBYTES}, 0")
    for x in flat(dma_e(1)): a(x)
    a(f"ds_read_b32 v{EO}, v{vELa} offset:128")
    a(f"s_cmp_gt_u32 s{sCNT}, 1")
    a(f"s_cselect_b32 s{S_E+2}, {EBYTES}, 0")
    a("s_waitcnt lgkmcnt(0)")
    a(f"v_add_u32 v{EO}, v{EO}, v{vEc}")
    for x in dma_x()+flat(dma_e(0)): a(x)
    for x in chain(D[0],0): a(x)
    a(f"v_add_u32 v{vXLa}, 128, v{vXLa}")
    a(f"v_add_u32 v{vELa}, 192, v{vELa}")
    a(f"v_add_u32 v{vQTa}, 16, v{vQTa}")
    a(f"v_xor_b32 v{vAe}, 1024, v{vAe}")
    a(f"s_add_u32 s{sME}, s{sES}, 1024")
    a(f"v_mov_b32 v{ADY+2}, 0")
    a(f"v_mov_b32 v{ADY+3}, 0")
    if DBG[0]=="stamp":
        a("s_memtime s[100:101]"); a("s_waitcnt lgkmcnt(0)"); a(f"v_writelane_b32 v{vS}, s100, 15")
    if 'prioY' in OPT:
        a(f"s_cmp_ge_u32 s{sWV}, 4")
        a("s_cbranch_scc0 k_noprio")
        a("s_setprio 1")
        a("k_noprio:")
    a(f"s_cmp_lg_u32 s{sSAFE}, 0")
    a("s_cbranch_scc1 L_S_safe")
def main_loops(a,variant):
    tag=variant
    def tail(fall):
        a(f"s_sub_u32 s{sCNT}, s{sCNT}, 1")
        a(f"s_cbranch_scc1 L_fin_{tag}")
        if variant=="pair":
            a(f"s_cbranch_vccz L_F_{tag}")
            if not fall: a(f"s_branch L_D_{tag}")
        else:
            a(f"s_branch L_S_{tag}")
    if variant=="pair":
        a(f"s_cbranch_vccnz L_D_{tag}")
        a(f"L_F_{tag}:")
        a.extend(tile("F",variant))
        tail(True)
        a(f"L_D_{tag}:")
        a(f"v_cmp_ne_u32 s[{st[0]}:{st[1]}], v{QTV}, v{vPN}")
        for k in range(1,4): a(f"v_cmp_ne_u32 s[{st[2*k]}:{st[2*k+1]}], v{QTV+k}, v{QTV+k-1}")
        a(f"s_mov_b32 s{st[8]}, 0")
        for k in (3,2,1,0):
            a(f"s_cmp_lg_u64 s[{st[2*k]}:{st[2*k+1]}], 0")
            a(f"s_addc_u32 s{st[8]}, s{st[8]}, s{st[8]}")
        for k in (1,2,3):
            a(f"s_cmp_eq_u32 s{st[8]}, {1<<k}")
            a(f"s_cbranch_scc1 L_T{k}_{tag}")
        a(f"s_cmp_eq_u32 s{st[8]}, 1")
        a(f"s_cbranch_scc0 L_S_{tag}")
        a(f"v_add_u32 v{QA}, v{QTV+3}, v{vQc}")
        for j in range(4): a(f"ds_write_b64 v{vPA}, {vr(ACC+2*j,2)} offset:{j*256}")
        for j in range(4): a(f"ds_read_b32 v{FQ+2*j}, v{QA} offset:{j*128}")
        a(f"v_cndmask_b32_e64 v{KT}, 1.0, 0, s[{st[0]}:{st[1]}]")
        a(f"v_lshl_add_u32 v{vPA}, v{QTV+3}, 1, v{vSegB}")
        a(f"v_mov_b32 v{vPN}, v{QTV+3}")
        for j in range(4): a(f"v_pk_mul_f32 {vr(ACC+2*j,2)}, {vr(ACC+2*j,2)}, {vr(KT,2)} op_sel_hi:[1,0]")
        a("s_waitcnt lgkmcnt(0)")
        a(f"s_branch L_F_{tag}")
        for k in (1,2,3):
            a(f"L_T{k}_{tag}:")
            a.extend(tile(f"T{k}",variant))
            tail(False)
    a(f"L_S_{tag}:")
    a.extend(tile("S",variant))
    tail(False)
    a(f"L_fin_{tag}:")
    if variant=="pair": a("s_branch L_fin_safe")
def main_post(a):
    for j in range(4): a(f"ds_write_b64 v{vPA}, {vr(ACC+2*j,2)} offset:{j*256}")
    a(f"s_cmp_lt_u32 s{sWV}, 4")
    a("s_cbranch_scc0 L_mdone")
    a("s_branch L_lateprep")
    a("L_mnone_c:")
    wread(a,"n")
    a("L_lateprep:")
    seg_prep(a,"late")
    a("L_mdone:")

def masked_fill(a, count, addr_v, data, offset):
    if count>=512:
        a(f"ds_write_b128 v{addr_v}, {vr(data)} offset:{offset}"); return
    a(f"v_cmp_gt_u32 vcc, {count}, v0")
    a(f"s_and_saveexec_b64 s[{st[8]}:{st[9]}], vcc")
    a(f"ds_write_b128 v{addr_v}, {vr(data)} offset:{offset}")
    a(f"s_mov_b64 exec, s[{st[8]}:{st[9]}]")
def fill_region(a, start, nbytes, data):
    n=nbytes//16; assert nbytes%16==0
    o=start
    big = start+nbytes>65535
    if big:
        a(f"v_lshlrev_b32 v{vT2}, 4, v0")
        a(f"v_add_u32 v{vT2}, {start}, v{vT2}")
        o=0
    while n>0:
        masked_fill(a,min(n,512),vT2 if big else vT0,data,o); o+=512*16; n-=512
def init_lists(a,r_sent,r_dummy):
    for i in range(4): a(f"v_mov_b32 v{r_sent+i}, {SENT:#x}")
    fill_region(a,XL,2*LCAP*4,r_sent)
    for i in range(4): a(f"v_mov_b32 v{r_dummy+i}, {40*512}")
    fill_region(a,QT,LCAP,r_dummy)

def phase_a(a):
    a(f"s_mul_i32 s{st[0]}, s2, 10000")
    a("v_lshlrev_b32 v6, 4, v0")
    a(f"v_add_u32 v6, s{st[0]}, v6")
    a(f"buffer_load_dwordx4 v[16:19], v6, s[{S_DST}:{S_DST+3}], 0 offen")
    a(f"buffer_load_dwordx4 v[20:23], v6, s[{S_SRC}:{S_SRC+3}], 0 offen")
    a("v_cmp_gt_u32 vcc, 113, v0")
    a(f"s_and_saveexec_b64 s[{st[6]}:{st[7]}], vcc")
    a(f"s_cbranch_execz pa_r1skip")
    a(f"s_movk_i32 s{st[1]}, 8192")
    a(f"buffer_load_dwordx4 v[24:27], v6, s[{S_DST}:{S_DST+3}], s{st[1]} offen")
    a(f"buffer_load_dwordx4 v[28:31], v6, s[{S_SRC}:{S_SRC+3}], s{st[1]} offen")
    a("pa_r1skip:")
    a(f"s_mov_b64 exec, s[{st[6]}:{st[7]}]")
def phase_w(a):
    a("v_mov_b32 v85, 0x7fffff00")
    a(f"s_cmp_eq_u32 s{sWV}, 7")
    a("s_cbranch_scc0 pa_now")
    a("s_cmp_lt_u32 s2, 144")
    a("s_cbranch_scc0 pa_now")
    a(f"s_and_b32 s{st[0]}, s2, 3")
    a(f"s_lshl_b32 s{st[0]}, s{st[0]}, 6")
    a(f"v_add_u32 v76, s{st[0]}, v1")
    a("v_lshrrev_b32 v77, 2, v76")
    a("v_and_b32 v78, 3, v76")
    a("v_and_b32 v79, 31, v77")
    a("v_lshrrev_b32 v80, 5, v77")
    a("v_lshlrev_b32 v81, 3, v80")
    a("v_lshl_add_u32 v81, v78, 1, v81")
    a("s_cmp_lt_u32 s2, 80")
    a("s_cbranch_scc1 pa_w_main")
    a(f"s_sub_u32 s{st[1]}, s2, 80")
    a(f"s_lshr_b32 s{st[1]}, s{st[1]}, 2")
    a(f"s_add_u32 s{st[2]}, s{st[1]}, 20")
    a(f"s_lshr_b32 s{st[3]}, s{st[1]}, 3")
    a(f"s_and_b32 s{st[4]}, s{st[1]}, 7")
    a(f"s_lshl_b32 s{st[4]}, s{st[4]}, 4")
    a(f"s_lshl_b32 s{st[3]}, s{st[3]}, 5")
    srd(a,S_WR,60,128*64*2)
    a(f"s_movk_i32 s{st[5]}, 128")
    a(f"s_mov_b32 s{sNW}, 0")
    a("s_branch pa_w_go")
    a("pa_w_main:")
    a(f"s_lshr_b32 s{st[2]}, s2, 2")
    a(f"s_mul_i32 s{st[3]}, s{st[2]}, 13")
    a(f"s_lshr_b32 s{st[3]}, s{st[3]}, 6")
    a(f"s_mul_i32 s{st[4]}, s{st[3]}, 5")
    a(f"s_sub_u32 s{st[4]}, s{st[2]}, s{st[4]}")
    a(f"s_cmp_eq_u32 s{st[4]}, 4")
    a(f"s_cselect_b32 s{st[4]}, 8, s{st[4]}")
    a(f"s_lshl_b32 s{st[4]}, s{st[4]}, 4")
    a(f"s_lshl_b32 s{st[3]}, s{st[3]}, 5")
    srd(a,S_WR,56,144*128*2)
    a(f"s_movk_i32 s{st[5]}, 256")
    a(f"s_mov_b32 s{sNW}, 1")
    a("pa_w_go:")
    a(f"v_add_u32 v81, s{st[4]}, v81")
    a(f"v_add_u32 v79, s{st[3]}, v79")
    a(f"v_mul_lo_u32 v81, v81, s{st[5]}")
    a("v_lshl_add_u32 v81, v79, 1, v81")
    a(f"v_add_u32 v82, s{st[5]}, v81")
    a(f"buffer_load_ushort v83, v81, s[{S_WR}:{S_WR+3}], 0 offen")
    a(f"buffer_load_ushort v84, v82, s[{S_WR}:{S_WR+3}], 0 offen")
    a(f"s_lshl_b32 s{st[2]}, s{st[2]}, 10")
    a(f"v_lshl_add_u32 v85, v76, 2, s{st[2]}")
    a("pa_now:")
def phase_w2(a):
    a(f"s_cmp_eq_u32 s{sWV}, 7")
    a("s_cbranch_scc0 pa_now2")
    a("s_cmp_lt_u32 s2, 144")
    a("s_cbranch_scc0 pa_now2")
    a("v_lshl_or_b32 v86, v84, 16, v83")
    a(f"s_cmp_eq_u32 s{sNW}, 0")
    a("s_cbranch_scc1 pa_w_st")
    a("v_lshlrev_b32 v83, 16, v83")
    a("v_lshlrev_b32 v84, 16, v84")
    a(f"s_mov_b32 s{st[8]}, {f2u(NEG_LOG2E):#x}")
    a(f"v_mul_f32 v83, s{st[8]}, v83")
    a(f"v_mul_f32 v84, s{st[8]}, v84")
    a("v_cvt_pk_bf16_f32 v86, v83, v84")
    a("pa_w_st:")
    a(f"buffer_store_dword v86, v85, s[{S_W}:{S_W+3}], 0 offen sc1")
    a("pa_now2:")

def q_tile(a):
    WB=PN; QD=W+16
    a("v_bfe_u32 v11, v1, 2, 2")
    a("v_lshrrev_b32 v12, 5, v1")
    a("v_lshl_add_u32 v11, v12, 3, v11")
    a("v_lshlrev_b32 v11, 8, v11")
    a("v_bfe_u32 v12, v1, 4, 1")
    a("v_lshl_add_u32 v11, v12, 5, v11")
    a("v_and_b32 v12, 3, v1")
    a("v_lshl_add_u32 v11, v12, 3, v11")
    a(f"s_and_b32 s{st[2]}, s{sWV}, 3")
    a(f"s_lshl_b32 s{st[2]}, s{st[2]}, 6")
    a(f"s_add_u32 s{st[2]}, s{st[2]}, {WST}")
    a(f"v_add_u32 v11, s{st[2]}, v11")
    for ks in range(4):
        a(f"ds_read_b64_tr_b16 {vr(WB+4*ks,2)}, v11 offset:{ks*4096}")
        a(f"ds_read_b64_tr_b16 {vr(WB+4*ks+2,2)}, v11 offset:{ks*4096+1024}")
    a("s_waitcnt lgkmcnt(0)")
    a(mfma(QD,A,WB,None))
    for ks in range(1,4): a(mfma(QD,A+4*ks,WB+4*ks,QD))
    a(f"v_lshlrev_b32 v{PD+4}, 16, v{PD+4}")
    a(f"s_mov_b32 s{st[5]}, {f2u(NEG_LOG2E):#x}")
    a(f"s_lshr_b32 s{st[1]}, s{sWV}, 2")
    a(f"s_and_b32 s{st[2]}, s{sWV}, 3")
    a("v_lshrrev_b32 v5, 5, v1")
    a("v_and_b32 v4, 31, v1")
    a(f"s_lshl_b32 s{st[3]}, s{st[1]}, 14")
    a(f"s_lshl_b32 s{st[4]}, s{st[2]}, 7")
    a(f"s_add_u32 s{st[3]}, s{st[3]}, s{st[4]}")
    a(f"s_add_u32 s{st[3]}, s{st[3]}, {QP}")
    a("v_lshlrev_b32 v12, 11, v5")
    a("v_lshl_add_u32 v12, v4, 2, v12")
    a(f"v_add_u32 v12, s{st[3]}, v12")
    a("s_nop 1")
    for r in range(16):
        if r==4:
            a(f"s_cmp_eq_u32 s{st[1]}, 0")
            a("s_cbranch_scc0 k_qdone")
        t=KT+(r&3)
        a(f"v_add_f32 v{QD+r}, v{QD+r}, v{PD+4}")
        a(f"v_mul_f32 v{QD+r}, s{st[5]}, v{QD+r}")
        a(f"v_cvt_pk_bf16_f32 v{t}, v{QD+r}, v{QD+r}")
        a(f"v_lshlrev_b32 v{vT1}, 16, v{t}")
        a(f"v_sub_f32 v{vT1}, v{QD+r}, v{vT1}")
        a(f"v_cvt_pk_bf16_f32 v{t}, v{QD+r}, v{vT1}")
        a(f"ds_write_b32 v12, v{t} offset:{((r>>2)*8+(r&3))*512}")
    a("k_qdone:")
def phase_a2(a,dbg=None):
    a(f"s_mov_b32 s{st[0]}, {MAGIC}")
    a(f"s_movk_i32 s{st[1]}, 625")
    a(f"s_movk_i32 s{st[2]}, {IMG_S}")
    a(f"s_mov_b32 s{st[3]}, {CNT}")
    a(f"s_mov_b32 s{st[4]}, {IMG+4}")
    a("v_mov_b32 v5, 1")
    def rnd(r,dv,sv,tv):
        for i in range(4): a(f"v_mul_hi_u32 v{tv+i}, v{dv+i}, s{st[0]}")
        for i in range(4):
            a(f"v_lshl_add_u32 v{tv+4+i}, v{tv+i}, 2, s{st[3]}")
            a(f"ds_add_rtn_u32 v{tv+4+i}, v{tv+4+i}, v5")
        for i in range(4):
            a(f"v_mad_u32_u24 v{tv+8+i}, v{tv+i}, s{st[1]}, 15")
            a(f"v_lshrrev_b32 v{tv+8+i}, 4, v{tv+8+i}")
            a(f"v_sub_u32 v{tv+8+i}, v{dv+i}, v{tv+8+i}")
            a(f"v_lshlrev_b32 v{tv+8+i}, 26, v{tv+8+i}")
            a(f"v_mad_u32_u24 v{tv+12+i}, v{tv+i}, s{st[2]}, s{st[4]}") if False else a(f"v_mul_u32_u24 v{tv+12+i}, s{st[2]}, v{tv+i}")
            a(f"v_or3_b32 v{tv+8+i}, v{tv+8+i}, v7, v{sv+i}")
            if i: a(f"v_or_b32 v{tv+8+i}, {i<<14}, v{tv+8+i}")
            a(f"v_add_u32 v{tv+12+i}, s{st[4]}, v{tv+12+i}")
    def wr(tv):
        for i in range(4):
            a(f"v_min_u32 v{tv+4+i}, 31, v{tv+4+i}")
            a(f"v_lshl_add_u32 v{tv+4+i}, v{tv+4+i}, 2, v{tv+12+i}")
            a(f"ds_write_b32 v{tv+4+i}, v{tv+8+i}")
    a("v_lshlrev_b32 v7, 16, v0")
    rnd(0,16,20,32)
    a("v_cmp_gt_u32 vcc, 113, v0")
    a(f"s_and_saveexec_b64 s[{st[6]}:{st[7]}], vcc")
    a("s_cbranch_execz pa_r1done")
    a(f"v_add_u32 v7, {(4*512)<<14}, v7")
    rnd(1,24,28,48)
    a("s_waitcnt lgkmcnt(0)")
    wr(48)
    a("pa_r1done:")
    a(f"s_mov_b64 exec, s[{st[6]}:{st[7]}]")
    a("s_waitcnt lgkmcnt(0)")
    wr(32)
    a("v_lshrrev_b32 v4, 2, v0")
    a("v_and_b32 v5, 3, v0")
    a(f"v_mul_u32_u24 v6, {IMG_S}, v4")
    a("v_lshl_add_u32 v6, v5, 4, v6")
    a(f"v_add_u32 v6, {IMG}, v6")
    a("v_lshlrev_b32 v7, 2, v4")
    a(f"v_add_u32 v7, {CNT}, v7")
    a("v_lshlrev_b32 v8, 4, v0")
    a(f"s_mul_i32 s{st[0]}, s2, {CST}")
    a(f"s_add_u32 s{st[1]}, s{st[0]}, 8192")
    a(f"s_add_u32 s{st[2]}, s{st[0]}, {TB_OFF}")
    a(f"s_add_u32 s{st[3]}, s{st[2]}, 8192")
    a("s_waitcnt lgkmcnt(0)")
    a("s_barrier")
    for r in range(2):
        a(f"ds_read_b32 v{32+r}, v7 offset:{r*512}")
        a(f"ds_read_b128 v[{16+4*r}:{19+4*r}], v6 offset:{r*128*IMG_S}")
        a(f"ds_read_b128 v[{24+4*r}:{27+4*r}], v6 offset:{r*128*IMG_S+64}")
    a("v_mov_b32 v9, 0")
    a(f"buffer_load_dword v73, v9, s[{S_DBG}:{S_DBG+3}], 0 offen sc1")
    a("v_cmp_eq_u32 vcc, 0, v5")
    a("s_nop 0")
    a("s_waitcnt lgkmcnt(0)")
    for r in range(2): a(f"v_cndmask_b32 v{16+4*r}, v{16+4*r}, v{32+r}, vcc")
    stf = "" if 'plainst' in OPT else " sc1"
    if 'sc01' in OPT: stf=" sc0 sc1"
    if 'ntst' in OPT: stf=" sc1 nt"
    if 'nostore' not in OPT:
        for r in range(2): a(f"buffer_store_dwordx4 v[{16+4*r}:{19+4*r}], v8, s[{S_T}:{S_T+3}], s{st[r]} offen{stf}")
    for r in range(2):
        a(f"v_cmp_lt_u32 vcc, 15, v{32+r}")
        a(f"s_and_saveexec_b64 s[{st[6]}:{st[7]}], vcc")
        a(f"s_cbranch_execz pa_nob_{r}")
        a(f"buffer_store_dwordx4 v[{24+4*r}:{27+4*r}], v8, s[{S_T}:{S_T+3}], s{st[2+r]} offen sc1")
        a(f"pa_nob_{r}:")
        a(f"s_mov_b64 exec, s[{st[6]}:{st[7]}]")
    phase_w2(a)
    a("s_waitcnt vmcnt(0)")
    a("s_barrier")

def q_rows(a):
    t=[st[4],st[5],st[6],st[7],st[8]]
    a("v_and_b32 v10, 31, v1")
    a("v_lshrrev_b32 v11, 5, v1")
    a(f"s_lshr_b32 s{t[0]}, s{sWV}, 2")
    a(f"s_and_b32 s{t[1]}, s{sWV}, 3")
    a(f"s_lshl_b32 s{t[2]}, s{t[0]}, 5")
    a(f"s_add_u32 s{t[2]}, s{t[2]}, s{sNB}")
    a(f"v_add_u32 v12, s{t[2]}, v10")
    a("v_lshlrev_b32 v12, 7, v12")
    a("v_lshl_add_u32 v12, v11, 4, v12")
    for ks in range(4): a(f"buffer_load_dwordx4 {vr(A+4*ks)}, v12, s[{S_X}:{S_X+3}], s{sXO} offen offset:{ks*32}")
    a(f"s_lshl_b32 s{t[3]}, s{t[1]}, 6")
    a(f"v_lshl_add_u32 v12, v10, 1, s{t[3]}")
    a(f"buffer_load_ushort v{PD+4}, v12, s[{S_B1}:{S_B1+3}], 0 offen")
def w1b_loads(a):
    a("v_and_b32 v12, 255, v0")
    a("v_lshlrev_b32 v12, 4, v12")
    for k in range(4):
        a(f"s_movk_i32 s{st[4]}, {16384+k*4096}")
        a(f"buffer_load_dwordx4 v[{48+4*k}:{51+4*k}], v12, s[{S_W1}:{S_W1+3}], s{st[4]} offen")
def x_prefetch(a):
    if 'nox' not in OPT:
        a(f"s_lshr_b32 s{st[0]}, s2, 3")
        a(f"s_mul_i32 s{st[0]}, s{st[0]}, 40000")
        a(f"s_sub_u32 s{st[1]}, s{sWV}, 1")
        a(f"s_mul_i32 s{st[1]}, s{st[1]}, 6144")
        a(f"s_add_u32 s{st[0]}, s{st[0]}, s{st[1]}")
        a(f"s_add_u32 s{st[0]}, s{st[0]}, {XBIAS}")
        a(f"s_add_u32 s{st[1]}, s{st[0]}, 4096")
        a("v_lshlrev_b32 v6, 4, v1")
        for k in range(6):
            a(f"buffer_load_dwordx4 v[16:19], v6, s[{S_X}:{S_X+3}], s{st[k>>2]} offen offset:{(k&3)*1024}")

def consts(a):
    EB=QA
    a("v_lshrrev_b32 v2, 3, v1")
    a("v_and_b32 v3, 7, v1")
    a("v_and_b32 v4, 31, v1")
    a("v_lshrrev_b32 v5, 5, v1")
    a(f"s_mul_i32 s{sXS}, s{sWV}, {XS_W}")
    a(f"s_add_u32 s{sXS}, s{sXS}, {XS}")
    a(f"s_lshl_b32 s{sES}, s{sWV}, 11")
    a(f"s_add_u32 s{sES}, s{sES}, {ES}")
    a(f"s_mov_b32 s{sSC}, 0x33800000")
    a(f"s_mov_b32 s{sSC+1}, 0x33800000")
    a(f"s_mov_b32 s{sSLOW}, 0")
    a(f"s_mov_b32 s{sSAFE}, 0")
    a("v_lshlrev_b32 v7, 1, v2")
    a("v_and_b32 v7, 4, v7")
    a("v_xor_b32 v7, v3, v7")
    a(f"v_lshlrev_b32 v{vXc}, 4, v7")
    a("v_lshrrev_b32 v7, 4, v1")
    a("v_xor_b32 v7, v1, v7")
    a("v_and_b32 v7, 1, v7")
    a(f"v_lshlrev_b32 v{vEc}, 4, v7")
    a("v_and_b32 v7, 3, v4")
    a("v_bfe_u32 v8, v4, 2, 1")
    a("v_lshrrev_b32 v9, 3, v4")
    a("v_lshl_add_u32 v10, v8, 2, v9")
    a("v_mul_u32_u24 v11, 1040, v7")
    a("v_lshl_add_u32 v11, v10, 7, v11")
    a("v_lshl_add_u32 v11, v5, 4, v11")
    a(f"v_add_u32 v11, s{sXS}, v11")
    a("v_bfe_u32 v12, v10, 1, 1")
    a("v_lshlrev_b32 v12, 6, v12")
    a(f"v_add_u32 v{vAx01}, v11, v12")
    a(f"v_sub_u32 v{vAx23}, v11, v12")
    a("v_lshl_add_u32 v11, v10, 2, v7")
    a("v_bfe_u32 v12, v11, 3, 1")
    a("v_xor_b32 v12, v5, v12")
    a("v_lshlrev_b32 v12, 4, v12")
    a("v_lshl_add_u32 v12, v11, 5, v12")
    a(f"v_add_u32 v{vAe}, s{sES}, v12")
    a(f"v_lshlrev_b32 v{vQc}, 2, v4")
    a(f"v_add_u32 v{vQc}, {QP}, v{vQc}")
    a("v_lshlrev_b32 v12, 2, v5")
    a("v_sub_u32 v12, v10, v12")
    a("v_mov_b32 v15, 0x3f803f80")
    for r in range(4): a(f"v_cmp_eq_u32 s[{st[0]+2*r}:{st[1]+2*r}], {r}, v12")
    a("v_cmp_eq_u32 vcc, v8, v5")
    for r in range(4): a(f"v_cndmask_b32_e64 v{ACS+r}, 0, v15, s[{st[0]+2*r}:{st[1]+2*r}]")
    for i in range(12): a(f"v_mov_b32 v{FQ+i}, 0")
    a(f"v_cndmask_b32 v{ACF}, 0, v15, vcc")
    for i in range(10): a(f"v_mov_b32 v{HR+i}, 0")
    a(f"v_lshlrev_b32 v{vT0}, 4, v0")
    init_lists(a,KT,KT+4)
    for i in range(4): a(f"v_mov_b32 v{KT+i}, 0")
    fill_region(a,QP+40*512,512,KT)
    fill_region(a,SEG+ZROW*1024,1024,KT)
    a("v_lshrrev_b32 v2, 2, v1")
    a(f"s_lshl_b32 s{st[0]}, s{sWV}, 5")
    a(f"v_add_u32 v2, s{st[0]}, v2")
    a("v_mul_u32_u24 v2, 2500, v2")
    a(f"v_mov_b32 v{EB}, v2")
    a(f"v_add_u32 v{EB+1}, {16*2500}, v2")
    a("v_and_b32 v3, 3, v1")
    for i in range(4):
        a(f"v_lshlrev_b32 v{XO+i}, 2, v3")
        a(f"v_add_u32 v{XO+i}, {i-1}, v{XO+i}")

def gen(dbg=None):
    DBG[0]=dbg
    a=Asm()
    R=D[0]; HD=PD; RANK=EE; EB=QA; WB=PN; ND=D[1]
    a("s_cmp_ge_u32 s2, 256")
    a("s_cbranch_scc1 k_end")
    if dbg=="stamp": a(f"v_mov_b32 v{vS}, 0")
    if dbg!="dbgtime": stamp(a,0,11)
    a("s_load_dwordx16 s[48:63], s[0:1], 0")
    a("s_load_dwordx4 s[64:67], s[0:1], 64")
    a("s_load_dwordx2 s[46:47], s[0:1], 80")
    a("v_and_b32 v1, 63, v0")
    a("v_lshrrev_b32 v2, 6, v0")
    a("s_mul_i32 s43, s2, 625")
    a(f"v_readfirstlane_b32 s{sWV}, v2")
    if dbg=="dbgtime":
        a("s_nop 3"); stamp(a,0)
    a(f"v_lshlrev_b32 v{vT0}, 4, v0")
    for i in range(4): a(f"v_mov_b32 v{KT+i}, 0")
    fill_region(a,HIST,XL,KT)
    fill_region(a,CNT,1024,KT)
    a("s_add_u32 s44, s43, 640")
    a("s_add_u32 s43, s43, 15")
    a("s_lshr_b32 s43, s43, 4")
    a("s_lshr_b32 s44, s44, 4")
    a("s_sub_u32 s44, s44, s43")
    a("v_lshrrev_b32 v2, 3, v1")
    a("v_and_b32 v3, 7, v1")
    a("v_and_b32 v4, 31, v1")
    a("v_lshrrev_b32 v5, 5, v1")
    a("s_waitcnt lgkmcnt(0)")
    srd(a,S_DST,54,E*4); srd(a,S_SRC,52,E*4)
    phase_a(a)
    phase_w(a)
    a("s_barrier")
    a(f"s_sub_u32 s{S_X}, s48, {XBIAS}")
    a(f"s_subb_u32 s{S_X+1}, s49, 0")
    a(f"s_and_b32 s{S_X+1}, s{S_X+1}, 0xffff")
    a(f"s_mov_b32 s{S_X+2}, {XBYTES+XBIAS}")
    a(f"s_mov_b32 s{S_X+3}, 0x20000")
    srd(a,S_DBG,66,256); srd(a,S_B1,58,256); srd(a,S_W1,56,144*128*2)
    a(f"s_movk_i32 s{sXO}, {XBIAS}")
    a(f"s_movk_i32 s{sXO+1}, {XBIAS-1040}")
    a(f"s_movk_i32 s{sXO+2}, {XBIAS-2080}")
    a("s_cmp_eq_u32 s2, 0")
    a("s_cbranch_scc0 k_notag")
    a(f"s_cmp_eq_u32 s{sWV}, 6")
    a("s_cbranch_scc0 k_notag")
    a(f"s_memrealtime s[{st[4]}:{st[5]}]")
    a("s_waitcnt lgkmcnt(0)")
    a(f"s_or_b32 s{st[4]}, s{st[4]}, 1")
    a(f"v_mov_b32 v6, s{st[4]}")
    a("v_mov_b32 v7, 0")
    a(f"buffer_store_dword v6, v7, s[{S_DBG}:{S_DBG+3}], 0 offen sc1")
    a("k_notag:")
    srd(a,S_E,50,EBYTES); srd(a,S_T,46,2*256*CST); srd(a,S_W,46,WF_BYTES,WF_OFF); srd(a,S_FL,46,8192,FL_OFF)
    srd(a,S_O,64,N*128)
    a("s_waitcnt vmcnt(0)")
    phase_a2(a,dbg)
    stamp(a,3)
    a(f"s_cmp_eq_u32 s{sWV}, 0")
    a("s_cbranch_scc0 k_nosig")
    a(f"v_readfirstlane_b32 s{sB0}, v73")
    a(f"s_mov_b32 s{st[1]}, 400000")
    a("k_tagpoll:")
    a(f"s_cmp_lg_u32 s{sB0}, 0")
    a("s_cbranch_scc1 k_tagdone")
    a("v_mov_b32 v6, 0")
    a(f"buffer_load_dword v7, v6, s[{S_DBG}:{S_DBG+3}], 0 offen sc1")
    a("s_waitcnt vmcnt(0)")
    a(f"v_readfirstlane_b32 s{sB0}, v7")
    a(f"s_sub_u32 s{st[1]}, s{st[1]}, 1")
    a("s_cbranch_scc0 k_tagpoll")
    a("k_tagdone:")
    if 'sigstamp' in OPT: stamp(a,1)
    if True:
        a(f"s_lshr_b32 s{st[2]}, s2, 2")
        a(f"s_lshl_b32 s{st[2]}, s{st[2]}, 7")
        a(f"s_and_b32 s{st[3]}, s2, 3")
        a(f"s_lshl_b32 s{st[3]}, s{st[3]}, 2")
        a(f"s_add_u32 s{st[2]}, s{st[2]}, s{st[3]}")
    else:
        a(f"s_lshl_b32 s{st[2]}, s2, 2")
    a(f"v_mov_b32 v6, s{st[2]}")
    a(f"v_mov_b32 v7, s{sB0}")
    a(f"s_mov_b64 s[{st[6]}:{st[7]}], exec")
    a("s_mov_b64 exec, 1")
    a(f"buffer_store_dword v7, v6, s[{S_FL}:{S_FL+3}], 0 offen sc1")
    a(f"s_mov_b64 exec, s[{st[6]}:{st[7]}]")
    if 'sigstamp' in OPT:
        a("s_waitcnt vmcnt(0)")
        stamp(a,5)
    a("k_nosig:")
    a(f"s_cmp_eq_u32 s{sWV}, 0")
    a("s_cbranch_scc1 k_w0c")
    q_rows(a)
    a(f"s_cmp_ge_u32 s{sWV}, 4")
    a("s_cbranch_scc0 k_now1b")
    w1b_loads(a)
    a("k_now1b:")
    x_prefetch(a)
    a("k_w0c:")
    consts(a)
    a(f"s_cmp_ge_u32 s{sWV}, 4")
    a("s_cbranch_scc0 k_nostage")
    a("s_waitcnt vmcnt(%d)"%(0 if 'nox' in OPT else 6))
    a("v_and_b32 v9, 255, v0")
    a("v_lshlrev_b32 v9, 4, v9")
    a(f"v_add_u32 v9, {WST}, v9")
    for k in range(4): a(f"ds_write_b128 v9, v[{48+4*k}:{51+4*k}] offset:{k*4096}")
    a("s_waitcnt lgkmcnt(0)")
    a("k_nostage:")
    a(f"s_cmp_eq_u32 s{sWV}, 0")
    a("s_cbranch_scc0 k_wait_done")
    a("k_dopoll:")
    a("v_lshlrev_b32 v6, %d, v1"%7)
    a(f"s_mov_b32 s{st[1]}, 400000")
    a("s_sleep %d"%int(os.environ.get("D0","12")))
    a("k_poll:")
    a(f"buffer_load_dwordx4 v[8:11], v6, s[{S_FL}:{S_FL+3}], 0 offen %s"%"sc0 sc1")
    a("s_waitcnt vmcnt(0)")
    a(f"v_cmp_ne_u32 vcc, s{sB0}, v8")
    a(f"v_cmp_ne_u32 s[{st[4]}:{st[5]}], s{sB0}, v9")
    a(f"s_or_b64 vcc, vcc, s[{st[4]}:{st[5]}]")
    a(f"v_cmp_ne_u32 s[{st[4]}:{st[5]}], s{sB0}, v10")
    a(f"s_or_b64 vcc, vcc, s[{st[4]}:{st[5]}]")
    a(f"v_cmp_ne_u32 s[{st[4]}:{st[5]}], s{sB0}, v11")
    a(f"s_or_b64 vcc, vcc, s[{st[4]}:{st[5]}]")
    a("s_cmp_eq_u64 vcc, 0")
    a("s_cbranch_scc1 k_wait_done")
    a(f"s_sub_u32 s{st[1]}, s{st[1]}, 1")
    a("s_cbranch_scc1 k_wait_done")
    a("s_sleep %d"%int(os.environ.get("D1","4")))
    a("s_branch k_poll")
    a("k_wait_done:")
    srd(a,S_B2,62,128)
    if 'sigstamp' in OPT:
        stamp(a,2)
        a(f"v_writelane_b32 v{vS}, s{st[1]}, 6")
    a("v_lshrrev_b32 v15, 2, v1")
    a(f"v_mul_u32_u24 v15, {CST}, v15")
    a("v_and_b32 v14, 3, v1")
    a("v_lshl_add_u32 v13, v14, 4, v15")
    a(f"s_mul_i32 s{st[0]}, s{sWV}, {32*CST}")
    a(f"s_lshl_b32 s{st[1]}, s2, 6")
    a(f"s_add_u32 s{st[0]}, s{st[0]}, s{st[1]}")
    a(f"s_add_u32 s{st[1]}, s{st[0]}, {16*CST}")
    a(f"s_add_u32 s{st[2]}, s{st[0]}, {TB_OFF}")
    a(f"s_add_u32 s{st[3]}, s{st[1]}, {TB_OFF}")
    a("v_lshlrev_b32 v14, 4, v1")
    a(f"s_lshl_b32 s{st[6]}, s{sWV}, 10")
    a(f"s_add_u32 s{st[5]}, s{st[6]}, 8192")
    a(f"s_add_u32 s{st[7]}, s{st[6]}, 16384")
    a(f"s_cmp_eq_u32 s{sWV}, 0")
    a("s_cbranch_scc0 k_w0r")
    a(f"s_mov_b32 s{sCNT}, s{st[5]}")
    a(f"s_mov_b32 s{sME}, s{st[6]}")
    a(f"s_mov_b32 s{sNW}, s{st[7]}")
    q_rows(a)
    a(f"s_mov_b32 s{st[5]}, s{sCNT}")
    a(f"s_mov_b32 s{st[6]}, s{sME}")
    a(f"s_mov_b32 s{st[7]}, s{sNW}")
    a("k_w0r:")
    a("s_waitcnt lgkmcnt(0)")
    a("s_barrier")
    stamp(a,4)
    ldf=os.environ.get("LDF","sc1")
    for k in range(2): a(f"buffer_load_dwordx4 {vr(R+4*k)}, v13, s[{S_T}:{S_T+3}], s{st[k]} offen {ldf}")
    WT=W
    a("s_waitcnt vmcnt(2)")
    q_tile(a)
    a(f"s_add_u32 s{st[2]}, s{st[0]}, {TB_OFF}")
    a(f"s_add_u32 s{st[3]}, s{st[2]}, {16*CST}")
    for i in range(4): a(f"v_add_u32 v{KT+i}, 16, v{XO+i}")
    a("s_waitcnt vmcnt(0)")
    for k in range(2): a(f"v_mov_b32_dpp v{HD+k}, v{R+4*k} quad_perm:[0,0,0,0] row_mask:0xf bank_mask:0xf")
    a("s_nop 1")
    for k in range(2):
        a(f"v_cmp_lt_u32 vcc, 15, v{HD+k}")
        a(f"s_and_saveexec_b64 s[{st[8]}:{st[9]}], vcc")
        a(f"s_cbranch_execz k_nob_{k}")
        a(f"buffer_load_dwordx4 {vr(R+8+4*k)}, v13, s[{S_T}:{S_T+3}], s{st[2+k]} offen sc1")
        a(f"k_nob_{k}:")
        a(f"s_mov_b64 exec, s[{st[8]}:{st[9]}]")
    a(f"s_lshl_b32 s{st[6]}, s{sWV}, 10")
    a(f"s_add_u32 s{st[5]}, s{st[6]}, 8192")
    a(f"s_add_u32 s{st[7]}, s{st[6]}, 16384")
    a(f"buffer_load_dwordx4 {vr(WT)}, v14, s[{S_W}:{S_W+3}], s{st[6]} offen sc1")
    a(f"buffer_load_dwordx4 {vr(WT+4)}, v14, s[{S_W}:{S_W+3}], s{st[5]} offen sc1")
    a(f"buffer_load_dwordx4 {vr(WT+8)}, v14, s[{S_W}:{S_W+3}], s{st[7]} offen sc1")
    for k in range(2):
        for i in range(4):
            a(f"v_cmp_lt_u32 s[{sMK+2*(4*k+i)}:{sMK+2*(4*k+i)+1}], v{XO+i}, v{HD+k}")
    for k in range(2):
        for i in range(4):
            a(f"v_cmp_lt_u32 s[{sMK+2*(8+4*k+i)}:{sMK+2*(8+4*k+i)+1}], v{KT+i}, v{HD+k}")
    a(f"v_max_u32 v{vT0}, v{HD}, v{HD+1}")
    a(f"v_cmp_lt_u32 vcc, 31, v{vT0}")
    a("s_cbranch_vccz k_noovf")
    a(f"v_mov_b32 v{vT0}, {FLAG}")
    a(f"v_mov_b32 v{vT1}, 1")
    a(f"ds_write_b32 v{vT0}, v{vT1}")
    a("k_noovf:")
    if 'sigstamp' not in OPT: stamp(a,5)
    uid=[0]
    def hist(a):
        uid[0]+=1
        a(f"v_mov_b32 v{vT1}, 1")
        for e in range(8):
            a(f"v_lshrrev_b32 v{ND+e}, 26, v{R+e}")
            a(f"v_lshlrev_b32 v{RANK+e}, 2, v{ND+e}")
        for e in range(8):
            a(f"s_mov_b64 exec, s[{sMK+2*e}:{sMK+2*e+1}]")
            a(f"ds_add_rtn_u32 v{RANK+e}, v{RANK+e}, v{vT1}")
        a("s_waitcnt vmcnt(%d)"%(3 if uid[0]==1 else 0))
        for e in range(8,16):
            a(f"s_mov_b64 exec, s[{sMK+2*e}:{sMK+2*e+1}]")
            a(f"s_cbranch_execz k_hskip_{uid[0]}_{e}")
            a(f"v_lshrrev_b32 v{ND+e}, 26, v{R+e}")
            a(f"v_lshlrev_b32 v{RANK+e}, 2, v{ND+e}")
            a(f"ds_add_rtn_u32 v{RANK+e}, v{RANK+e}, v{vT1}")
            a(f"k_hskip_{uid[0]}_{e}:")
        a("s_mov_b64 exec, -1")
    hist(a)
    a("s_waitcnt lgkmcnt(0)")
    if 'sigstamp' not in OPT: stamp(a,6)
    a("s_barrier")
    a("k_scan:")
    a(f"v_lshlrev_b32 v{vT0}, 2, v1")
    a(f"ds_read_b32 v{PN}, v{vT0} offset:{HIST}")
    a(f"v_mov_b32 v{vT1}, {FLAG}")
    a(f"ds_read_b32 v{PN+1}, v{vT1}")
    a("s_waitcnt lgkmcnt(0)")
    a(f"v_add_u32 v{PN+2}, 3, v{PN}")
    a(f"v_and_b32 v{PN+2}, -4, v{PN+2}")
    a(f"v_mov_b32 v{PN+3}, v{PN+2}")
    for sh in ("row_shr:1 row_mask:0xf","row_shr:2 row_mask:0xf","row_shr:4 row_mask:0xf","row_shr:8 row_mask:0xf","row_bcast:15 row_mask:0xa","row_bcast:31 row_mask:0xc"):
        a("s_nop 1")
        a(f"v_add_u32_dpp v{PN+3}, v{PN+3}, v{PN+3} {sh} bank_mask:0xf")
    a("s_nop 0")
    a(f"v_readlane_b32 s{sTOT}, v{PN+3}, 63")
    a(f"v_readfirstlane_b32 s{st[0]}, v{PN+1}")
    a(f"v_sub_u32 v{PN+3}, v{PN+3}, v{PN+2}")
    a(f"s_bitcmp1_b32 s{sSLOW}, 0")
    a("s_cbranch_scc1 k_okcap")
    a(f"s_cmp_gt_u32 s{sTOT}, {LCAP}")
    a(f"s_cselect_b32 s{st[1]}, 1, 0")
    a(f"s_or_b32 s{st[0]}, s{st[0]}, s{st[1]}")
    a(f"s_cmp_lg_u32 s{st[0]}, 0")
    a("s_cbranch_scc1 k_goslow")
    a("k_okcap:")
    a(f"s_add_u32 s{sNT}, s{sTOT}, 31")
    a(f"s_lshr_b32 s{sNT}, s{sNT}, 5")
    BS=A
    for e in range(8):
        a(f"v_lshlrev_b32 v{vT1}, 2, v{ND+e}")
        a(f"ds_bpermute_b32 v{BS+e}, v{vT1}, v{PN+3}")
    for e in range(8,16):
        a(f"s_cmp_eq_u64 s[{sMK+2*e}:{sMK+2*e+1}], 0")
        a(f"s_cbranch_scc1 k_bskip_{e}")
        a(f"v_lshlrev_b32 v{vT1}, 2, v{ND+e}")
        a(f"ds_bpermute_b32 v{BS+e}, v{vT1}, v{PN+3}")
        a(f"k_bskip_{e}:")
    a(f"s_cmp_eq_u32 s{sWV}, 0")
    a("s_cbranch_scc0 k_nodeg")
    a(f"ds_add_u32 v{vT0}, v{PN} offset:{DEG}")
    a(f"ds_write_b32 v{vT0}, v{PN+3} offset:{BASE}")
    a("k_nodeg:")
    a(f"s_movk_i32 s{st[0]}, 0x3fff")
    for e in range(8):
        k=(e>>2)&1
        a(f"v_lshlrev_b32 v{ND+e}, 9, v{ND+e}")
        a(f"v_bfe_u32 v{KT+e}, v{R+e}, 14, 12")
        a(f"v_and_b32 v{R+e}, s{st[0]}, v{R+e}")
        a(f"v_add_lshl_u32 v{KT+e}, v{KT+e}, v{EB+k}, 5")
        a(f"v_lshlrev_b32 v{R+e}, 7, v{R+e}")
    a("s_waitcnt lgkmcnt(0)")
    for e in range(16):
        k=(e>>2)&1
        if e>=8:
            a(f"s_mov_b64 exec, s[{sMK+2*e}:{sMK+2*e+1}]")
            a(f"s_cbranch_execz k_sskip_{e}")
            a(f"v_lshlrev_b32 v{ND+e}, 9, v{ND+e}")
            a(f"v_bfe_u32 v{vT2}, v{R+e}, 14, 12")
            a(f"v_and_b32 v{R+e}, s{st[0]}, v{R+e}")
            a(f"v_add_lshl_u32 v{vT2}, v{vT2}, v{EB+k}, 5")
            a(f"v_lshlrev_b32 v{R+e}, 7, v{R+e}")
        ev = KT+e if e<8 else vT2
        a(f"v_add_u32 v{BS+e}, v{BS+e}, v{RANK+e}")
        a(f"v_and_b32 v{vT1}, -4, v{BS+e}")
        a(f"v_lshlrev_b32 v{BS+e}, 2, v{BS+e}")
        if e<8: a(f"s_mov_b64 exec, s[{sMK+2*e}:{sMK+2*e+1}]")
        a(f"ds_write_b32 v{BS+e}, v{R+e} offset:{XL}")
        a(f"ds_write_b32 v{BS+e}, v{ev} offset:{EL}")
        a(f"ds_write_b32 v{vT1}, v{ND+e} offset:{QT}")
        if e<8: a("s_mov_b64 exec, -1")
        else: a(f"k_sskip_{e}:")
    a("s_mov_b64 exec, -1")
    a(f"s_bitcmp1_b32 s{sSLOW}, 1")
    a("s_cbranch_scc1 k_w3")
    a(f"s_bitcmp1_b32 s{sSLOW}, 2")
    a("s_cbranch_scc1 k_w3")
    a(f"s_or_b32 s{sSLOW}, s{sSLOW}, 4")
    a("s_waitcnt vmcnt(0)")
    a("v_lshlrev_b32 v14, 4, v1")
    a(f"v_add_u32 v13, {WMS}, v14")
    a(f"s_lshl_b32 s{st[6]}, s{sWV}, 10")
    a(f"v_add_u32 v13, s{st[6]}, v13")
    a(f"ds_write_b128 v13, {vr(WT)}")
    a(f"ds_write_b128 v13, {vr(WT+4)} offset:8192")
    a(f"s_cmp_lt_u32 s{sWV}, 4")
    a("s_cbranch_scc0 k_w3")
    a(f"ds_write_b128 v13, {vr(WT+8)} offset:16384")
    a("k_w3:")
    a(f"s_mov_b32 m0, s{sXS}")
    a("s_waitcnt vmcnt(0) lgkmcnt(0)")
    stamp(a,7)
    a("s_barrier")
    stamp(a,8,12)
    a("k_main:")
    main_pro(a)
    main_loops(a,"pair")
    main_loops(a,"safe")
    main_post(a)
    a("k_mjoin:")
    a("s_waitcnt vmcnt(0) lgkmcnt(0)")
    stamp(a,9,13)
    W2F=D[0]; B2R=KT
    a(f"s_cmp_ge_u32 s{sWV}, 4")
    a("s_cbranch_scc1 k_now2")
    a(f"s_and_b32 s{st[0]}, s{sWV}, 1")
    a(f"s_lshl_b32 s{st[1]}, s{st[0]}, 13")
    a(f"s_add_u32 s{st[1]}, s{st[1]}, {20*1024}")
    a(f"s_add_u32 s{st[2]}, s{st[1]}, 4096")
    a("v_lshlrev_b32 v14, 4, v1")
    for ks in range(8):
        a(f"buffer_load_dwordx4 {vr(W2F+4*ks)}, v14, s[{S_W}:{S_W+3}], s{st[1+(ks>>2)]} offen offset:{(ks&3)*1024} sc1")
    a("v_lshrrev_b32 v5, 5, v1")
    a(f"s_lshl_b32 s{st[3]}, s{st[0]}, 6")
    a(f"v_lshl_add_u32 v13, v5, 3, s{st[3]}")
    for q in range(4): a(f"buffer_load_dwordx2 {vr(B2R+2*q,2)}, v13, s[{S_B2}:{S_B2+3}], 0 offen offset:{q*16}")
    a("k_now2:")
    SR=EE
    a(f"v_lshlrev_b32 v9, 4, v1")
    a(f"v_add_u32 v9, {SEG}, v9")
    for r in range(5):
        a(f"v_add_u32 v{A+2*r}, s{sRA+r}, v9")
        a(f"v_add_u32 v{A+2*r+1}, s{sRB+r}, v9")
    a("s_barrier")
    for r in range(5):
        for t in range(2): a(f"ds_read_b128 {vr(SR+8*r+4*t)}, v{A+2*r+t}")
    for r in range(5):
        a(f"s_waitcnt lgkmcnt({8-2*r})")
        for c in range(2):
            a(f"v_add_f32 v{SR+8*r+2*c}, v{SR+8*r+2*c}, v{SR+8*r+2*c+1}")
            a(f"v_add_f32 v{SR+8*r+4+2*c}, v{SR+8*r+4+2*c}, v{SR+8*r+4+2*c+1}")
            a(f"v_add_f32 v{HR+2*r+c}, v{HR+2*r+c}, v{SR+8*r+2*c}")
            a(f"v_add_f32 v{HR+2*r+c}, v{HR+2*r+c}, v{SR+8*r+4+2*c}")
    for r in range(5):
        a(f"k_more_{r}:")
        a(f"s_cmp_eq_u32 s{sRM+r}, 0")
        a(f"s_cbranch_scc1 k_moredone_{r}")
        a(f"s_ff1_i32_b32 s{st[4]}, s{sRM+r}")
        a(f"s_add_u32 s{st[5]}, s{st[4]}, s{sWV}")
        a(f"s_add_u32 s{st[5]}, s{st[5]}, {8*r}")
        a(f"s_lshl_b32 s{st[5]}, s{st[5]}, 10")
        a(f"v_add_u32 v10, s{st[5]}, v9")
        a(f"ds_read_b128 {vr(SR)}, v10")
        a(f"s_add_u32 s{st[4]}, s{sRM+r}, -1")
        a(f"s_and_b32 s{sRM+r}, s{sRM+r}, s{st[4]}")
        a("s_waitcnt lgkmcnt(0)")
        for c in range(2):
            a(f"v_add_f32 v{SR+2*c}, v{SR+2*c}, v{SR+2*c+1}")
            a(f"v_add_f32 v{HR+2*r+c}, v{HR+2*r+c}, v{SR+2*c}")
        a(f"s_branch k_more_{r}")
        a(f"k_moredone_{r}:")
    a(f"s_bitcmp1_b32 s{sSLOW}, 0")
    a("s_cbranch_scc0 k_epi")
    a("s_waitcnt vmcnt(0)")
    a("s_barrier")
    a(f"s_add_u32 s{sB0}, s{sB0}, 2048")
    a(f"s_cmp_lt_u32 s{sB0}, {E}")
    a("s_cbranch_scc1 k_slowfetch")
    a("s_branch k_epi")
    a("k_goslow:")
    a(f"s_or_b32 s{sSLOW}, s{sSLOW}, 1")
    a(f"s_mov_b32 s{sSAFE}, 1")
    a(f"s_mov_b32 s{sB0}, 0")
    a("s_waitcnt lgkmcnt(0)")
    a("s_barrier")
    a("k_slowfetch:")
    a(f"s_lshl_b32 s{st[0]}, s{sB0}, 2")
    a(f"v_lshlrev_b32 v{vT1}, 4, v0")
    a(f"v_add_u32 v{vT1}, s{st[0]}, v{vT1}")
    a(f"buffer_load_dwordx4 {vr(A)}, v{vT1}, s[{S_DST}:{S_DST+3}], 0 offen")
    a(f"buffer_load_dwordx4 {vr(A+4)}, v{vT1}, s[{S_SRC}:{S_SRC+3}], 0 offen")
    a(f"v_lshlrev_b32 v{vT0}, 4, v0")
    init_lists(a,KT,KT+4)
    for i in range(4): a(f"v_mov_b32 v{PD+i}, 0")
    fill_region(a,HIST,256,PD)
    a(f"v_lshlrev_b32 v{EB}, 2, v0")
    a(f"v_add_u32 v{EB}, s{sB0}, v{EB}")
    a(f"s_mov_b32 s{st[0]}, {MAGIC}")
    a(f"s_mov_b32 s{st[1]}, {E}")
    a("s_waitcnt vmcnt(0)")
    for i in range(4):
        a(f"v_mul_hi_u32 v{A+8+i}, v{A+i}, s{st[0]}")
        a(f"v_subrev_u32 v{A+i}, s{sNB}, v{A+i}")
        a(f"v_lshlrev_b32 v{A+i}, 26, v{A+i}")
        a(f"v_or_b32 v{R+i}, v{A+i}, v{A+4+i}")
        if i: a(f"v_or_b32 v{R+i}, {i<<14}, v{R+i}")
    a(f"v_cmp_gt_u32 vcc, s{st[1]}, v{EB}")
    for i in range(4):
        a(f"v_cmp_eq_u32 s[{sMK+2*i}:{sMK+2*i+1}], s2, v{A+8+i}")
        a(f"s_and_b64 s[{sMK+2*i}:{sMK+2*i+1}], s[{sMK+2*i}:{sMK+2*i+1}], vcc")
    for e in range(4,16): a(f"s_mov_b64 s[{sMK+2*e}:{sMK+2*e+1}], 0")
    a("s_waitcnt lgkmcnt(0)")
    a("s_barrier")
    hist(a)
    a("s_waitcnt lgkmcnt(0)")
    a("s_barrier")
    a("s_branch k_scan")
    a("k_epi:")
    stamp(a,10)
    a(f"s_mul_i32 s{st[3]}, s{sWV}, 272")
    a(f"s_add_u32 s{st[3]}, s{st[3]}, {HH}")
    a(f"v_lshl_add_u32 v4, v1, 2, s{st[3]}")
    a(f"s_mov_b32 s{st[4]}, {f2u(-0.6931471805599453*2.0**-24):#x}")
    a(f"s_mov_b32 s{st[5]}, 0xffff0000")
    a(f"v_mov_b32 v5, 0x207")
    a(f"s_mov_b64 s[{st[6]}:{st[7]}], 0")
    HV=A; T=PD
    for x in range(10):
        a(f"v_cmp_class_f32 vcc, v{HR+x}, v5")
        a(f"v_mul_f32 v{HV+x}, s{st[4]}, v{HR+x}")
        a(f"s_or_b64 s[{st[6]}:{st[7]}], s[{st[6]}:{st[7]}], vcc")
    for r in range(5):
        h0=HV+2*r; t=EE+4*r
        a(f"v_cvt_pk_bf16_f32 v{t}, v{h0}, v{h0+1}")
        a(f"v_lshlrev_b32 v{t+1}, 16, v{t}")
        a(f"v_and_b32 v{t+2}, s{st[5]}, v{t}")
        a(f"ds_write_b32 v4, v{t} offset:{r*8*272}")
        a(f"v_sub_f32 v{t+1}, v{h0}, v{t+1}")
        a(f"v_sub_f32 v{t+2}, v{h0+1}, v{t+2}")
        a(f"v_cvt_pk_bf16_f32 v{t+3}, v{t+1}, v{t+2}")
        a(f"ds_write_b32 v4, v{t+3} offset:{r*8*272+HL-HH}")
    a(f"s_cmp_eq_u64 s[{st[6]}:{st[7]}], 0")
    a("s_cbranch_scc1 k_fin")
    a(f"v_mov_b32 v{vT0}, {FLAG+4}")
    a(f"v_mov_b32 v{vT1}, 1")
    a(f"ds_write_b32 v{vT0}, v{vT1}")
    a("k_fin:")
    a("s_waitcnt lgkmcnt(0)")
    stamp(a,1)
    a("s_barrier")
    a(f"v_mov_b32 v{vT0}, {FLAG+4}")
    a(f"ds_read_b32 v{vT1}, v{vT0}")
    a(f"s_lshr_b32 s{st[1]}, s{sWV}, 1")
    a("v_and_b32 v4, 31, v1")
    a("v_lshrrev_b32 v5, 5, v1")
    a(f"s_lshl_b32 s{st[2]}, s{st[1]}, 5")
    a(f"v_add_u32 v6, s{st[2]}, v4")
    a("s_waitcnt lgkmcnt(0)")
    a(f"v_readfirstlane_b32 s{st[0]}, v{vT1}")
    a(f"s_andn2_b32 s{st[0]}, s{st[0]}, s{sSAFE}")
    a(f"s_cmp_lg_u32 s{st[0]}, 0")
    a("s_cbranch_scc0 k_final")
    a(f"s_mov_b32 s{sSAFE}, 1")
    a("s_waitcnt vmcnt(0)")
    for i in range(10): a(f"v_mov_b32 v{HR+i}, 0")
    a("s_barrier")
    a("s_branch k_main")
    a("k_final:")
    if dbg=="stamp":
        a(f"s_cmp_ge_u32 s{sWV}, 4")
        a("s_cbranch_scc0 k_final2")
        stamp_out(a)
        a("s_endpgm")
        a("k_final2:")
    a(f"s_cmp_ge_u32 s{sWV}, 4")
    a("s_cbranch_scc1 k_end")
    a("v_mul_u32_u24 v7, 272, v6")
    a("v_lshl_add_u32 v7, v5, 4, v7")
    a(f"v_add_u32 v7, {HH}, v7")
    a("v_lshlrev_b32 v8, 2, v6")
    a(f"ds_read_b32 v9, v8 offset:{DEG}")
    rd=[]
    for ks in range(8):
        rd.append(f"ds_read_b128 {vr(W+8*ks)}, v7 offset:{ks*32}")
        rd.append(f"ds_read_b128 {vr(W+8*ks+4)}, v7 offset:{ks*32+HL-HH}")
    for x in rd[:14]: a(x)
    a(f"s_mov_b32 s{st[5]}, 0xffff0000")
    BU=A; OD=EE
    a("s_waitcnt vmcnt(0)")
    waits=[13,13,13,12,11,10,9,8,7,6,5,4,3,2,1,0]
    for n in range(16):
        ks=n>>1
        a(f"s_waitcnt lgkmcnt({waits[n]})")
        a(mfma(OD,W2F+4*ks,W+8*ks+4*(n&1),None if n==0 else OD))
        if n<2: a(rd[14+n])
        if n&1:
            q,c=ks>>1,ks&1
            a(f"v_lshlrev_b32 v{BU+4*q+2*c}, 16, v{B2R+2*q+c}")
            a(f"v_and_b32 v{BU+4*q+2*c+1}, s{st[5]}, v{B2R+2*q+c}")
    a("v_cvt_f32_u32 v9, v9")
    a(f"s_and_b32 s{st[0]}, s{sWV}, 1")
    a(f"s_lshl_b32 s{st[0]}, s{st[0]}, 6")
    a(f"v_add_u32 v10, s{sNB}, v6")
    a("v_lshlrev_b32 v10, 7, v10")
    a("v_lshl_add_u32 v10, v5, 3, v10")
    a(f"v_add_u32 v10, s{st[0]}, v10")
    a(f"v_cmp_gt_u32 vcc, s{sNN}, v6")
    a("s_nop 7")
    for r in range(16): a(f"v_fma_f32 v{OD+r}, v9, v{BU+r}, v{OD+r}")
    for q in range(4):
        a(f"v_cvt_pk_bf16_f32 v{PD+2*q}, v{OD+4*q}, v{OD+4*q+1}")
        a(f"v_cvt_pk_bf16_f32 v{PD+2*q+1}, v{OD+4*q+2}, v{OD+4*q+3}")
    a(f"s_and_saveexec_b64 s[{st[6]}:{st[7]}], vcc")
    a("s_cbranch_execz k_end")
    for q in range(4): a(f"buffer_store_dwordx2 {vr(PD+2*q,2)}, v10, s[{S_O}:{S_O+3}], 0 offen offset:{q*16}"+os.environ.get("OSF",""))
    if dbg=="stamp":
        a("s_mov_b64 exec, -1")
        a("s_waitcnt vmcnt(0)")
        stamp(a,2)
        stamp_out(a)
    if dbg=="dbgtime":
        a("s_mov_b64 exec, -1")
        a("s_waitcnt vmcnt(0)")
        dstamp(a,6)
    a("k_end:")
    a("s_endpgm")
    return a
```

```python
import sys, os
from common import *
import k10
HEADER=open(os.path.join(os.path.dirname(os.path.abspath(__file__)),"header.txt")).read()
def build(path, dbg=None):
    kk=k10.gen(dbg)
    L=kk.lines
    i0=L.index('L_F_pair:'); i1=L.index('L_fin_pair:')
    def filt(pred): kk.lines=[l for i,l in enumerate(kk.lines) if not (i0<i<i1 and pred(l))]
    import re
    if 'sim4' in OPT: filt(lambda l: l.startswith(f'v_pk_mul_f32 v[{k10.PN}') or l.startswith(f'v_pk_mul_f32 v[{k10.PN+2}') or l.startswith(f'v_pk_mul_f32 v[{k10.PN+4}') or l.startswith(f'v_pk_mul_f32 v[{k10.PN+6}'))
    if 'noq' in OPT: filt(lambda l: l.startswith('v_mfma') and (f'v[{k10.ACF}:' in l or f'v[{k10.ADY}:' in l or f'v[{k10.ACS}:' in l))
    if 'nox2' in OPT: filt(lambda l: l.startswith('v_mfma') and (f', v[{k10.A+4}:' in l or f', v[{k10.A+8}:' in l))
    if 'norcp' in OPT: filt(lambda l: l.startswith('v_rcp'))
    if 'noexp' in OPT: filt(lambda l: l.startswith('v_exp'))
    errs=check(kk.lines,"k10") if not (OPT-{''}) else []
    for tag in ("pair","safe"):
        for t1 in ("F","S","T1","T2","T3"):
            for t2 in ("F","S","T1","T2","T3"):
                if tag=="safe" and (t1!="S" or t2!="S"): continue
                errs+=check(k10.tile(t1,tag)[-40:]+k10.tile(t2,tag)[:60],f"{tag}{t1}{t2}")
    for e in errs: print("HAZARD",e)
    vg=256 if dbg else k10.NVGPR
    s=HEADER
    s+=f"; @launch grid=(256,1,1) block=(512,1,1) lds={k10.LDS_BYTES}\n"
    s+='.amdgcn_target "amdgcn-amd-amdhsa--gfx950"\n.text\n'
    s+=kernel_text(k10.KNAME,kk)
    s+='.section .rodata,"a"\n'
    s+=desc(k10.KNAME,vg,102)
    open(path,"w").write(s)
    print("wrote",path,len(s),"bytes; LDS",k10.LDS_BYTES,"hazards",len(errs))
if __name__=="__main__":
    out=sys.argv[1] if len(sys.argv)>1 else f"cdna_kernels/{NAME}.s"
    build(out, sys.argv[2] if len(sys.argv)>2 else None)
```

```python
import re
class Asm:
    def __init__(self):
        self.lines=[]
    def __call__(self, s=""):
        for l in s.split("\n"):
            l=l.strip()
            if l: self.lines.append(l)
    def extend(self, other):
        self.lines += other.lines if isinstance(other, Asm) else list(other)
    def text(self):
        out=[]
        for l in self.lines:
            if l.endswith(":") or l.startswith("."): out.append(l)
            else: out.append("    "+l)
        return "\n".join(out)+"\n"

TRANS=("v_exp_","v_log_","v_rcp_","v_rsq_","v_sqrt_","v_sin_","v_cos_")
def regs(op):
    op=op.strip()
    m=re.fullmatch(r"-?(?:abs\()?([vsa])(\d+)\)?",op)
    if m: return [m.group(1)+m.group(2)]
    m=re.fullmatch(r"-?([vsa])\[(\d+):(\d+)\]",op)
    if m: return [m.group(1)+str(i) for i in range(int(m.group(2)),int(m.group(3))+1)]
    if op in("vcc","exec"): return [op]
    if op in("vcc_lo","vcc_hi"): return ["vcc"]
    if op in("exec_lo","exec_hi"): return ["exec"]
    if op=="m0": return ["m0"]
    return []
def parse(line):
    l=line.split(";")[0].strip()
    if not l or l.endswith(":") or l.startswith("."): return None
    parts=l.split(None,1)
    mn=parts[0]
    rest=parts[1] if len(parts)>1 else ""
    ops=[]; depth=0; cur=""
    for ch in rest:
        if ch=="[": depth+=1
        if ch=="]": depth-=1
        if ch=="," and depth==0: ops.append(cur.strip()); cur=""
        else: cur+=ch
    if cur.strip(): ops.append(cur.strip())
    mods=""
    if ops:
        last=ops[-1].split()
        ops[-1]=last[0]; mods=" ".join(last[1:])
    d=dict(mn=mn,ops=ops,mods=mods,w=[],r=[],kind="other",line=line)
    R=lambda idx:[x for i in idx if i<len(ops) for x in regs(ops[i])]
    n=len(ops)
    if mn.startswith("v_mfma"):
        d["kind"]="mfma"; d["w"]=R([0]); d["ra"]=R([1]); d["rb"]=R([2]); d["rc"]=R([3]); d["r"]=d["ra"]+d["rb"]+d["rc"]
    elif mn.startswith("v_"):
        d["kind"]="valu"; d["trans"]=mn.startswith(TRANS)
        d["w"]=R([0]); d["r"]=R(range(1,n))
        if mn.startswith(("v_fmac","v_dot2c","v_pk_fmac","v_writelane")) or "dpp" in mn: d["r"]+=d["w"]
        if mn.startswith("v_cndmask") and n==4: pass
        if mn.startswith("v_cndmask") and n==3: d["r"]+=["vcc"]
        if mn.startswith("v_permlane"): d["w"]=R([0,1]); d["r"]=R([0,1])
        d["dpp"]=("dpp" in mn) or ("row_" in mods) or ("quad_perm" in mods)
    elif mn.startswith("ds_"):
        d["kind"]="ds"
        if mn.startswith(("ds_read","ds_bpermute","ds_permute")) or "_rtn" in mn:
            d["w"]=R([0]); d["r"]=R(range(1,n))
        else: d["r"]=R(range(n))
    elif mn.startswith(("buffer_","global_")):
        d["kind"]="vmem"
        islds=" lds" in (" "+mods) or "lds" in mods.split()
        d["lds"]=islds
        if mn.startswith("buffer_load"):
            if islds: d["r"]=R(range(n))+["m0"]
            else: d["w"]=R([0]); d["r"]=R(range(1,n))
        elif mn.startswith("buffer_store"):
            d["r"]=R(range(n)); d["data"]=R([0])
        elif mn.startswith("global_load"):
            d["w"]=R([0]); d["r"]=R(range(1,n))
        elif mn.startswith("global_store"):
            d["r"]=R(range(n)); d["data"]=R([1])
        else: d["r"]=R(range(n))
    elif mn.startswith("s_"):
        d["kind"]="salu"
        if mn=="s_nop": d["nop"]=int(ops[0],0)+1
        elif mn.startswith(("s_cmp","s_bitcmp","s_waitcnt","s_barrier","s_cbranch","s_branch","s_endpgm","s_setprio","s_sleep")): d["r"]=R(range(n))
        else:
            d["w"]=R([0]); d["r"]=R(range(1,n))
            if "saveexec" in mn: d["w"]+=["exec"]; d["r"]+=["exec"]
    return d
def check(lines, name=""):
    ins=[parse(l) for l in lines]; ins=[i for i in ins if i]
    errs=[]
    def dist(i,j):
        s=0
        for k in range(i+1,j): s+=ins[k].get("nop",1)
        return s
    W=24
    for j,c in enumerate(ins):
        for i in range(max(0,j-W),j):
            p=ins[i]; dd=None; need=0; why=""
            pw=set(p["w"]); cr=set(c["r"]); cw=set(c["w"])
            vw={x for x in pw if x[0]=="v" and x!="vcc"}
            sw={x for x in pw if x[0]=="s" or x in("vcc","exec")}
            if p["kind"]=="valu":
                if c["kind"]=="mfma" and vw&cr: need,why=2,"valu->mfma"
                if p.get("trans") and c["kind"]=="valu" and not c.get("trans") and vw&cr and need<1: need,why=1,"trans->valu"
                if p.get("trans") and c["kind"] in("ds","vmem") and vw&cr and need<1: need,why=1,"trans->mem(conservative)"
                if c["kind"]=="valu" and (sw-{"exec"})&cr: need,why=max(need,2),"valu sgpr->valu"
                if c["kind"]=="vmem" and sw&cr: need,why=max(need,5),"valu sgpr->vmem"
                if c["kind"]=="valu" and c["mn"].startswith(("v_readlane","v_readfirstlane")) and vw&cr: need,why=max(need,1),"valu->readlane"
                if c["kind"]=="valu" and c.get("dpp") and vw&cr: need,why=max(need,2),"valu->dpp"
                if c["kind"]=="valu" and c["mn"].startswith("v_permlane") and vw&cr: need,why=max(need,2),"valu->permlane"
            if p["kind"]=="mfma":
                D=set(p["w"])
                if c["kind"]=="valu" and D&(cr|cw): need,why=12,"mfma->valu"
                if c["kind"] in("ds","vmem") and D&(cr|cw): need,why=12,"mfma->mem"
                if c["kind"]=="mfma":
                    if D&(set(c["ra"])|set(c["rb"])): need,why=12,"mfma->mfma AB"
                    elif D&set(c["rc"]) and set(c["rc"])!=D: need,why=10,"mfma->mfma C partial"
                    elif D&cw and set(c["w"])!=D: need,why=10,"mfma WAW partial"
                C=set(p["rc"])
                if c["kind"]=="valu" and C&cw and not (D&cw): need,why=max(need,7),"mfma C WAR"
            if p["kind"]=="salu" and "m0" in pw and c["kind"]=="vmem" and c.get("lds"): need,why=1,"m0->ldsdma"
            if p["kind"]=="vmem" and p.get("data") and len(p["data"])>=3 and c["kind"]=="valu" and set(p["data"])&cw: need,why=2,"store data WAR"
            if need and dist(i,j)<need:
                errs.append(f"{name}: {why} needs {need} has {dist(i,j)}:\n   {p['line']}\n   {c['line']}")
    return errs

def autofix(lines):
    out=list(lines)
    while True:
        ins=[(i,parse(l)) for i,l in enumerate(out)]
        ins=[(i,p) for i,p in ins if p]
        fixed=False
        for jj,(j,c) in enumerate(ins):
            if c["kind"] not in("valu","ds","vmem"): continue
            for ii in range(jj-1,max(-1,jj-20),-1):
                i,p=ins[ii]
                if p["kind"]!="mfma": continue
                if set(p["w"])&(set(c["r"])|set(c["w"])):
                    d=sum(ins[k][1].get("nop",1) for k in range(ii+1,jj))
                    if d<12:
                        out.insert(j,f"s_nop {12-d-1}"); fixed=True
                    break
            if fixed: break
        if not fixed: return out
```

```python
import sys
sys.path.insert(0,"gen")
import importlib
from genlib import *
import gen_tile as G
ks=[]; args=[]
def mk(modname, typ, name, filt=None):
    m=importlib.import_module(modname)
    L=m.tile(typ,"pair")
    if filt: L=[l for l in L if not filt(l)]
    init=G.init().replace(f"s_mov_b32 s{G.sME}, s{G.sES}",f"s_mov_b32 s{m.sME}, s{m.sES}")
    s=""
    for i in range(8,254): s+=f"v_mov_b32 v{i}, 0.5\n"
    s+=f"""
s_mov_b32 s{m.S_X}, s62
s_and_b32 s{m.S_X+1}, s63, 0xffff
s_mov_b32 s{m.S_X+2}, 0x4000000
s_mov_b32 s{m.S_X+3}, 0x20000
s_mov_b32 s{m.S_E}, s62
s_and_b32 s{m.S_E+1}, s63, 0xffff
s_mov_b32 s{m.S_E+2}, 0x4000000
s_mov_b32 s{m.S_E+3}, 0x20000
s_mov_b32 s{m.sSC}, 1.0
s_mov_b32 s{m.sSC+1}, 1.0
s_mul_i32 s{m.sXS}, s20, {m.XS_W}
s_add_u32 s{m.sXS}, s{m.sXS}, {m.XS}
s_lshl_b32 s{m.sES}, s20, 11
s_add_u32 s{m.sES}, s{m.sES}, {m.ES}
s_mov_b32 s{m.sME}, s{m.sES}
s_mov_b32 m0, s{m.sXS}
s_mov_b32 s{m.sCNT}, 1000000
s_movk_i32 s{m.sXO}, 3120
s_movk_i32 s{m.sXO+1}, 2080
s_movk_i32 s{m.sXO+2}, 1040
v_lshlrev_b32 v{m.vXLa}, 4, v1
v_lshlrev_b32 v{m.vELa}, 2, v1
v_lshlrev_b32 v{m.vQTa}, 4, v1
v_mov_b32 v{m.vXc}, 0
v_mov_b32 v{m.vEc}, 0
v_lshlrev_b32 v{m.vAx01}, 4, v1
v_add_u32 v{m.vAx01}, s{m.sXS}, v{m.vAx01}
v_mov_b32 v{m.vAx23}, v{m.vAx01}
v_lshlrev_b32 v{m.vAe}, 4, v1
v_add_u32 v{m.vAe}, s{m.sES}, v{m.vAe}
v_lshlrev_b32 v{m.vQc}, 2, v1
v_lshlrev_b32 v{m.vSegB}, 3, v1
v_add_u32 v{m.vSegB}, {m.SEG}, v{m.vSegB}
v_mov_b32 v{m.vPN}, 0
v_mov_b32 v{m.vPA}, v{m.vSegB}
v_mov_b32 v{m.KT+1}, v{m.vSegB}
v_mov_b32 v2, 0
v_mov_b32 v3, 0
v_mov_b32 v4, 0
v_mov_b32 v5, 0
v_lshlrev_b32 v6, 4, v0
ds_write_b128 v6, v[2:5]
ds_write_b128 v6, v[2:5] offset:8192
ds_write_b128 v6, v[2:5] offset:16384
ds_write_b128 v6, v[2:5] offset:24576
s_waitcnt lgkmcnt(0)
"""
    ks.append(kernel(name, G.timed(s, "\n".join(L)+"\n", 60), vgpr=256, sgpr=102))
    for b in (256,512): args.append(f"{name}:256:{b}:{m.LDS_BYTES}")
isx3=lambda l:"imum3" in l
mk("k10","F","F10"); mk("k13","F","F13"); mk("k14","F","F14"); mk("k14","F","F14nox3",isx3)
mk("k10","T2","T10"); mk("k13","T2","T13"); mk("k14","T2","T14")
mk("k13","F","F13noprio",lambda l:l.startswith("s_setprio")); mk("k14","F","F14noprio",lambda l:l.startswith("s_setprio"))
build("tile3.s", ks)
open("tile3.args","w").write(" ".join(args))
```

```python
from common import *
from asmlib import autofix
KNAME="gather_scatter__edge_featured_mpnn_mpnn__graph_kernel"
WF_OFF=9<<20
FL_OFF=WF_OFF+65536
CST=16640
TB_OFF=256*CST
LCAP=3328
HIST=0; DEG=256; PADC=512; FLAG=768; BASE=832
XL=1088; EL=XL+LCAP*4; QT=EL+LCAP*4; QP=QT+LCAP; XS=QP+41*512; XS_W=4160
ES=86016; assert XS+8*XS_W<=ES
SEG=ES+8*2048; ZROW=57; LDS_BYTES=SEG+58*1024
HH=XS; HL=HH+40*272; assert HL+64*272<=SEG
WST=XS
WMS=SEG+1024
CNT=SEG; IMG=SEG+1024; IMG_S=144; assert IMG+256*IMG_S<=SEG+ZROW*1024
SENT=0x7FFFFF00
XBIAS=3120
W=16; A=96; D=[116,132]; EE=148; PD=164; PN=172; ACC=180; FQ=188; ACF=196; ACS=200; QB=204; QA=208; KT=212
XO=220; EO=224; vXLa=225; vELa=226; vQTa=227; QTV=228
vXc=232; vEc=233; vAx01=234; vAx23=235; vAe=236; vQc=237; vSegB=238; vPN=239; vPA=240; vT0=241; vT1=242; vT2=243
HR=244
ADY=8
NVGPR=254
vS=254
S_X=4; S_E=8; S_T=12; S_W=16; S_O=20; S_B1=24; S_B2=28; S_SRC=32; S_DST=36
sSC=40; sWV=42; sNB=43; sNN=44; sNT=45; sTOT=46; sSLOW=47; sMK=48
S_WR=68; S_DBG=72; S_FL=76; S_W1=28
sSAFE=80; sB0=81; sCNT=82; sXO=83; sXS=86; sES=87; sME=88; sNW=89
st=[90,91,92,93,94,95,96,97,98,99]
XBYTES=N*128; EBYTES=E*32
DBG=[None]
def Wf(j,k): return W+(j*5+k)*4
def mfma(d,a_,b_,c=None):
    cs = "0" if c is None else vr(c,16)
    return f"v_mfma_f32_32x32x16_bf16 {vr(d,16)}, {vr(a_)}, {vr(b_)}, {cs}"
def chain(Dn,j):
    L=[mfma(Dn,A+0,Wf(j,0),None)]
    for k in range(1,4): L.append(mfma(Dn,A+4*k,Wf(j,k),Dn))
    L.append(mfma(Dn,A+16,Wf(j,4),Dn))
    return L
def qmf(Dn,j,typ):
    if typ=="F": return mfma(Dn,ACF,FQ+2*j,Dn)
    if typ[0]=="T": return mfma(Dn,ADY,FQ+2*j,Dn)
    return mfma(Dn,ACS,QB,Dn)
def dstamp(a,slot):
    a(f"s_cmp_eq_u32 s{sWV}, 0")
    a(f"s_cbranch_scc0 ds_skip_{slot}")
    a("s_mov_b32 s97, 0")
    a("s_cmp_eq_u32 s2, 0")
    a(f"s_cbranch_scc1 ds_go_{slot}")
    a("s_mov_b32 s97, 28")
    a("s_cmp_eq_u32 s2, 255")
    a(f"s_cbranch_scc0 ds_skip_{slot}")
    a(f"ds_go_{slot}:")
    a("s_memrealtime s[100:101]")
    a("s_load_dwordx2 s[98:99], s[0:1], 72")
    a("s_waitcnt lgkmcnt(0)")
    a("v_mov_b32 v254, s100")
    a("v_mov_b32 v255, s97")
    a(f"global_store_dword v255, v254, s[98:99] offset:{4+slot*4}")
    a(f"ds_skip_{slot}:")
def stamp(a,idx,extra=None):
    if DBG[0]=="dbgtime":
        m={0:0,3:1,4:2,8:3,9:4,10:5}
        if idx in m: dstamp(a,m[idx])
        return
    if DBG[0]!="stamp": return
    a("s_memrealtime s[100:101]")
    a("s_waitcnt lgkmcnt(0)")
    a(f"v_writelane_b32 v{vS}, s100, {idx}")
    if extra is not None:
        a("s_memtime s[100:101]")
        a("s_waitcnt lgkmcnt(0)")
        a(f"v_writelane_b32 v{vS}, s100, {extra}")
def stamp_out(a):
    if DBG[0]!="stamp": return
    a(f"v_writelane_b32 v{vS}, s{sNT}, 14")
    a("s_load_dwordx2 s[92:93], s[0:1], 80")
    a("s_waitcnt lgkmcnt(0)")
    a(f"s_add_u32 s92, s92, {(17<<20)}")
    a("s_addc_u32 s93, s93, 0")
    a("s_and_b32 s93, s93, 0xffff")
    a("s_mov_b32 s94, 0x100000")
    a("s_mov_b32 s95, 0x20000")
    a("v_lshrrev_b32 v2, 6, v0")
    a("s_lshl_b32 s96, s2, 4")
    a("v_add_u32 v2, s96, v2")
    a("v_lshlrev_b32 v2, 6, v2")
    a("v_and_b32 v3, 63, v0")
    a("v_lshl_add_u32 v2, v3, 2, v2")
    a("v_cmp_gt_u32 vcc, 32, v3")
    a("s_and_saveexec_b64 s[96:97], vcc")
    a("v_cmp_gt_u32 vcc, 16, v3")
    a("s_and_b64 exec, exec, vcc")
    a(f"buffer_store_dword v{vS}, v2, s[92:95], 0 offen")
    a("s_mov_b64 exec, s[96:97]")

def dma_x():
    L=[]
    for i in range(4):
        so = f"s{sXO+i}" if i<3 else "0"
        off = f" offset:{i*1040}" if i else ""
        L.append(f"buffer_load_dwordx4 v{XO+i}, s[{S_X}:{S_X+3}], {so} offen{off} lds")
    return L
def dma_e(slot=None, filler="s_nop 0"):
    m = f"s_mov_b32 m0, s{sME}" if slot is None else f"s_add_u32 m0, s{sES}, {slot*1024}"
    return [[m,filler,f"buffer_load_dwordx4 v{EO}, s[{S_E}:{S_E+3}], 0 offen nt lds", f"s_mov_b32 m0, s{sXS}"]]
def read_A():
    return [f"ds_read_b128 {vr(A+0)}, v{vAx01}", f"ds_read_b128 {vr(A+4)}, v{vAx01} offset:32",
            f"ds_read_b128 {vr(A+8)}, v{vAx23} offset:64", f"ds_read_b128 {vr(A+12)}, v{vAx23} offset:96",
            f"ds_read_b128 {vr(A+16)}, v{vAe}"]
def off_calc():
    return [f"v_add_u32 v{XO+i}, v{XO+i}, v{vXc}" for i in range(4)]+[f"v_add_u32 v{EO}, v{EO}, v{vEc}"]
def flat(L):
    out=[]
    for x in L: out+= x if isinstance(x,list) else [x]
    return out

def stage(j, typ, variant, last, side_exp=[], side_pk=[], head=[], side_late=[]):
    Dc=D[j&1]; Dn=D[(j+1)&1]; jn=(j+1)&3
    L=list(head)
    if typ=="S" and not last:
        L+=[f"ds_read_b32 v{QB+i}, v{QA+i} offset:{jn*128}" for i in range(4)]
    ex=[f"v_exp_f32 v{EE+i}, v{Dc+i}" for i in range(16)]
    ph1=interleave(ex,chain(Dn,jn),3)
    if 'prioB' in OPT: L.append("s_setprio 1")
    if 'prioC' in OPT: L.append("s_setprio 0")
    L+=weave(ph1,side_exp,1)
    if 'prioB' in OPT: L.append("s_setprio 0")
    if 'prioC' in OPT: L.append("s_setprio 1")
    pk1=[f"v_pk_fma_f32 {vr(EE+2*i,2)}, {vr(EE+2*i,2)}, s[{sSC}:{sSC+1}], s[{sSC}:{sSC+1}]" for i in range(8)]
    q=[] if last else [qmf(Dn,jn,typ)]
    wq=[f"s_waitcnt lgkmcnt({5 if j==2 else 0})"] if (typ=="S" and not last) else []
    if variant=="pair" and typ!="S":
        groups={"F":[(0,1),(2,3)],"T1":[(0,),(1,),(2,3)],"T2":[(0,1),(2,3)],"T3":[(0,1),(2,),(3,)]}[typ]
        kb=int(typ[1]) if typ[0]=="T" else None
        pk1+=[f"v_pk_mul_f32 {vr(PD+2*k,2)}, {vr(EE+4*k,2)}, {vr(EE+4*k+2,2)}" for k in range(4)]
        pk1+=[f"v_pk_mul_f32 {vr(PN+2*k,2)}, {vr(Dc+4*k,2)}, {vr(EE+4*k+2,2)}" for k in range(4)]
        pk1+=[f"v_pk_fma_f32 {vr(PN+2*k,2)}, {vr(Dc+4*k+2,2)}, {vr(EE+4*k,2)}, {vr(PN+2*k,2)}" for k in range(4)]
        mg=[g for g in groups if len(g)==2]
        pk1+=[f"v_pk_mul_f32 {vr(PN+2*a_,2)}, {vr(PN+2*a_,2)}, {vr(PD+2*b_,2)}" for a_,b_ in mg]
        pk1+=[f"v_pk_fma_f32 {vr(PN+2*a_,2)}, {vr(PN+2*b_,2)}, {vr(PD+2*a_,2)}, {vr(PN+2*a_,2)}" for a_,b_ in mg]
        pk1+=[f"v_pk_mul_f32 {vr(PD+2*a_,2)}, {vr(PD+2*a_,2)}, {vr(PD+2*b_,2)}" for a_,b_ in mg]
        L+=weave(pk1,side_pk,1)
        rc=[]
        for g in groups: rc+=[f"v_rcp_f32 v{PD+2*g[0]}, v{PD+2*g[0]}", f"v_rcp_f32 v{PD+2*g[0]+1}, v{PD+2*g[0]+1}"]
        L+=q+weave(rc,side_late,1)
        first=True
        for g in groups:
            k=g[0]
            if kb is not None and k==kb:
                L.append(f"v_pk_mul_f32 {vr(PN+2*k,2)}, {vr(PN+2*k,2)}, {vr(PD+2*k,2)}")
                L.append(f"ds_write_b64 v{KT+1}, {vr(ACC+2*j,2)} offset:{j*256}")
                L.append(f"v_pk_fma_f32 {vr(ACC+2*j,2)}, {vr(ACC+2*j,2)}, {vr(KT,2)}, {vr(PN+2*k,2)} op_sel_hi:[1,0,1]")
            else:
                L.append(f"v_pk_fma_f32 {vr(ACC+2*j,2)}, {vr(PN+2*k,2)}, {vr(PD+2*k,2)}, {vr(ACC+2*j,2)}")
        return L
    if variant=="pair":
        pk1+=[f"v_pk_mul_f32 {vr(PD+2*k,2)}, {vr(EE+4*k,2)}, {vr(EE+4*k+2,2)}" for k in range(4)]
        pk1+=[f"v_pk_mul_f32 {vr(PN+2*k,2)}, {vr(Dc+4*k,2)}, {vr(EE+4*k+2,2)}" for k in range(4)]
        L+=weave(pk1,side_pk,1)
        rc=[f"v_rcp_f32 v{PD+i}, v{PD+i}" for i in range(8)]
        L+=[rc[0]]+wq+q+weave(rc[1:],side_late,1)
        L+=[f"v_pk_fma_f32 {vr(PN+2*k,2)}, {vr(Dc+4*k+2,2)}, {vr(EE+4*k,2)}, {vr(PN+2*k,2)}" for k in range(4)]
        L+=[f"v_pk_mul_f32 {vr(PN+2*k,2)}, {vr(PN+2*k,2)}, {vr(PD+2*k,2)}" for k in range(4)]
    else:
        L+=weave(pk1,side_pk,1)
        rc=[f"v_rcp_f32 v{EE+i}, v{EE+i}" for i in range(16)]
        L+=[rc[0]]+wq+q+weave(rc[1:],side_late,1)
        L+=[f"v_pk_mul_f32 {vr(PN+2*k,2)}, {vr(Dc+4*k,2)}, {vr(EE+4*k,2)}" for k in range(4)]
        L+=[f"v_pk_fma_f32 {vr(PN+2*k,2)}, {vr(Dc+4*k+2,2)}, {vr(EE+4*k+2,2)}, {vr(PN+2*k,2)}" for k in range(4)]
    for k in range(4):
        L.append(f"ds_write_b64 v{KT+2*k+1}, {vr(ACC+2*j,2)} offset:{j*256}")
        L.append(f"v_pk_fma_f32 {vr(ACC+2*j,2)}, {vr(ACC+2*j,2)}, {vr(KT+2*k,2)}, {vr(PN+2*k,2)} op_sel_hi:[1,0,1]")
    return L

def tile(typ, variant):
    L=[]
    lists=[f"ds_read_b128 {vr(XO)}, v{vXLa}", f"ds_read_b32 v{EO}, v{vELa}"]
    qtread=[f"ds_read_b128 {vr(QTV)}, v{vQTa}"]
    incs=[f"v_add_u32 v{vXLa}, 64, v{vXLa}", f"v_add_u32 v{vELa}, 64, v{vELa}", f"v_add_u32 v{vQTa}, 16, v{vQTa}"]
    srdsel=[f"s_cmp_gt_u32 s{sCNT}, 2", f"s_cselect_b32 s{S_E+2}, {EBYTES}, 0"]
    if True: srdsel+=[f"s_cmp_gt_u32 s{sCNT}, 1", f"s_cselect_b32 s{S_X+2}, {XBYTES+XBIAS}, 0"]
    if typ=="F":
        L.append(qmf(D[0],0,"F"))
        L+=lists+qtread+incs+srdsel+["s_nop 3"]
    elif typ[0]=="T":
        kb=int(typ[1]); M=st[2*kb]
        lit={1:0xFFFFFF00,2:0xFFFF0000,3:0xFF000000}[kb]
        L+=[f"v_add_u32 v{QA}, v{QTV+3}, v{vQc}"]
        L+=[f"ds_read_b32 v{FQ+2*j+1}, v{QA} offset:{j*128}" for j in range(4)]
        L+=[f"s_and_b32 s{st[8]}, s{M}, {lit:#x}", f"s_and_b32 s{st[9]}, s{M+1}, {lit:#x}"]
        L+=[f"v_cndmask_b32_e64 v{KT}, 1.0, 0, s[{M}:{M+1}]", f"v_mov_b32 v{KT+1}, v{vPA}",
            f"v_cndmask_b32_e64 v{ADY}, v{ACF}, 0, s[{st[8]}:{st[9]}]", f"v_cndmask_b32_e64 v{ADY+1}, 0, v{ACF}, s[{st[8]}:{st[9]}]",
            f"v_lshl_add_u32 v{vPA}, v{QTV+3}, 1, v{vSegB}", f"v_mov_b32 v{vPN}, v{QTV+3}"]
        L+=lists+["s_waitcnt lgkmcnt(2)", qmf(D[0],0,typ)]
        L+=qtread+incs+srdsel+["s_nop 5"]
    else:
        L+=[f"v_add_u32 v{QA+i}, v{QTV+i}, v{vQc}" for i in range(4)]
        L+=[f"ds_read_b32 v{QB+i}, v{QA+i}" for i in range(4)]
        L+=[f"ds_read_b32 v{FQ+2*j}, v{QA+3} offset:{j*128}" for j in range(4)]
        L+=[f"v_cmp_eq_u32 s[{st[0]}:{st[1]}], v{QTV}, v{vPN}"]
        L+=[f"v_cmp_eq_u32 s[{st[0]+2*k}:{st[1]+2*k}], v{QTV+k}, v{QTV+k-1}" for k in range(1,4)]
        L+=[f"v_mov_b32 v{KT+1}, v{vPA}"]
        L+=[f"v_lshl_add_u32 v{KT+2*k+1}, v{QTV+k-1}, 1, v{vSegB}" for k in range(1,4)]
        L+=[f"v_lshl_add_u32 v{vPA}, v{QTV+3}, 1, v{vSegB}", f"v_mov_b32 v{vPN}, v{QTV+3}"]
        L+=[f"v_cndmask_b32_e64 v{KT+2*k}, 0, 1.0, s[{st[0]+2*k}:{st[1]+2*k}]" for k in range(4)]
        L+=["s_waitcnt lgkmcnt(0)", qmf(D[0],0,"S")]
        L+=lists+qtread+incs+srdsel+["s_nop 3"]
    PR=os.environ.get("PR","1110")
    L=[f"s_setprio {PR[0]}"]+L
    L+=stage(0,typ,variant,False)
    if PR[1]!=PR[0]: L.append(f"s_setprio {PR[1]}")
    head1=["s_waitcnt lgkmcnt(0)"]
    side1=[f"v_cmp_ne_u32 vcc, v{QTV+3}, v{vPN}"]+off_calc()
    if variant=="pair" and typ!="S":
        L+=stage(1,typ,variant,False,head=head1+side1[:4])
        head2=side1[4:]+[f"v_xor_b32 v{vAe}, 1024, v{vAe}"] if False else side1[4:]
    else:
        L+=stage(1,typ,variant,False,side_exp=side1,head=head1)
        head2=[]
    rA=read_A()
    if PR[2]!=PR[1]: L.append(f"s_setprio {PR[2]}")
    L+=stage(2,typ,variant,False,side_pk=[["s_waitcnt vmcnt(1)",rA[0]]]+rA[1:],head=head2)
    if PR[3]!=PR[2]: L.append(f"s_setprio {PR[3]}")
    dx=dma_x(); de=dma_e(None,f"s_xor_b32 s{sME}, s{sME}, 1024")
    early = variant=="pair" and typ!="S"
    L+=stage(3,typ,variant,True,head=["s_waitcnt lgkmcnt(0)"]+(dx[:3] if early else []),side_exp=([] if early else dx[:3]),side_pk=[dx[3]]+de,
             side_late=[f"v_xor_b32 v{vAe}, 1024, v{vAe}"]+([f"v_mov_b32 v{FQ+2*j}, v{FQ+2*j+1}" for j in range(4)] if typ[0]=="T" else []))
    pf=os.environ.get("PF","")
    if pf:
        lo,hi=[float(x) for x in pf.split(",")]
        L=[l for l in L if not l.startswith("s_setprio")]
        n=len(L); a_=int(lo*n); b_=int(hi*n)
        def spot(i):
            while i<len(L) and not L[i].startswith(("v_exp","v_pk_","v_rcp")): i+=1
            return i
        a_=spot(a_); L.insert(a_,"s_setprio 0")
        if hi<1.0:
            b_=spot(b_); L.insert(b_,"s_setprio 1")
        else:
            L.insert(0,"s_setprio 1")
    return autofix(L)

def wread(a,tag):
    a(f"s_bitcmp1_b32 s{sSLOW}, 1")
    a(f"s_cbranch_scc1 k_wdone_{tag}")
    a(f"s_or_b32 s{sSLOW}, s{sSLOW}, 2")
    a("v_lshlrev_b32 v14, 4, v1")
    a(f"v_add_u32 v14, {WMS}, v14")
    for f in range(20): a(f"ds_read_b128 {vr(W+4*f)}, v14 offset:{f*1024}")
    a("s_waitcnt lgkmcnt(0)")
    a("s_barrier")
    a(f"k_wdone_{tag}:")
sRA=48; sRB=53; sRM=58
def seg_prep(a,tag):
    a(f"v_lshlrev_b32 v{vT0}, 2, v1")
    a(f"ds_read_b32 v2, v{vT0} offset:{BASE}")
    a(f"ds_read_b32 v12, v{vT0} offset:{BASE+4}")
    a(f"ds_read_b32 v13, v{vT0} offset:{HIST}")
    a(f"v_lshlrev_b32 v14, 3, v1")
    a(f"s_lshl_b32 s{st[3]}, s{sWV}, 9")
    a(f"s_add_u32 s{st[3]}, s{st[3]}, {QP}")
    a(f"v_add_u32 v14, s{st[3]}, v14")
    QR=EE
    for r in range(5): a(f"ds_read_b64 {vr(QR+2*r,2)}, v14 offset:{r*8*512}")
    a(f"s_lshr_b32 s{st[0]}, s{sNT}, 3")
    a(f"s_and_b32 s{st[1]}, s{sNT}, 7")
    a("v_lshrrev_b32 v3, 1, v1")
    a("v_and_b32 v4, 1, v1")
    a(f"v_cmp_gt_u32 vcc, s{st[1]}, v3")
    a(f"v_mul_u32_u24 v6, s{st[0]}, v3")
    a(f"v_min_u32 v7, s{st[1]}, v3")
    a(f"v_cndmask_b32_e64 v5, 0, 1, vcc")
    a(f"v_add_u32 v5, s{st[0]}, v5")
    a("v_add_u32 v6, v6, v7")
    a("v_lshlrev_b32 v6, 3, v6")
    a("v_lshlrev_b32 v5, 2, v5")
    a("v_mul_u32_u24 v7, v5, v4")
    a("v_add_u32 v6, v6, v7")
    a("v_add_u32 v7, v6, v5")
    a("v_cmp_gt_u32 vcc, 16, v1")
    a("v_mov_b32 v15, 0x7fffffff")
    a(f"s_mov_b32 s{st[9]}, 0xffff0000")
    a("v_cndmask_b32 v6, v15, v6, vcc")
    a("s_waitcnt lgkmcnt(0)")
    a("v_sub_u32 v12, v12, v2")
    a("v_sub_u32 v12, v12, v13")
    a("v_cvt_f32_u32 v12, v12")
    TA=PD; TB=PN
    for x in range(10):
        ta=(PD+x if x<8 else QB+x-8);
        a(f"v_lshlrev_b32 v{ta}, 16, v{QR+x}")
        a(f"v_and_b32 v{TB+x}, s{st[9]}, v{QR+x}")
        a(f"v_add_f32 v{ta}, v{ta}, v{TB+x}")
    for x in range(10): a(f"v_exp_f32 v{TB+x}, v{(PD+x if x<8 else QB+x-8)}")
    for r in range(5):
        a(f"s_add_u32 s{st[2]}, s{sWV}, {8*r}")
        a(f"s_add_u32 s{st[3]}, s{st[2]}, 1")
        a(f"v_readlane_b32 s{st[4]}, v2, s{st[2]}")
        a(f"v_readlane_b32 s{st[5]}, v2, s{st[3]}")
        a(f"v_readlane_b32 s{sRA+r}, v12, s{st[2]}")
        for x in (2*r,2*r+1): a(f"v_fma_f32 v{TB+x}, v{TB+x}, s{sSC}, s{sSC}")
        a(f"s_lshr_b32 s{st[4]}, s{st[4]}, 2")
        a(f"s_lshr_b32 s{st[5]}, s{st[5]}, 2")
        for x in (2*r,2*r+1): a(f"v_rcp_f32 v{TB+x}, v{TB+x}")
        a(f"v_cmp_gt_u32 vcc, s{st[5]}, v6")
        a(f"v_cmp_lt_u32 s[{st[6]}:{st[7]}], s{st[4]}, v7")
        for x in (2*r,2*r+1): a(f"v_mul_f32 v{TB+x}, v{(PD+x if x<8 else QB+x-8)}, v{TB+x}")
        a(f"s_and_b64 vcc, vcc, s[{st[6]}:{st[7]}]")
        for x in (2*r,2*r+1): a(f"v_fma_f32 v{HR+x}, -v{TB+x}, s{sRA+r}, v{HR+x}")
        a(f"s_cmp_lt_u32 s{st[4]}, s{st[5]}")
        a(f"s_cselect_b32 s{sRM+r}, vcc_lo, 0")
        for t,dst in ((0,sRA+r),(1,sRB+r)):
            a(f"s_ff1_i32_b32 s{st[4]}, s{sRM+r}")
            a(f"s_add_u32 s{st[5]}, s{st[4]}, s{st[2]}")
            a(f"s_cmp_eq_u32 s{sRM+r}, 0")
            a(f"s_cselect_b32 s{st[5]}, {ZROW}, s{st[5]}")
            a(f"s_lshl_b32 s{dst}, s{st[5]}, 10")
            a(f"s_add_u32 s{st[4]}, s{sRM+r}, -1")
            a(f"s_and_b32 s{sRM+r}, s{sRM+r}, s{st[4]}")
def main_pro(a):
    tag='c'
    sPW=st[6]
    a(f"s_lshr_b32 s{st[0]}, s{sNT}, 3")
    a(f"s_and_b32 s{st[1]}, s{sNT}, 7")
    a(f"s_cmp_lt_u32 s{sWV}, s{st[1]}")
    a(f"s_cselect_b32 s{st[2]}, 1, 0")
    a(f"s_add_u32 s{sNW}, s{st[0]}, s{st[2]}")
    a(f"s_mul_i32 s{sPW}, s{sWV}, s{st[0]}")
    a(f"s_min_u32 s{st[2]}, s{sWV}, s{st[1]}")
    a(f"s_add_u32 s{sPW}, s{sPW}, s{st[2]}")
    a(f"s_cmp_eq_u32 s{sNW}, 0")
    a(f"s_cbranch_scc1 L_mnone_c")
    a(f"s_sub_u32 s{sCNT}, s{sNW}, 1")
    a(f"s_lshl_b32 s{st[3]}, s{sPW}, 3")
    a(f"s_lshl_b32 s{st[4]}, s{sNW}, 2")
    a("v_lshrrev_b32 v2, 3, v1")
    a("v_lshrrev_b32 v3, 2, v2")
    a("v_and_b32 v4, 3, v2")
    a(f"v_mul_u32_u24 v3, s{st[4]}, v3")
    a(f"v_add3_u32 v3, v3, v4, s{st[3]}")
    a(f"v_lshlrev_b32 v3, 4, v3")
    a(f"v_add_u32 v{vXLa}, {XL}, v3")
    a("v_lshrrev_b32 v2, 5, v1")
    a(f"v_mul_u32_u24 v3, s{st[4]}, v2")
    a(f"v_add_u32 v3, s{st[3]}, v3")
    a("v_bfe_u32 v4, v1, 1, 4")
    a("v_lshlrev_b32 v4, 2, v4")
    a("v_lshl_add_u32 v4, v3, 4, v4")
    a(f"v_add_u32 v{vELa}, {EL}, v4")
    a("v_lshlrev_b32 v4, 2, v3")
    a(f"v_add_u32 v{vQTa}, {QT}, v4")
    a(f"ds_read_b128 {vr(XO)}, v{vXLa}")
    a(f"ds_read_b32 v{EO}, v{vELa}")
    a(f"ds_read_b128 {vr(QTV)}, v{vQTa}")
    a(f"s_lshl_b32 s{st[5]}, s{sWV}, 11")
    a(f"s_add_u32 s{st[5]}, s{st[5]}, {SEG}")
    a("v_and_b32 v4, 31, v1")
    a("v_lshlrev_b32 v4, 3, v4")
    a("v_lshl_add_u32 v4, v2, 10, v4")
    a(f"v_add_u32 v{vSegB}, s{st[5]}, v4")
    a(f"v_and_b32 v{vAe}, 0xfffffbff, v{vAe}")
    a(f"s_mov_b32 s{S_E+2}, {EBYTES}")
    a(f"s_mov_b32 s{S_X+2}, {XBYTES+XBIAS}")
    a("s_waitcnt lgkmcnt(0)")
    for x in off_calc(): a(x)
    for x in flat(dma_e(0))+["s_nop 0"]+dma_x(): a(x)
    a(f"ds_read_b32 v{EO}, v{vELa} offset:64")
    a(f"ds_read_b128 {vr(XO)}, v{vXLa} offset:64")
    wread(a,tag)
    a(f"s_cmp_lt_u32 s{sWV}, 4")
    a("s_cbranch_scc1 k_prep_later")
    seg_prep(a,tag)
    a("k_prep_later:")
    for j in range(4): a(f"v_mov_b64 {vr(ACC+2*j,2)}, 0")
    a(f"v_mov_b32 v{vPN}, v{QTV}")
    a(f"v_lshl_add_u32 v{vPA}, v{QTV}, 1, v{vSegB}")
    a(f"v_add_u32 v{QA}, v{QTV}, v{vQc}")
    for j in range(4): a(f"ds_read_b32 v{FQ+2*j}, v{QA} offset:{j*128}")
    a(f"v_cmp_ne_u32 vcc, v{QTV+3}, v{vPN}")
    a("s_waitcnt lgkmcnt(0)")
    for x in off_calc(): a(x)
    a("s_waitcnt vmcnt(0)")
    for x in read_A(): a(x)
    a(f"s_cmp_gt_u32 s{sCNT}, 0")
    a(f"s_cselect_b32 s{S_E+2}, {EBYTES}, 0")
    for x in flat(dma_e(1)): a(x)
    a(f"ds_read_b32 v{EO}, v{vELa} offset:128")
    a(f"s_cmp_gt_u32 s{sCNT}, 1")
    a(f"s_cselect_b32 s{S_E+2}, {EBYTES}, 0")
    a("s_waitcnt lgkmcnt(0)")
    a(f"v_add_u32 v{EO}, v{EO}, v{vEc}")
    for x in dma_x()+flat(dma_e(0)): a(x)
    for x in chain(D[0],0): a(x)
    a(f"v_add_u32 v{vXLa}, 128, v{vXLa}")
    a(f"v_add_u32 v{vELa}, 192, v{vELa}")
    a(f"v_add_u32 v{vQTa}, 16, v{vQTa}")
    a(f"v_xor_b32 v{vAe}, 1024, v{vAe}")
    a(f"s_add_u32 s{sME}, s{sES}, 1024")
    a(f"v_mov_b32 v{ADY+2}, 0")
    a(f"v_mov_b32 v{ADY+3}, 0")
    if DBG[0]=="stamp":
        a("s_memtime s[100:101]"); a("s_waitcnt lgkmcnt(0)"); a(f"v_writelane_b32 v{vS}, s100, 15")
    if 'prioY' in OPT:
        a(f"s_cmp_ge_u32 s{sWV}, 4")
        a("s_cbranch_scc0 k_noprio")
        a("s_setprio 1")
        a("k_noprio:")
    a(f"s_cmp_lg_u32 s{sSAFE}, 0")
    a("s_cbranch_scc1 L_S_safe")
def main_loops(a,variant):
    tag=variant
    def tail(fall):
        a(f"s_sub_u32 s{sCNT}, s{sCNT}, 1")
        a(f"s_cbranch_scc1 L_fin_{tag}")
        if variant=="pair":
            a(f"s_cbranch_vccz L_F_{tag}")
            if not fall: a(f"s_branch L_D_{tag}")
        else:
            a(f"s_branch L_S_{tag}")
    if variant=="pair":
        a(f"s_cbranch_vccnz L_D_{tag}")
        al=os.environ.get("AL","")
        if al:
            a(".p2align 6")
            for _ in range(int(al)): a("s_nop 0")
        a(f"L_F_{tag}:")
        a.extend(tile("F",variant))
        tail(True)
        a(f"L_D_{tag}:")
        a(f"v_cmp_ne_u32 s[{st[0]}:{st[1]}], v{QTV}, v{vPN}")
        for k in range(1,4): a(f"v_cmp_ne_u32 s[{st[2*k]}:{st[2*k+1]}], v{QTV+k}, v{QTV+k-1}")
        a(f"s_mov_b32 s{st[8]}, 0")
        for k in (3,2,1,0):
            a(f"s_cmp_lg_u64 s[{st[2*k]}:{st[2*k+1]}], 0")
            a(f"s_addc_u32 s{st[8]}, s{st[8]}, s{st[8]}")
        for k in (1,2,3):
            a(f"s_cmp_eq_u32 s{st[8]}, {1<<k}")
            a(f"s_cbranch_scc1 L_T{k}_{tag}")
        a(f"s_cmp_eq_u32 s{st[8]}, 1")
        a(f"s_cbranch_scc0 L_S_{tag}")
        a(f"v_add_u32 v{QA}, v{QTV+3}, v{vQc}")
        for j in range(4): a(f"ds_write_b64 v{vPA}, {vr(ACC+2*j,2)} offset:{j*256}")
        for j in range(4): a(f"ds_read_b32 v{FQ+2*j}, v{QA} offset:{j*128}")
        a(f"v_cndmask_b32_e64 v{KT}, 1.0, 0, s[{st[0]}:{st[1]}]")
        a(f"v_lshl_add_u32 v{vPA}, v{QTV+3}, 1, v{vSegB}")
        a(f"v_mov_b32 v{vPN}, v{QTV+3}")
        for j in range(4): a(f"v_pk_mul_f32 {vr(ACC+2*j,2)}, {vr(ACC+2*j,2)}, {vr(KT,2)} op_sel_hi:[1,0]")
        a("s_waitcnt lgkmcnt(0)")
        a(f"s_branch L_F_{tag}")
        for k in (1,2,3):
            a(f"L_T{k}_{tag}:")
            a.extend(tile(f"T{k}",variant))
            tail(False)
    a(f"L_S_{tag}:")
    a.extend(tile("S",variant))
    tail(False)
    a(f"L_fin_{tag}:")
    if variant=="pair": a("s_branch L_fin_safe")
def main_post(a):
    for j in range(4): a(f"ds_write_b64 v{vPA}, {vr(ACC+2*j,2)} offset:{j*256}")
    a(f"s_cmp_lt_u32 s{sWV}, 4")
    a("s_cbranch_scc0 L_mdone")
    a("s_branch L_lateprep")
    a("L_mnone_c:")
    wread(a,"n")
    a("L_lateprep:")
    seg_prep(a,"late")
    a("L_mdone:")

def masked_fill(a, count, addr_v, data, offset):
    if count>=512:
        a(f"ds_write_b128 v{addr_v}, {vr(data)} offset:{offset}"); return
    a(f"v_cmp_gt_u32 vcc, {count}, v0")
    a(f"s_and_saveexec_b64 s[{st[8]}:{st[9]}], vcc")
    a(f"ds_write_b128 v{addr_v}, {vr(data)} offset:{offset}")
    a(f"s_mov_b64 exec, s[{st[8]}:{st[9]}]")
def fill_region(a, start, nbytes, data):
    n=nbytes//16; assert nbytes%16==0
    o=start
    big = start+nbytes>65535
    if big:
        a(f"v_lshlrev_b32 v{vT2}, 4, v0")
        a(f"v_add_u32 v{vT2}, {start}, v{vT2}")
        o=0
    while n>0:
        masked_fill(a,min(n,512),vT2 if big else vT0,data,o); o+=512*16; n-=512
def init_lists(a,r_sent,r_dummy):
    for i in range(4): a(f"v_mov_b32 v{r_sent+i}, {SENT:#x}")
    fill_region(a,XL,2*LCAP*4,r_sent)
    for i in range(4): a(f"v_mov_b32 v{r_dummy+i}, {40*512}")
    fill_region(a,QT,LCAP,r_dummy)

def phase_a(a):
    a(f"s_mul_i32 s{st[0]}, s2, 10000")
    a("v_lshlrev_b32 v6, 4, v0")
    a(f"v_add_u32 v6, s{st[0]}, v6")
    a(f"buffer_load_dwordx4 v[16:19], v6, s[{S_DST}:{S_DST+3}], 0 offen")
    a(f"buffer_load_dwordx4 v[20:23], v6, s[{S_SRC}:{S_SRC+3}], 0 offen")
    a("v_cmp_gt_u32 vcc, 113, v0")
    a(f"s_and_saveexec_b64 s[{st[6]}:{st[7]}], vcc")
    a(f"s_cbranch_execz pa_r1skip")
    a(f"s_movk_i32 s{st[1]}, 8192")
    a(f"buffer_load_dwordx4 v[24:27], v6, s[{S_DST}:{S_DST+3}], s{st[1]} offen")
    a(f"buffer_load_dwordx4 v[28:31], v6, s[{S_SRC}:{S_SRC+3}], s{st[1]} offen")
    a("pa_r1skip:")
    a(f"s_mov_b64 exec, s[{st[6]}:{st[7]}]")
def phase_w(a):
    a("v_mov_b32 v85, 0x7fffff00")
    a(f"s_cmp_eq_u32 s{sWV}, 7")
    a("s_cbranch_scc0 pa_now")
    a("s_cmp_lt_u32 s2, 144")
    a("s_cbranch_scc0 pa_now")
    a(f"s_and_b32 s{st[0]}, s2, 3")
    a(f"s_lshl_b32 s{st[0]}, s{st[0]}, 6")
    a(f"v_add_u32 v76, s{st[0]}, v1")
    a("v_lshrrev_b32 v77, 2, v76")
    a("v_and_b32 v78, 3, v76")
    a("v_and_b32 v79, 31, v77")
    a("v_lshrrev_b32 v80, 5, v77")
    a("v_lshlrev_b32 v81, 3, v80")
    a("v_lshl_add_u32 v81, v78, 1, v81")
    a("s_cmp_lt_u32 s2, 80")
    a("s_cbranch_scc1 pa_w_main")
    a(f"s_sub_u32 s{st[1]}, s2, 80")
    a(f"s_lshr_b32 s{st[1]}, s{st[1]}, 2")
    a(f"s_add_u32 s{st[2]}, s{st[1]}, 20")
    a(f"s_lshr_b32 s{st[3]}, s{st[1]}, 3")
    a(f"s_and_b32 s{st[4]}, s{st[1]}, 7")
    a(f"s_lshl_b32 s{st[4]}, s{st[4]}, 4")
    a(f"s_lshl_b32 s{st[3]}, s{st[3]}, 5")
    srd(a,S_WR,60,128*64*2)
    a(f"s_movk_i32 s{st[5]}, 128")
    a(f"s_mov_b32 s{sNW}, 0")
    a("s_branch pa_w_go")
    a("pa_w_main:")
    a(f"s_lshr_b32 s{st[2]}, s2, 2")
    a(f"s_mul_i32 s{st[3]}, s{st[2]}, 13")
    a(f"s_lshr_b32 s{st[3]}, s{st[3]}, 6")
    a(f"s_mul_i32 s{st[4]}, s{st[3]}, 5")
    a(f"s_sub_u32 s{st[4]}, s{st[2]}, s{st[4]}")
    a(f"s_cmp_eq_u32 s{st[4]}, 4")
    a(f"s_cselect_b32 s{st[4]}, 8, s{st[4]}")
    a(f"s_lshl_b32 s{st[4]}, s{st[4]}, 4")
    a(f"s_lshl_b32 s{st[3]}, s{st[3]}, 5")
    srd(a,S_WR,56,144*128*2)
    a(f"s_movk_i32 s{st[5]}, 256")
    a(f"s_mov_b32 s{sNW}, 1")
    a("pa_w_go:")
    a(f"v_add_u32 v81, s{st[4]}, v81")
    a(f"v_add_u32 v79, s{st[3]}, v79")
    a(f"v_mul_lo_u32 v81, v81, s{st[5]}")
    a("v_lshl_add_u32 v81, v79, 1, v81")
    a(f"v_add_u32 v82, s{st[5]}, v81")
    a(f"buffer_load_ushort v83, v81, s[{S_WR}:{S_WR+3}], 0 offen")
    a(f"buffer_load_ushort v84, v82, s[{S_WR}:{S_WR+3}], 0 offen")
    a(f"s_lshl_b32 s{st[2]}, s{st[2]}, 10")
    a(f"v_lshl_add_u32 v85, v76, 2, s{st[2]}")
    a("pa_now:")
def phase_w2(a):
    a(f"s_cmp_eq_u32 s{sWV}, 7")
    a("s_cbranch_scc0 pa_now2")
    a("s_cmp_lt_u32 s2, 144")
    a("s_cbranch_scc0 pa_now2")
    a("v_lshl_or_b32 v86, v84, 16, v83")
    a(f"s_cmp_eq_u32 s{sNW}, 0")
    a("s_cbranch_scc1 pa_w_st")
    a("v_lshlrev_b32 v83, 16, v83")
    a("v_lshlrev_b32 v84, 16, v84")
    a(f"s_mov_b32 s{st[8]}, {f2u(NEG_LOG2E):#x}")
    a(f"v_mul_f32 v83, s{st[8]}, v83")
    a(f"v_mul_f32 v84, s{st[8]}, v84")
    a("v_cvt_pk_bf16_f32 v86, v83, v84")
    a("pa_w_st:")
    a(f"buffer_store_dword v86, v85, s[{S_W}:{S_W+3}], 0 offen sc1")
    a("pa_now2:")

def q_tile(a):
    WB=PN; QD=W+16
    a("v_bfe_u32 v11, v1, 2, 2")
    a("v_lshrrev_b32 v12, 5, v1")
    a("v_lshl_add_u32 v11, v12, 3, v11")
    a("v_lshlrev_b32 v11, 8, v11")
    a("v_bfe_u32 v12, v1, 4, 1")
    a("v_lshl_add_u32 v11, v12, 5, v11")
    a("v_and_b32 v12, 3, v1")
    a("v_lshl_add_u32 v11, v12, 3, v11")
    a(f"s_and_b32 s{st[2]}, s{sWV}, 3")
    a(f"s_lshl_b32 s{st[2]}, s{st[2]}, 6")
    a(f"s_add_u32 s{st[2]}, s{st[2]}, {WST}")
    a(f"v_add_u32 v11, s{st[2]}, v11")
    for ks in range(4):
        a(f"ds_read_b64_tr_b16 {vr(WB+4*ks,2)}, v11 offset:{ks*4096}")
        a(f"ds_read_b64_tr_b16 {vr(WB+4*ks+2,2)}, v11 offset:{ks*4096+1024}")
    a("s_waitcnt lgkmcnt(0)")
    a(mfma(QD,A,WB,None))
    for ks in range(1,4): a(mfma(QD,A+4*ks,WB+4*ks,QD))
    a(f"v_lshlrev_b32 v{PD+4}, 16, v{PD+4}")
    a(f"s_mov_b32 s{st[5]}, {f2u(NEG_LOG2E):#x}")
    a(f"s_lshr_b32 s{st[1]}, s{sWV}, 2")
    a(f"s_and_b32 s{st[2]}, s{sWV}, 3")
    a("v_lshrrev_b32 v5, 5, v1")
    a("v_and_b32 v4, 31, v1")
    a(f"s_lshl_b32 s{st[3]}, s{st[1]}, 14")
    a(f"s_lshl_b32 s{st[4]}, s{st[2]}, 7")
    a(f"s_add_u32 s{st[3]}, s{st[3]}, s{st[4]}")
    a(f"s_add_u32 s{st[3]}, s{st[3]}, {QP}")
    a("v_lshlrev_b32 v12, 11, v5")
    a("v_lshl_add_u32 v12, v4, 2, v12")
    a(f"v_add_u32 v12, s{st[3]}, v12")
    a("s_nop 1")
    for r in range(16):
        if r==4:
            a(f"s_cmp_eq_u32 s{st[1]}, 0")
            a("s_cbranch_scc0 k_qdone")
        t=KT+(r&3)
        a(f"v_add_f32 v{QD+r}, v{QD+r}, v{PD+4}")
        a(f"v_mul_f32 v{QD+r}, s{st[5]}, v{QD+r}")
        a(f"v_cvt_pk_bf16_f32 v{t}, v{QD+r}, v{QD+r}")
        a(f"v_lshlrev_b32 v{vT1}, 16, v{t}")
        a(f"v_sub_f32 v{vT1}, v{QD+r}, v{vT1}")
        a(f"v_cvt_pk_bf16_f32 v{t}, v{QD+r}, v{vT1}")
        a(f"ds_write_b32 v12, v{t} offset:{((r>>2)*8+(r&3))*512}")
    a("k_qdone:")
def phase_a2(a,dbg=None):
    a(f"s_mov_b32 s{st[0]}, {MAGIC}")
    a(f"s_movk_i32 s{st[1]}, 625")
    a(f"s_movk_i32 s{st[2]}, {IMG_S}")
    a(f"s_mov_b32 s{st[3]}, {CNT}")
    a(f"s_mov_b32 s{st[4]}, {IMG+4}")
    a("v_mov_b32 v5, 1")
    def rnd(r,dv,sv,tv):
        for i in range(4): a(f"v_mul_hi_u32 v{tv+i}, v{dv+i}, s{st[0]}")
        for i in range(4):
            a(f"v_lshl_add_u32 v{tv+4+i}, v{tv+i}, 2, s{st[3]}")
            a(f"ds_add_rtn_u32 v{tv+4+i}, v{tv+4+i}, v5")
        for i in range(4):
            a(f"v_mad_u32_u24 v{tv+8+i}, v{tv+i}, s{st[1]}, 15")
            a(f"v_lshrrev_b32 v{tv+8+i}, 4, v{tv+8+i}")
            a(f"v_sub_u32 v{tv+8+i}, v{dv+i}, v{tv+8+i}")
            a(f"v_lshlrev_b32 v{tv+8+i}, 26, v{tv+8+i}")
            a(f"v_mad_u32_u24 v{tv+12+i}, v{tv+i}, s{st[2]}, s{st[4]}") if False else a(f"v_mul_u32_u24 v{tv+12+i}, s{st[2]}, v{tv+i}")
            a(f"v_or3_b32 v{tv+8+i}, v{tv+8+i}, v7, v{sv+i}")
            if i: a(f"v_or_b32 v{tv+8+i}, {i<<14}, v{tv+8+i}")
            a(f"v_add_u32 v{tv+12+i}, s{st[4]}, v{tv+12+i}")
    def wr(tv):
        for i in range(4):
            a(f"v_min_u32 v{tv+4+i}, 31, v{tv+4+i}")
            a(f"v_lshl_add_u32 v{tv+4+i}, v{tv+4+i}, 2, v{tv+12+i}")
            a(f"ds_write_b32 v{tv+4+i}, v{tv+8+i}")
    a("v_lshlrev_b32 v7, 16, v0")
    rnd(0,16,20,32)
    a("v_cmp_gt_u32 vcc, 113, v0")
    a(f"s_and_saveexec_b64 s[{st[6]}:{st[7]}], vcc")
    a("s_cbranch_execz pa_r1done")
    a(f"v_add_u32 v7, {(4*512)<<14}, v7")
    rnd(1,24,28,48)
    a("s_waitcnt lgkmcnt(0)")
    wr(48)
    a("pa_r1done:")
    a(f"s_mov_b64 exec, s[{st[6]}:{st[7]}]")
    a("s_waitcnt lgkmcnt(0)")
    wr(32)
    a("v_lshrrev_b32 v4, 2, v0")
    a("v_and_b32 v5, 3, v0")
    a(f"v_mul_u32_u24 v6, {IMG_S}, v4")
    a("v_lshl_add_u32 v6, v5, 4, v6")
    a(f"v_add_u32 v6, {IMG}, v6")
    a("v_lshlrev_b32 v7, 2, v4")
    a(f"v_add_u32 v7, {CNT}, v7")
    a("v_lshlrev_b32 v8, 4, v0")
    a(f"s_mul_i32 s{st[0]}, s2, {CST}")
    a(f"s_add_u32 s{st[1]}, s{st[0]}, 8192")
    a(f"s_add_u32 s{st[2]}, s{st[0]}, {TB_OFF}")
    a(f"s_add_u32 s{st[3]}, s{st[2]}, 8192")
    a("s_waitcnt lgkmcnt(0)")
    a("s_barrier")
    for r in range(2):
        a(f"ds_read_b32 v{32+r}, v7 offset:{r*512}")
        a(f"ds_read_b128 v[{16+4*r}:{19+4*r}], v6 offset:{r*128*IMG_S}")
        a(f"ds_read_b128 v[{24+4*r}:{27+4*r}], v6 offset:{r*128*IMG_S+64}")
    a("v_mov_b32 v9, 0")
    a(f"buffer_load_dword v73, v9, s[{S_DBG}:{S_DBG+3}], 0 offen sc1")
    a("v_cmp_eq_u32 vcc, 0, v5")
    a("s_nop 0")
    a("s_waitcnt lgkmcnt(0)")
    for r in range(2): a(f"v_cndmask_b32 v{16+4*r}, v{16+4*r}, v{32+r}, vcc")
    stf = "" if 'plainst' in OPT else " sc1"
    if 'sc01' in OPT: stf=" sc0 sc1"
    if 'ntst' in OPT: stf=" sc1 nt"
    if 'nostore' not in OPT:
        for r in range(2): a(f"buffer_store_dwordx4 v[{16+4*r}:{19+4*r}], v8, s[{S_T}:{S_T+3}], s{st[r]} offen{stf}")
    for r in range(2):
        a(f"v_cmp_lt_u32 vcc, 15, v{32+r}")
        a(f"s_and_saveexec_b64 s[{st[6]}:{st[7]}], vcc")
        a(f"s_cbranch_execz pa_nob_{r}")
        a(f"buffer_store_dwordx4 v[{24+4*r}:{27+4*r}], v8, s[{S_T}:{S_T+3}], s{st[2+r]} offen sc1")
        a(f"pa_nob_{r}:")
        a(f"s_mov_b64 exec, s[{st[6]}:{st[7]}]")
    phase_w2(a)
    a("s_waitcnt vmcnt(0)")
    a("s_barrier")

def q_rows(a):
    t=[st[4],st[5],st[6],st[7],st[8]]
    a("v_and_b32 v10, 31, v1")
    a("v_lshrrev_b32 v11, 5, v1")
    a(f"s_lshr_b32 s{t[0]}, s{sWV}, 2")
    a(f"s_and_b32 s{t[1]}, s{sWV}, 3")
    a(f"s_lshl_b32 s{t[2]}, s{t[0]}, 5")
    a(f"s_add_u32 s{t[2]}, s{t[2]}, s{sNB}")
    a(f"v_add_u32 v12, s{t[2]}, v10")
    a("v_lshlrev_b32 v12, 7, v12")
    a("v_lshl_add_u32 v12, v11, 4, v12")
    for ks in range(4): a(f"buffer_load_dwordx4 {vr(A+4*ks)}, v12, s[{S_X}:{S_X+3}], s{sXO} offen offset:{ks*32}")
    a(f"s_lshl_b32 s{t[3]}, s{t[1]}, 6")
    a(f"v_lshl_add_u32 v12, v10, 1, s{t[3]}")
    a(f"buffer_load_ushort v{PD+4}, v12, s[{S_B1}:{S_B1+3}], 0 offen")
def w1b_loads(a):
    a("v_and_b32 v12, 255, v0")
    a("v_lshlrev_b32 v12, 4, v12")
    for k in range(4):
        a(f"s_movk_i32 s{st[4]}, {16384+k*4096}")
        a(f"buffer_load_dwordx4 v[{48+4*k}:{51+4*k}], v12, s[{S_W1}:{S_W1+3}], s{st[4]} offen")
def x_prefetch(a):
    if 'nox' not in OPT:
        a(f"s_lshr_b32 s{st[0]}, s2, 3")
        a(f"s_mul_i32 s{st[0]}, s{st[0]}, 40000")
        a(f"s_sub_u32 s{st[1]}, s{sWV}, 1")
        a(f"s_mul_i32 s{st[1]}, s{st[1]}, 6144")
        a(f"s_add_u32 s{st[0]}, s{st[0]}, s{st[1]}")
        a(f"s_add_u32 s{st[0]}, s{st[0]}, {XBIAS}")
        a(f"s_add_u32 s{st[1]}, s{st[0]}, 4096")
        a("v_lshlrev_b32 v6, 4, v1")
        for k in range(6):
            a(f"buffer_load_dwordx4 v[16:19], v6, s[{S_X}:{S_X+3}], s{st[k>>2]} offen offset:{(k&3)*1024}")

def consts(a):
    EB=QA
    a("v_lshrrev_b32 v2, 3, v1")
    a("v_and_b32 v3, 7, v1")
    a("v_and_b32 v4, 31, v1")
    a("v_lshrrev_b32 v5, 5, v1")
    a(f"s_mul_i32 s{sXS}, s{sWV}, {XS_W}")
    a(f"s_add_u32 s{sXS}, s{sXS}, {XS}")
    a(f"s_lshl_b32 s{sES}, s{sWV}, 11")
    a(f"s_add_u32 s{sES}, s{sES}, {ES}")
    a(f"s_mov_b32 s{sSC}, 0x33800000")
    a(f"s_mov_b32 s{sSC+1}, 0x33800000")
    a(f"s_mov_b32 s{sSLOW}, 0")
    a(f"s_mov_b32 s{sSAFE}, 0")
    a("v_lshlrev_b32 v7, 1, v2")
    a("v_and_b32 v7, 4, v7")
    a("v_xor_b32 v7, v3, v7")
    a(f"v_lshlrev_b32 v{vXc}, 4, v7")
    a("v_lshrrev_b32 v7, 4, v1")
    a("v_xor_b32 v7, v1, v7")
    a("v_and_b32 v7, 1, v7")
    a(f"v_lshlrev_b32 v{vEc}, 4, v7")
    a("v_and_b32 v7, 3, v4")
    a("v_bfe_u32 v8, v4, 2, 1")
    a("v_lshrrev_b32 v9, 3, v4")
    a("v_lshl_add_u32 v10, v8, 2, v9")
    a("v_mul_u32_u24 v11, 1040, v7")
    a("v_lshl_add_u32 v11, v10, 7, v11")
    a("v_lshl_add_u32 v11, v5, 4, v11")
    a(f"v_add_u32 v11, s{sXS}, v11")
    a("v_bfe_u32 v12, v10, 1, 1")
    a("v_lshlrev_b32 v12, 6, v12")
    a(f"v_add_u32 v{vAx01}, v11, v12")
    a(f"v_sub_u32 v{vAx23}, v11, v12")
    a("v_lshl_add_u32 v11, v10, 2, v7")
    a("v_bfe_u32 v12, v11, 3, 1")
    a("v_xor_b32 v12, v5, v12")
    a("v_lshlrev_b32 v12, 4, v12")
    a("v_lshl_add_u32 v12, v11, 5, v12")
    a(f"v_add_u32 v{vAe}, s{sES}, v12")
    a(f"v_lshlrev_b32 v{vQc}, 2, v4")
    a(f"v_add_u32 v{vQc}, {QP}, v{vQc}")
    a("v_lshlrev_b32 v12, 2, v5")
    a("v_sub_u32 v12, v10, v12")
    a("v_mov_b32 v15, 0x3f803f80")
    for r in range(4): a(f"v_cmp_eq_u32 s[{st[0]+2*r}:{st[1]+2*r}], {r}, v12")
    a("v_cmp_eq_u32 vcc, v8, v5")
    for r in range(4): a(f"v_cndmask_b32_e64 v{ACS+r}, 0, v15, s[{st[0]+2*r}:{st[1]+2*r}]")
    for i in range(12): a(f"v_mov_b32 v{FQ+i}, 0")
    a(f"v_cndmask_b32 v{ACF}, 0, v15, vcc")
    for i in range(10): a(f"v_mov_b32 v{HR+i}, 0")
    a(f"v_lshlrev_b32 v{vT0}, 4, v0")
    init_lists(a,KT,KT+4)
    for i in range(4): a(f"v_mov_b32 v{KT+i}, 0")
    fill_region(a,QP+40*512,512,KT)
    fill_region(a,SEG+ZROW*1024,1024,KT)
    a("v_lshrrev_b32 v2, 2, v1")
    a(f"s_lshl_b32 s{st[0]}, s{sWV}, 5")
    a(f"v_add_u32 v2, s{st[0]}, v2")
    a("v_mul_u32_u24 v2, 2500, v2")
    a(f"v_mov_b32 v{EB}, v2")
    a(f"v_add_u32 v{EB+1}, {16*2500}, v2")
    a("v_and_b32 v3, 3, v1")
    for i in range(4):
        a(f"v_lshlrev_b32 v{XO+i}, 2, v3")
        a(f"v_add_u32 v{XO+i}, {i-1}, v{XO+i}")

def gen(dbg=None):
    DBG[0]=dbg
    a=Asm()
    R=D[0]; HD=PD; RANK=EE; EB=QA; WB=PN; ND=D[1]
    a("s_cmp_ge_u32 s2, 256")
    a("s_cbranch_scc1 k_end")
    if dbg=="stamp": a(f"v_mov_b32 v{vS}, 0")
    if dbg!="dbgtime": stamp(a,0,11)
    a("s_load_dwordx16 s[48:63], s[0:1], 0")
    a("s_load_dwordx4 s[64:67], s[0:1], 64")
    a("s_load_dwordx2 s[46:47], s[0:1], 80")
    a("v_and_b32 v1, 63, v0")
    a("v_lshrrev_b32 v2, 6, v0")
    a("s_mul_i32 s43, s2, 625")
    a(f"v_readfirstlane_b32 s{sWV}, v2")
    if dbg=="dbgtime":
        a("s_nop 3"); stamp(a,0)
    a(f"v_lshlrev_b32 v{vT0}, 4, v0")
    for i in range(4): a(f"v_mov_b32 v{KT+i}, 0")
    fill_region(a,HIST,XL,KT)
    fill_region(a,CNT,1024,KT)
    a("s_add_u32 s44, s43, 640")
    a("s_add_u32 s43, s43, 15")
    a("s_lshr_b32 s43, s43, 4")
    a("s_lshr_b32 s44, s44, 4")
    a("s_sub_u32 s44, s44, s43")
    a("v_lshrrev_b32 v2, 3, v1")
    a("v_and_b32 v3, 7, v1")
    a("v_and_b32 v4, 31, v1")
    a("v_lshrrev_b32 v5, 5, v1")
    a("s_waitcnt lgkmcnt(0)")
    srd(a,S_DST,54,E*4); srd(a,S_SRC,52,E*4)
    phase_a(a)
    phase_w(a)
    a("s_barrier")
    a(f"s_sub_u32 s{S_X}, s48, {XBIAS}")
    a(f"s_subb_u32 s{S_X+1}, s49, 0")
    a(f"s_and_b32 s{S_X+1}, s{S_X+1}, 0xffff")
    a(f"s_mov_b32 s{S_X+2}, {XBYTES+XBIAS}")
    a(f"s_mov_b32 s{S_X+3}, 0x20000")
    srd(a,S_DBG,66,256); srd(a,S_B1,58,256); srd(a,S_W1,56,144*128*2)
    a(f"s_movk_i32 s{sXO}, {XBIAS}")
    a(f"s_movk_i32 s{sXO+1}, {XBIAS-1040}")
    a(f"s_movk_i32 s{sXO+2}, {XBIAS-2080}")
    a("s_cmp_eq_u32 s2, 0")
    a("s_cbranch_scc0 k_notag")
    a(f"s_cmp_eq_u32 s{sWV}, 6")
    a("s_cbranch_scc0 k_notag")
    a(f"s_memrealtime s[{st[4]}:{st[5]}]")
    a("s_waitcnt lgkmcnt(0)")
    a(f"s_or_b32 s{st[4]}, s{st[4]}, 1")
    a(f"v_mov_b32 v6, s{st[4]}")
    a("v_mov_b32 v7, 0")
    a(f"buffer_store_dword v6, v7, s[{S_DBG}:{S_DBG+3}], 0 offen sc1")
    a("k_notag:")
    srd(a,S_E,50,EBYTES); srd(a,S_T,46,2*256*CST); srd(a,S_W,46,WF_BYTES,WF_OFF); srd(a,S_FL,46,8192,FL_OFF)
    srd(a,S_O,64,N*128)
    a("s_waitcnt vmcnt(0)")
    phase_a2(a,dbg)
    stamp(a,3)
    a(f"s_cmp_eq_u32 s{sWV}, 0")
    a("s_cbranch_scc0 k_nosig")
    a(f"v_readfirstlane_b32 s{sB0}, v73")
    a(f"s_mov_b32 s{st[1]}, 400000")
    a("k_tagpoll:")
    a(f"s_cmp_lg_u32 s{sB0}, 0")
    a("s_cbranch_scc1 k_tagdone")
    a("v_mov_b32 v6, 0")
    a(f"buffer_load_dword v7, v6, s[{S_DBG}:{S_DBG+3}], 0 offen sc1")
    a("s_waitcnt vmcnt(0)")
    a(f"v_readfirstlane_b32 s{sB0}, v7")
    a(f"s_sub_u32 s{st[1]}, s{st[1]}, 1")
    a("s_cbranch_scc0 k_tagpoll")
    a("k_tagdone:")
    if 'sigstamp' in OPT: stamp(a,1)
    if True:
        a(f"s_lshr_b32 s{st[2]}, s2, 2")
        a(f"s_lshl_b32 s{st[2]}, s{st[2]}, 7")
        a(f"s_and_b32 s{st[3]}, s2, 3")
        a(f"s_lshl_b32 s{st[3]}, s{st[3]}, 2")
        a(f"s_add_u32 s{st[2]}, s{st[2]}, s{st[3]}")
    else:
        a(f"s_lshl_b32 s{st[2]}, s2, 2")
    a(f"v_mov_b32 v6, s{st[2]}")
    a(f"v_mov_b32 v7, s{sB0}")
    a(f"s_mov_b64 s[{st[6]}:{st[7]}], exec")
    a("s_mov_b64 exec, 1")
    a(f"buffer_store_dword v7, v6, s[{S_FL}:{S_FL+3}], 0 offen sc1")
    a(f"s_mov_b64 exec, s[{st[6]}:{st[7]}]")
    if 'sigstamp' in OPT:
        a("s_waitcnt vmcnt(0)")
        stamp(a,5)
    a("k_nosig:")
    a(f"s_cmp_eq_u32 s{sWV}, 0")
    a("s_cbranch_scc1 k_w0c")
    q_rows(a)
    a(f"s_cmp_ge_u32 s{sWV}, 4")
    a("s_cbranch_scc0 k_now1b")
    w1b_loads(a)
    a("k_now1b:")
    x_prefetch(a)
    a("k_w0c:")
    consts(a)
    a(f"s_cmp_ge_u32 s{sWV}, 4")
    a("s_cbranch_scc0 k_nostage")
    a("s_waitcnt vmcnt(%d)"%(0 if 'nox' in OPT else 6))
    a("v_and_b32 v9, 255, v0")
    a("v_lshlrev_b32 v9, 4, v9")
    a(f"v_add_u32 v9, {WST}, v9")
    for k in range(4): a(f"ds_write_b128 v9, v[{48+4*k}:{51+4*k}] offset:{k*4096}")
    a("s_waitcnt lgkmcnt(0)")
    a("k_nostage:")
    a(f"s_cmp_eq_u32 s{sWV}, 0")
    a("s_cbranch_scc0 k_wait_done")
    a("k_dopoll:")
    a("v_lshlrev_b32 v6, %d, v1"%7)
    a(f"s_mov_b32 s{st[1]}, 400000")
    a("s_sleep %d"%int(os.environ.get("D0","12")))
    a("k_poll:")
    a(f"buffer_load_dwordx4 v[8:11], v6, s[{S_FL}:{S_FL+3}], 0 offen %s"%"sc0 sc1")
    a("s_waitcnt vmcnt(0)")
    a(f"v_cmp_ne_u32 vcc, s{sB0}, v8")
    a(f"v_cmp_ne_u32 s[{st[4]}:{st[5]}], s{sB0}, v9")
    a(f"s_or_b64 vcc, vcc, s[{st[4]}:{st[5]}]")
    a(f"v_cmp_ne_u32 s[{st[4]}:{st[5]}], s{sB0}, v10")
    a(f"s_or_b64 vcc, vcc, s[{st[4]}:{st[5]}]")
    a(f"v_cmp_ne_u32 s[{st[4]}:{st[5]}], s{sB0}, v11")
    a(f"s_or_b64 vcc, vcc, s[{st[4]}:{st[5]}]")
    a("s_cmp_eq_u64 vcc, 0")
    a("s_cbranch_scc1 k_wait_done")
    a(f"s_sub_u32 s{st[1]}, s{st[1]}, 1")
    a("s_cbranch_scc1 k_wait_done")
    a("s_sleep %d"%int(os.environ.get("D1","4")))
    a("s_branch k_poll")
    a("k_wait_done:")
    srd(a,S_B2,62,128)
    if 'sigstamp' in OPT:
        stamp(a,2)
        a(f"v_writelane_b32 v{vS}, s{st[1]}, 6")
    a("v_lshrrev_b32 v15, 2, v1")
    a(f"v_mul_u32_u24 v15, {CST}, v15")
    a("v_and_b32 v14, 3, v1")
    a("v_lshl_add_u32 v13, v14, 4, v15")
    a(f"s_mul_i32 s{st[0]}, s{sWV}, {32*CST}")
    a(f"s_lshl_b32 s{st[1]}, s2, 6")
    a(f"s_add_u32 s{st[0]}, s{st[0]}, s{st[1]}")
    a(f"s_add_u32 s{st[1]}, s{st[0]}, {16*CST}")
    a(f"s_add_u32 s{st[2]}, s{st[0]}, {TB_OFF}")
    a(f"s_add_u32 s{st[3]}, s{st[1]}, {TB_OFF}")
    a("v_lshlrev_b32 v14, 4, v1")
    a(f"s_lshl_b32 s{st[6]}, s{sWV}, 10")
    a(f"s_add_u32 s{st[5]}, s{st[6]}, 8192")
    a(f"s_add_u32 s{st[7]}, s{st[6]}, 16384")
    a(f"s_cmp_eq_u32 s{sWV}, 0")
    a("s_cbranch_scc0 k_w0r")
    a(f"s_mov_b32 s{sCNT}, s{st[5]}")
    a(f"s_mov_b32 s{sME}, s{st[6]}")
    a(f"s_mov_b32 s{sNW}, s{st[7]}")
    q_rows(a)
    a(f"s_mov_b32 s{st[5]}, s{sCNT}")
    a(f"s_mov_b32 s{st[6]}, s{sME}")
    a(f"s_mov_b32 s{st[7]}, s{sNW}")
    a("k_w0r:")
    a("s_waitcnt lgkmcnt(0)")
    a("s_barrier")
    stamp(a,4)
    ldf=os.environ.get("LDF","sc1")
    for k in range(2): a(f"buffer_load_dwordx4 {vr(R+4*k)}, v13, s[{S_T}:{S_T+3}], s{st[k]} offen {ldf}")
    WT=W
    a("s_waitcnt vmcnt(2)")
    q_tile(a)
    a(f"s_add_u32 s{st[2]}, s{st[0]}, {TB_OFF}")
    a(f"s_add_u32 s{st[3]}, s{st[2]}, {16*CST}")
    for i in range(4): a(f"v_add_u32 v{KT+i}, 16, v{XO+i}")
    a("s_waitcnt vmcnt(0)")
    for k in range(2): a(f"v_mov_b32_dpp v{HD+k}, v{R+4*k} quad_perm:[0,0,0,0] row_mask:0xf bank_mask:0xf")
    a("s_nop 1")
    for k in range(2):
        a(f"v_cmp_lt_u32 vcc, 15, v{HD+k}")
        a(f"s_and_saveexec_b64 s[{st[8]}:{st[9]}], vcc")
        a(f"s_cbranch_execz k_nob_{k}")
        a(f"buffer_load_dwordx4 {vr(R+8+4*k)}, v13, s[{S_T}:{S_T+3}], s{st[2+k]} offen sc1")
        a(f"k_nob_{k}:")
        a(f"s_mov_b64 exec, s[{st[8]}:{st[9]}]")
    a(f"s_lshl_b32 s{st[6]}, s{sWV}, 10")
    a(f"s_add_u32 s{st[5]}, s{st[6]}, 8192")
    a(f"s_add_u32 s{st[7]}, s{st[6]}, 16384")
    a(f"buffer_load_dwordx4 {vr(WT)}, v14, s[{S_W}:{S_W+3}], s{st[6]} offen sc1")
    a(f"buffer_load_dwordx4 {vr(WT+4)}, v14, s[{S_W}:{S_W+3}], s{st[5]} offen sc1")
    a(f"buffer_load_dwordx4 {vr(WT+8)}, v14, s[{S_W}:{S_W+3}], s{st[7]} offen sc1")
    for k in range(2):
        for i in range(4):
            a(f"v_cmp_lt_u32 s[{sMK+2*(4*k+i)}:{sMK+2*(4*k+i)+1}], v{XO+i}, v{HD+k}")
    for k in range(2):
        for i in range(4):
            a(f"v_cmp_lt_u32 s[{sMK+2*(8+4*k+i)}:{sMK+2*(8+4*k+i)+1}], v{KT+i}, v{HD+k}")
    a(f"v_max_u32 v{vT0}, v{HD}, v{HD+1}")
    a(f"v_cmp_lt_u32 vcc, 31, v{vT0}")
    a("s_cbranch_vccz k_noovf")
    a(f"v_mov_b32 v{vT0}, {FLAG}")
    a(f"v_mov_b32 v{vT1}, 1")
    a(f"ds_write_b32 v{vT0}, v{vT1}")
    a("k_noovf:")
    if 'sigstamp' not in OPT: stamp(a,5)
    uid=[0]
    def hist(a):
        uid[0]+=1
        a(f"v_mov_b32 v{vT1}, 1")
        for e in range(8):
            a(f"v_lshrrev_b32 v{ND+e}, 26, v{R+e}")
            a(f"v_lshlrev_b32 v{RANK+e}, 2, v{ND+e}")
        for e in range(8):
            a(f"s_mov_b64 exec, s[{sMK+2*e}:{sMK+2*e+1}]")
            a(f"ds_add_rtn_u32 v{RANK+e}, v{RANK+e}, v{vT1}")
        a("s_waitcnt vmcnt(%d)"%(3 if uid[0]==1 else 0))
        for e in range(8,16):
            a(f"s_mov_b64 exec, s[{sMK+2*e}:{sMK+2*e+1}]")
            a(f"s_cbranch_execz k_hskip_{uid[0]}_{e}")
            a(f"v_lshrrev_b32 v{ND+e}, 26, v{R+e}")
            a(f"v_lshlrev_b32 v{RANK+e}, 2, v{ND+e}")
            a(f"ds_add_rtn_u32 v{RANK+e}, v{RANK+e}, v{vT1}")
            a(f"k_hskip_{uid[0]}_{e}:")
        a("s_mov_b64 exec, -1")
    hist(a)
    a("s_waitcnt lgkmcnt(0)")
    if 'sigstamp' not in OPT: stamp(a,6)
    a("s_barrier")
    a("k_scan:")
    a(f"v_lshlrev_b32 v{vT0}, 2, v1")
    a(f"ds_read_b32 v{PN}, v{vT0} offset:{HIST}")
    a(f"v_mov_b32 v{vT1}, {FLAG}")
    a(f"ds_read_b32 v{PN+1}, v{vT1}")
    a("s_waitcnt lgkmcnt(0)")
    a(f"v_add_u32 v{PN+2}, 3, v{PN}")
    a(f"v_and_b32 v{PN+2}, -4, v{PN+2}")
    a(f"v_mov_b32 v{PN+3}, v{PN+2}")
    for sh in ("row_shr:1 row_mask:0xf","row_shr:2 row_mask:0xf","row_shr:4 row_mask:0xf","row_shr:8 row_mask:0xf","row_bcast:15 row_mask:0xa","row_bcast:31 row_mask:0xc"):
        a("s_nop 1")
        a(f"v_add_u32_dpp v{PN+3}, v{PN+3}, v{PN+3} {sh} bank_mask:0xf")
    a("s_nop 0")
    a(f"v_readlane_b32 s{sTOT}, v{PN+3}, 63")
    a(f"v_readfirstlane_b32 s{st[0]}, v{PN+1}")
    a(f"v_sub_u32 v{PN+3}, v{PN+3}, v{PN+2}")
    a(f"s_bitcmp1_b32 s{sSLOW}, 0")
    a("s_cbranch_scc1 k_okcap")
    a(f"s_cmp_gt_u32 s{sTOT}, {LCAP}")
    a(f"s_cselect_b32 s{st[1]}, 1, 0")
    a(f"s_or_b32 s{st[0]}, s{st[0]}, s{st[1]}")
    a(f"s_cmp_lg_u32 s{st[0]}, 0")
    a("s_cbranch_scc1 k_goslow")
    a("k_okcap:")
    a(f"s_add_u32 s{sNT}, s{sTOT}, 31")
    a(f"s_lshr_b32 s{sNT}, s{sNT}, 5")
    BS=A
    for e in range(8):
        a(f"v_lshlrev_b32 v{vT1}, 2, v{ND+e}")
        a(f"ds_bpermute_b32 v{BS+e}, v{vT1}, v{PN+3}")
    for e in range(8,16):
        a(f"s_cmp_eq_u64 s[{sMK+2*e}:{sMK+2*e+1}], 0")
        a(f"s_cbranch_scc1 k_bskip_{e}")
        a(f"v_lshlrev_b32 v{vT1}, 2, v{ND+e}")
        a(f"ds_bpermute_b32 v{BS+e}, v{vT1}, v{PN+3}")
        a(f"k_bskip_{e}:")
    a(f"s_cmp_eq_u32 s{sWV}, 0")
    a("s_cbranch_scc0 k_nodeg")
    a(f"ds_add_u32 v{vT0}, v{PN} offset:{DEG}")
    a(f"ds_write_b32 v{vT0}, v{PN+3} offset:{BASE}")
    a("k_nodeg:")
    a(f"s_movk_i32 s{st[0]}, 0x3fff")
    for e in range(8):
        k=(e>>2)&1
        a(f"v_lshlrev_b32 v{ND+e}, 9, v{ND+e}")
        a(f"v_bfe_u32 v{KT+e}, v{R+e}, 14, 12")
        a(f"v_and_b32 v{R+e}, s{st[0]}, v{R+e}")
        a(f"v_add_lshl_u32 v{KT+e}, v{KT+e}, v{EB+k}, 5")
        a(f"v_lshlrev_b32 v{R+e}, 7, v{R+e}")
    a("s_waitcnt lgkmcnt(0)")
    for e in range(16):
        k=(e>>2)&1
        if e>=8:
            a(f"s_mov_b64 exec, s[{sMK+2*e}:{sMK+2*e+1}]")
            a(f"s_cbranch_execz k_sskip_{e}")
            a(f"v_lshlrev_b32 v{ND+e}, 9, v{ND+e}")
            a(f"v_bfe_u32 v{vT2}, v{R+e}, 14, 12")
            a(f"v_and_b32 v{R+e}, s{st[0]}, v{R+e}")
            a(f"v_add_lshl_u32 v{vT2}, v{vT2}, v{EB+k}, 5")
            a(f"v_lshlrev_b32 v{R+e}, 7, v{R+e}")
        ev = KT+e if e<8 else vT2
        a(f"v_add_u32 v{BS+e}, v{BS+e}, v{RANK+e}")
        a(f"v_and_b32 v{vT1}, -4, v{BS+e}")
        a(f"v_lshlrev_b32 v{BS+e}, 2, v{BS+e}")
        if e<8: a(f"s_mov_b64 exec, s[{sMK+2*e}:{sMK+2*e+1}]")
        a(f"ds_write_b32 v{BS+e}, v{R+e} offset:{XL}")
        a(f"ds_write_b32 v{BS+e}, v{ev} offset:{EL}")
        a(f"ds_write_b32 v{vT1}, v{ND+e} offset:{QT}")
        if e<8: a("s_mov_b64 exec, -1")
        else: a(f"k_sskip_{e}:")
    a("s_mov_b64 exec, -1")
    a(f"s_bitcmp1_b32 s{sSLOW}, 1")
    a("s_cbranch_scc1 k_w3")
    a(f"s_bitcmp1_b32 s{sSLOW}, 2")
    a("s_cbranch_scc1 k_w3")
    a(f"s_or_b32 s{sSLOW}, s{sSLOW}, 4")
    a("s_waitcnt vmcnt(0)")
    a("v_lshlrev_b32 v14, 4, v1")
    a(f"v_add_u32 v13, {WMS}, v14")
    a(f"s_lshl_b32 s{st[6]}, s{sWV}, 10")
    a(f"v_add_u32 v13, s{st[6]}, v13")
    a(f"ds_write_b128 v13, {vr(WT)}")
    a(f"ds_write_b128 v13, {vr(WT+4)} offset:8192")
    a(f"s_cmp_lt_u32 s{sWV}, 4")
    a("s_cbranch_scc0 k_w3")
    a(f"ds_write_b128 v13, {vr(WT+8)} offset:16384")
    a("k_w3:")
    a(f"s_mov_b32 m0, s{sXS}")
    a("s_waitcnt vmcnt(0) lgkmcnt(0)")
    stamp(a,7)
    a("s_barrier")
    stamp(a,8,12)
    a("k_main:")
    main_pro(a)
    main_loops(a,"pair")
    main_loops(a,"safe")
    main_post(a)
    a("k_mjoin:")
    a("s_waitcnt vmcnt(0) lgkmcnt(0)")
    stamp(a,9,13)
    W2F=D[0]; B2R=KT
    a(f"s_cmp_ge_u32 s{sWV}, 4")
    a("s_cbranch_scc1 k_now2")
    a(f"s_and_b32 s{st[0]}, s{sWV}, 1")
    a(f"s_lshl_b32 s{st[1]}, s{st[0]}, 13")
    a(f"s_add_u32 s{st[1]}, s{st[1]}, {20*1024}")
    a(f"s_add_u32 s{st[2]}, s{st[1]}, 4096")
    a("v_lshlrev_b32 v14, 4, v1")
    for ks in range(8):
        a(f"buffer_load_dwordx4 {vr(W2F+4*ks)}, v14, s[{S_W}:{S_W+3}], s{st[1+(ks>>2)]} offen offset:{(ks&3)*1024} sc1")
    a("v_lshrrev_b32 v5, 5, v1")
    a(f"s_lshl_b32 s{st[3]}, s{st[0]}, 6")
    a(f"v_lshl_add_u32 v13, v5, 3, s{st[3]}")
    for q in range(4): a(f"buffer_load_dwordx2 {vr(B2R+2*q,2)}, v13, s[{S_B2}:{S_B2+3}], 0 offen offset:{q*16}")
    a("k_now2:")
    SR=EE
    a(f"v_lshlrev_b32 v9, 4, v1")
    a(f"v_add_u32 v9, {SEG}, v9")
    for r in range(5):
        a(f"v_add_u32 v{A+2*r}, s{sRA+r}, v9")
        a(f"v_add_u32 v{A+2*r+1}, s{sRB+r}, v9")
    a("s_barrier")
    for r in range(5):
        for t in range(2): a(f"ds_read_b128 {vr(SR+8*r+4*t)}, v{A+2*r+t}")
    for r in range(5):
        a(f"s_waitcnt lgkmcnt({8-2*r})")
        for c in range(2):
            a(f"v_add_f32 v{SR+8*r+2*c}, v{SR+8*r+2*c}, v{SR+8*r+2*c+1}")
            a(f"v_add_f32 v{SR+8*r+4+2*c}, v{SR+8*r+4+2*c}, v{SR+8*r+4+2*c+1}")
            a(f"v_add_f32 v{HR+2*r+c}, v{HR+2*r+c}, v{SR+8*r+2*c}")
            a(f"v_add_f32 v{HR+2*r+c}, v{HR+2*r+c}, v{SR+8*r+4+2*c}")
    for r in range(5):
        a(f"k_more_{r}:")
        a(f"s_cmp_eq_u32 s{sRM+r}, 0")
        a(f"s_cbranch_scc1 k_moredone_{r}")
        a(f"s_ff1_i32_b32 s{st[4]}, s{sRM+r}")
        a(f"s_add_u32 s{st[5]}, s{st[4]}, s{sWV}")
        a(f"s_add_u32 s{st[5]}, s{st[5]}, {8*r}")
        a(f"s_lshl_b32 s{st[5]}, s{st[5]}, 10")
        a(f"v_add_u32 v10, s{st[5]}, v9")
        a(f"ds_read_b128 {vr(SR)}, v10")
        a(f"s_add_u32 s{st[4]}, s{sRM+r}, -1")
        a(f"s_and_b32 s{sRM+r}, s{sRM+r}, s{st[4]}")
        a("s_waitcnt lgkmcnt(0)")
        for c in range(2):
            a(f"v_add_f32 v{SR+2*c}, v{SR+2*c}, v{SR+2*c+1}")
            a(f"v_add_f32 v{HR+2*r+c}, v{HR+2*r+c}, v{SR+2*c}")
        a(f"s_branch k_more_{r}")
        a(f"k_moredone_{r}:")
    a(f"s_bitcmp1_b32 s{sSLOW}, 0")
    a("s_cbranch_scc0 k_epi")
    a("s_waitcnt vmcnt(0)")
    a("s_barrier")
    a(f"s_add_u32 s{sB0}, s{sB0}, 2048")
    a(f"s_cmp_lt_u32 s{sB0}, {E}")
    a("s_cbranch_scc1 k_slowfetch")
    a("s_branch k_epi")
    a("k_goslow:")
    a(f"s_or_b32 s{sSLOW}, s{sSLOW}, 1")
    a(f"s_mov_b32 s{sSAFE}, 1")
    a(f"s_mov_b32 s{sB0}, 0")
    a("s_waitcnt lgkmcnt(0)")
    a("s_barrier")
    a("k_slowfetch:")
    a(f"s_lshl_b32 s{st[0]}, s{sB0}, 2")
    a(f"v_lshlrev_b32 v{vT1}, 4, v0")
    a(f"v_add_u32 v{vT1}, s{st[0]}, v{vT1}")
    a(f"buffer_load_dwordx4 {vr(A)}, v{vT1}, s[{S_DST}:{S_DST+3}], 0 offen")
    a(f"buffer_load_dwordx4 {vr(A+4)}, v{vT1}, s[{S_SRC}:{S_SRC+3}], 0 offen")
    a(f"v_lshlrev_b32 v{vT0}, 4, v0")
    init_lists(a,KT,KT+4)
    for i in range(4): a(f"v_mov_b32 v{PD+i}, 0")
    fill_region(a,HIST,256,PD)
    a(f"v_lshlrev_b32 v{EB}, 2, v0")
    a(f"v_add_u32 v{EB}, s{sB0}, v{EB}")
    a(f"s_mov_b32 s{st[0]}, {MAGIC}")
    a(f"s_mov_b32 s{st[1]}, {E}")
    a("s_waitcnt vmcnt(0)")
    for i in range(4):
        a(f"v_mul_hi_u32 v{A+8+i}, v{A+i}, s{st[0]}")
        a(f"v_subrev_u32 v{A+i}, s{sNB}, v{A+i}")
        a(f"v_lshlrev_b32 v{A+i}, 26, v{A+i}")
        a(f"v_or_b32 v{R+i}, v{A+i}, v{A+4+i}")
        if i: a(f"v_or_b32 v{R+i}, {i<<14}, v{R+i}")
    a(f"v_cmp_gt_u32 vcc, s{st[1]}, v{EB}")
    for i in range(4):
        a(f"v_cmp_eq_u32 s[{sMK+2*i}:{sMK+2*i+1}], s2, v{A+8+i}")
        a(f"s_and_b64 s[{sMK+2*i}:{sMK+2*i+1}], s[{sMK+2*i}:{sMK+2*i+1}], vcc")
    for e in range(4,16): a(f"s_mov_b64 s[{sMK+2*e}:{sMK+2*e+1}], 0")
    a("s_waitcnt lgkmcnt(0)")
    a("s_barrier")
    hist(a)
    a("s_waitcnt lgkmcnt(0)")
    a("s_barrier")
    a("s_branch k_scan")
    a("k_epi:")
    stamp(a,10)
    a(f"s_mul_i32 s{st[3]}, s{sWV}, 272")
    a(f"s_add_u32 s{st[3]}, s{st[3]}, {HH}")
    a(f"v_lshl_add_u32 v4, v1, 2, s{st[3]}")
    a(f"s_mov_b32 s{st[4]}, {f2u(-0.6931471805599453*2.0**-24):#x}")
    a(f"s_mov_b32 s{st[5]}, 0xffff0000")
    a(f"v_mov_b32 v5, 0x207")
    a(f"s_mov_b64 s[{st[6]}:{st[7]}], 0")
    HV=A; T=PD
    for x in range(10):
        a(f"v_cmp_class_f32 vcc, v{HR+x}, v5")
        a(f"v_mul_f32 v{HV+x}, s{st[4]}, v{HR+x}")
        a(f"s_or_b64 s[{st[6]}:{st[7]}], s[{st[6]}:{st[7]}], vcc")
    for r in range(5):
        h0=HV+2*r; t=EE+4*r
        a(f"v_cvt_pk_bf16_f32 v{t}, v{h0}, v{h0+1}")
        a(f"v_lshlrev_b32 v{t+1}, 16, v{t}")
        a(f"v_and_b32 v{t+2}, s{st[5]}, v{t}")
        a(f"ds_write_b32 v4, v{t} offset:{r*8*272}")
        a(f"v_sub_f32 v{t+1}, v{h0}, v{t+1}")
        a(f"v_sub_f32 v{t+2}, v{h0+1}, v{t+2}")
        a(f"v_cvt_pk_bf16_f32 v{t+3}, v{t+1}, v{t+2}")
        a(f"ds_write_b32 v4, v{t+3} offset:{r*8*272+HL-HH}")
    a(f"s_cmp_eq_u64 s[{st[6]}:{st[7]}], 0")
    a("s_cbranch_scc1 k_fin")
    a(f"v_mov_b32 v{vT0}, {FLAG+4}")
    a(f"v_mov_b32 v{vT1}, 1")
    a(f"ds_write_b32 v{vT0}, v{vT1}")
    a("k_fin:")
    a("s_waitcnt lgkmcnt(0)")
    stamp(a,1)
    a("s_barrier")
    a(f"v_mov_b32 v{vT0}, {FLAG+4}")
    a(f"ds_read_b32 v{vT1}, v{vT0}")
    a(f"s_lshr_b32 s{st[1]}, s{sWV}, 1")
    a("v_and_b32 v4, 31, v1")
    a("v_lshrrev_b32 v5, 5, v1")
    a(f"s_lshl_b32 s{st[2]}, s{st[1]}, 5")
    a(f"v_add_u32 v6, s{st[2]}, v4")
    a("s_waitcnt lgkmcnt(0)")
    a(f"v_readfirstlane_b32 s{st[0]}, v{vT1}")
    a(f"s_andn2_b32 s{st[0]}, s{st[0]}, s{sSAFE}")
    a(f"s_cmp_lg_u32 s{st[0]}, 0")
    a("s_cbranch_scc0 k_final")
    a(f"s_mov_b32 s{sSAFE}, 1")
    a("s_waitcnt vmcnt(0)")
    for i in range(10): a(f"v_mov_b32 v{HR+i}, 0")
    a("s_barrier")
    a("s_branch k_main")
    a("k_final:")
    if dbg=="stamp":
        a(f"s_cmp_ge_u32 s{sWV}, 4")
        a("s_cbranch_scc0 k_final2")
        stamp_out(a)
        a("s_endpgm")
        a("k_final2:")
    a(f"s_cmp_ge_u32 s{sWV}, 4")
    a("s_cbranch_scc1 k_end")
    a("v_mul_u32_u24 v7, 272, v6")
    a("v_lshl_add_u32 v7, v5, 4, v7")
    a(f"v_add_u32 v7, {HH}, v7")
    a("v_lshlrev_b32 v8, 2, v6")
    a(f"ds_read_b32 v9, v8 offset:{DEG}")
    rd=[]
    for ks in range(8):
        rd.append(f"ds_read_b128 {vr(W+8*ks)}, v7 offset:{ks*32}")
        rd.append(f"ds_read_b128 {vr(W+8*ks+4)}, v7 offset:{ks*32+HL-HH}")
    for x in rd[:14]: a(x)
    a(f"s_mov_b32 s{st[5]}, 0xffff0000")
    BU=A; OD=EE
    a("s_waitcnt vmcnt(0)")
    waits=[13,13,13,12,11,10,9,8,7,6,5,4,3,2,1,0]
    for n in range(16):
        ks=n>>1
        a(f"s_waitcnt lgkmcnt({waits[n]})")
        a(mfma(OD,W2F+4*ks,W+8*ks+4*(n&1),None if n==0 else OD))
        if n<2: a(rd[14+n])
        if n&1:
            q,c=ks>>1,ks&1
            a(f"v_lshlrev_b32 v{BU+4*q+2*c}, 16, v{B2R+2*q+c}")
            a(f"v_and_b32 v{BU+4*q+2*c+1}, s{st[5]}, v{B2R+2*q+c}")
    a("v_cvt_f32_u32 v9, v9")
    a(f"s_and_b32 s{st[0]}, s{sWV}, 1")
    a(f"s_lshl_b32 s{st[0]}, s{st[0]}, 6")
    a(f"v_add_u32 v10, s{sNB}, v6")
    a("v_lshlrev_b32 v10, 7, v10")
    a("v_lshl_add_u32 v10, v5, 3, v10")
    a(f"v_add_u32 v10, s{st[0]}, v10")
    a(f"v_cmp_gt_u32 vcc, s{sNN}, v6")
    a("s_nop 7")
    for r in range(16): a(f"v_fma_f32 v{OD+r}, v9, v{BU+r}, v{OD+r}")
    for q in range(4):
        a(f"v_cvt_pk_bf16_f32 v{PD+2*q}, v{OD+4*q}, v{OD+4*q+1}")
        a(f"v_cvt_pk_bf16_f32 v{PD+2*q+1}, v{OD+4*q+2}, v{OD+4*q+3}")
    a(f"s_and_saveexec_b64 s[{st[6]}:{st[7]}], vcc")
    a("s_cbranch_execz k_end")
    for q in range(4): a(f"buffer_store_dwordx2 {vr(PD+2*q,2)}, v10, s[{S_O}:{S_O+3}], 0 offen offset:{q*16}"+os.environ.get("OSF",""))
    if dbg=="stamp":
        a("s_mov_b64 exec, -1")
        a("s_waitcnt vmcnt(0)")
        stamp(a,2)
        stamp_out(a)
    if dbg=="dbgtime":
        a("s_mov_b64 exec, -1")
        a("s_waitcnt vmcnt(0)")
        dstamp(a,6)
    a("k_end:")
    a("s_endpgm")
    return a
```

```python
import sys, os
from common import *
import k16
HEADER=open(os.path.join(os.path.dirname(os.path.abspath(__file__)),"header.txt")).read()
def build(path, dbg=None):
    kk=k16.gen(dbg)
    L=kk.lines
    i0=L.index('L_F_pair:'); i1=L.index('L_fin_pair:')
    def filt(pred): kk.lines=[l for i,l in enumerate(kk.lines) if not (i0<i<i1 and pred(l))]
    import re
    if 'sim4' in OPT: filt(lambda l: l.startswith(f'v_pk_mul_f32 v[{k16.PN}') or l.startswith(f'v_pk_mul_f32 v[{k16.PN+2}') or l.startswith(f'v_pk_mul_f32 v[{k16.PN+4}') or l.startswith(f'v_pk_mul_f32 v[{k16.PN+6}'))
    if 'noq' in OPT: filt(lambda l: l.startswith('v_mfma') and (f'v[{k16.ACF}:' in l or f'v[{k16.ADY}:' in l or f'v[{k16.ACS}:' in l))
    if 'nox2' in OPT: filt(lambda l: l.startswith('v_mfma') and (f', v[{k16.A+4}:' in l or f', v[{k16.A+8}:' in l))
    if 'novm' in OPT: filt(lambda l: l.startswith('s_waitcnt vmcnt'))
    if 'nodma' in OPT: filt(lambda l: l.endswith(' lds'))
    if 'noe' in OPT: filt(lambda l: l.endswith('nt lds'))
    if 'norcp' in OPT: filt(lambda l: l.startswith('v_rcp'))
    if 'noexp' in OPT: filt(lambda l: l.startswith('v_exp'))
    errs=check(kk.lines,"k16") if not (OPT-{''}) else []
    for tag in ("pair","safe"):
        for t1 in ("F","S","T1","T2","T3"):
            for t2 in ("F","S","T1","T2","T3"):
                if tag=="safe" and (t1!="S" or t2!="S"): continue
                errs+=check(k16.tile(t1,tag)[-40:]+k16.tile(t2,tag)[:60],f"{tag}{t1}{t2}")
    for e in errs: print("HAZARD",e)
    vg=256 if dbg else k16.NVGPR
    s=HEADER
    s+=f"; @launch grid=(256,1,1) block=(512,1,1) lds={k16.LDS_BYTES}\n"
    s+='.amdgcn_target "amdgcn-amd-amdhsa--gfx950"\n.text\n'
    s+=kernel_text(k16.KNAME,kk)
    s+='.section .rodata,"a"\n'
    s+=desc(k16.KNAME,vg,102)
    open(path,"w").write(s)
    print("wrote",path,len(s),"bytes; LDS",k16.LDS_BYTES,"hazards",len(errs))
if __name__=="__main__":
    out=sys.argv[1] if len(sys.argv)>1 else f"cdna_kernels/{NAME}.s"
    build(out, sys.argv[2] if len(sys.argv)>2 else None)
```
